```python
import torch

def _softmax(x, axis=-1):
    return torch.softmax(x, dim=axis)
def _gelu(x):
    return torch.nn.functional.gelu(x, approximate="tanh")
def _silu(x):
    return torch.nn.functional.silu(x)
def _sigmoid(x):
    return torch.sigmoid(x)
def _layernorm(x, axis=-1, eps=1e-5):
    m = x.mean(dim=axis, keepdim=True)
    v = x.var(dim=axis, keepdim=True, unbiased=False)
    return (x - m) / torch.sqrt(v + eps)
def _scatter_add(tgt, idx, src, axis=0):
    return tgt.clone().index_add_(axis, idx, src)
def _segment_sum(src, seg, n):
    out = torch.zeros((n,) + src.shape[1:], dtype=src.dtype)
    return out.index_add_(0, seg, src)
def _pad(x, pw):
    flat = tuple(v for pair in reversed(pw) for v in pair)
    return torch.nn.functional.pad(x, flat)

kernel_name = 'interleave_layers__linear_attn_block__glu_gated_swiglu__prompt'

def setup_inputs():

    _w = (lambda a: (lambda t: t.to(torch.bfloat16) if t.is_floating_point() else t)(torch.as_tensor(a)))
    def _A_setup():
        B, S, D = 1, 2048, 512
        return {
            "x": _w((lambda *s: torch.randn(*s, dtype=torch.bfloat16) * 0.05)(B, S, D)),
            "wqkv": _w((lambda *s: torch.randn(*s, dtype=torch.bfloat16) * 0.05)(D, 3 * D)),
            "wo": _w((lambda *s: torch.randn(*s, dtype=torch.bfloat16) * 0.05)(D, D)),
        }
    _A_in = _A_setup()

    def _B_setup():
        B, S, D, F = 1, 2048, 512, 1792
        return {
            "x": _w((lambda *s: torch.randn(*s, dtype=torch.bfloat16) * 0.05)(B, S, D)),
            "w1": _w((lambda *s: torch.randn(*s, dtype=torch.bfloat16) * 0.4)(D, F) * (2.0 / D) ** 0.5),
            "w3": _w((lambda *s: torch.randn(*s, dtype=torch.bfloat16) * 0.4)(D, F) * (2.0 / D) ** 0.5),
            "w2": _w((lambda *s: torch.randn(*s, dtype=torch.bfloat16) * 0.4)(F, D) * (2.0 / F) ** 0.5),
        }
    _B_in = _B_setup()

    return {
        "A_x": _A_in["x"],
        "A_wqkv": _A_in["wqkv"],
        "A_wo": _A_in["wo"],
        "B_x": _B_in["x"],
        "B_w1": _B_in["w1"],
        "B_w3": _B_in["w3"],
        "B_w2": _B_in["w2"],
    }

def reference(A_x, A_wqkv, A_wo, B_x, B_w1, B_w3, B_w2):
    def _A_ref(x, wqkv, wo):
        B, S, D = x.shape
        H = 32; Dh = D // H
        qkv = (lambda x, *d: x.permute(*d))((x @ wqkv).reshape(B, S, 3, H, Dh), 2, 0, 3, 1, 4)
        q, k, v = qkv[0], qkv[1], qkv[2]
        phi = lambda t: torch.where(t > 0, t + 1, torch.exp(t)) + 1e-6
        pq, pk = phi(q), phi(k)
        kv = torch.einsum("bhsd,bhse->bhde", pk, v)
        z = torch.einsum("bhsd->bhd", pk)
        num = torch.einsum("bhqd,bhde->bhqe", pq, kv)
        den = torch.einsum("bhqd,bhd->bhq", pq, z)[..., None] + 1e-6
        o = num / den
        return (lambda x, *d: x.permute(*d))(o, 0, 2, 1, 3).reshape(B, S, D) @ wo

    def _B_ref(x, w1, w3, w2):
        gate = torch.einsum("bsd,df->bsf", x, w1)
        up = torch.einsum("bsd,df->bsf", x, w3)
        h = _silu(gate) * up
        out = torch.einsum("bsf,fd->bsd", h, w2)
        return out

    x = A_x
    x = x + _A_ref(_layernorm(x, axis=-1), A_wqkv, A_wo)
    x = x + _B_ref(_layernorm(x, axis=-1), B_w1, B_w3, B_w2)
    x = x + _A_ref(_layernorm(x, axis=-1), A_wqkv, A_wo)
    x = x + _B_ref(_layernorm(x, axis=-1), B_w1, B_w3, B_w2)
    return x
```

```python
KNAME = 'interleave_layers__linear_attn_block__glu_gated_swiglu__prompt_kernel'

HEADER_LAYOUT = """; Two (linear attention, SwiGLU) layers in one persistent launch: 256 workgroups (one per CU), 4 waves of 512 registers.
"""

class Kern:
    def __init__(self, name, vgpr=256, agpr=0, sgpr=102):
        self.name = name; self.lines = []; self.vgpr = vgpr; self.agpr = agpr; self.sgpr = sgpr
        self._lab = 0
    def e(self, s):
        for l in s.strip('\n').split('\n'):
            l = l.strip()
            if l: self.lines.append(l)
    def c(self, s): self.lines.append('; ' + s)
    def label(self, base='L'):
        self._lab += 1
        return '%s_%s_%d' % (base, self.name[:6].strip('_'), self._lab)
    def text(self):
        out = ['.globl %s' % self.name, '.p2align 8', '.type %s,@function' % self.name, '%s:' % self.name]
        for l in self.lines:
            if l.endswith(':') or l.startswith(';') or l.startswith('.'):
                out.append(l)
            else:
                out.append('    ' + l)
        return '\n'.join(out) + '\n'
    def desc(self):
        acc_off = (self.vgpr + 3) // 4 * 4
        nfv = acc_off + self.agpr if self.agpr else self.vgpr
        return '\n'.join([
            '.amdhsa_kernel %s' % self.name,
            '  .amdhsa_next_free_vgpr %d' % nfv,
            '  .amdhsa_next_free_sgpr %d' % self.sgpr,
            '  .amdhsa_accum_offset %d' % acc_off,
            '  .amdhsa_group_segment_fixed_size 0',
            '  .amdhsa_kernarg_size 80',
            '  .amdhsa_user_sgpr_count 2',
            '  .amdhsa_user_sgpr_kernarg_segment_ptr 1',
            '  .amdhsa_system_sgpr_workgroup_id_x 1',
            '  .amdhsa_float_denorm_mode_32 3',
            '.end_amdhsa_kernel']) + '\n'

def build_file(kernels, launches, extra_header=''):
    s = HEADER_LAYOUT + extra_header
    if len(launches) == 1 and launches[0][0] == KNAME:
        n, g, b, lds = launches[0]
        s += '; @launch grid=(%d,%d,%d) block=(%d,%d,%d) lds=%d\n' % (g + b + (lds,))
    else:
        for n, g, b, lds in launches:
            s += '; @launch kernel=%s grid=(%d,%d,%d) block=(%d,%d,%d) lds=%d\n' % ((n,) + g + b + (lds,))
    s += '.amdgcn_target "amdgcn-amd-amdhsa--gfx950"\n.text\n'
    for k in kernels:
        s += k.text()
    s += '.section .rodata,"a"\n'
    for k in kernels:
        s += '.p2align 6\n' + k.desc()
    return s
```

```python
import sys
sys.path.insert(0, 'gen')
from asmlib import HEADER_LAYOUT, KNAME
from emit import check_hazards
def build_file(kernels, launches, extra_header='', merge=True):
    s = HEADER_LAYOUT + extra_header
    if len(launches) == 1 and launches[0][0] == KNAME:
        n, g, b, lds = launches[0]
        s += '; @launch grid=(%d,%d,%d) block=(%d,%d,%d) lds=%d\n' % (g + b + (lds,))
    else:
        for n, g, b, lds in launches:
            s += '; @launch kernel=%s grid=(%d,%d,%d) block=(%d,%d,%d) lds=%d\n' % ((n,) + g + b + (lds,))
    s += '.amdgcn_target "amdgcn-amd-amdhsa--gfx950"\n.text\n'
    nerr = 0
    for k in kernels:
        if merge: k.merge_waits()
        errs = check_hazards(k.lines, k.name)
        for e in errs: print(e)
        nerr += len(errs)
        s += k.text()
    s += '.section .rodata,"a"\n'
    for k in kernels:
        s += '.p2align 6\n' + k.desc()
    if nerr: print('HAZARDS:', nerr)
    return s
```

```python
import re

class Em:
    def __init__(self, name, vgpr=256, agpr=256, sgpr=100):
        self.name = name; self.lines = []; self.vgpr = vgpr; self.agpr = agpr; self.sgpr = sgpr
        self.vm = []; self.lg = []; self._lab = 0
    def e(self, s):
        for l in s.strip('\n').split('\n'):
            l = l.strip()
            if l: self.lines.append(l)
    def c(self, s): self.lines.append('; ' + s)
    def label(self, base='L'):
        self._lab += 1
        return '%s_%s_%d' % (base, self.name.replace('_kernel', '')[-8:], self._lab)
    def place(self, lab): self.lines.append(lab + ':')
    def vmem(self, s, tag):
        self.e(s); self.vm.append(tag)
        assert len(self.vm) <= 63, ('vmcnt overflow', len(self.vm))
    def vm_n(self, tag):
        idx = max(i for i, t in enumerate(self.vm) if t == tag)
        return len(self.vm) - 1 - idx, idx
    def wait_vm(self, tag, extra=''):
        if tag not in self.vm: return False
        n, idx = self.vm_n(tag)
        self.e('s_waitcnt vmcnt(%d)%s' % (n, extra))
        self.vm = self.vm[idx + 1:]
        return True
    def wait_vm_all(self, force=False):
        if self.vm or force: self.e('s_waitcnt vmcnt(0)')
        self.vm = []
    def ds(self, s, tag):
        self.e(s); self.lg.append(tag)
        assert len(self.lg) <= 15, ('lgkmcnt overflow', len(self.lg))
    def wait_lg(self, tag):
        if tag not in self.lg: return False
        idx = max(i for i, t in enumerate(self.lg) if t == tag)
        n = len(self.lg) - 1 - idx
        self.e('s_waitcnt lgkmcnt(%d)' % n)
        self.lg = self.lg[idx + 1:]
        return True
    def wait_lg_all(self, force=False):
        if self.lg or force: self.e('s_waitcnt lgkmcnt(0)')
        self.lg = []
    def barrier(self):
        assert not self.lg, 'barrier with LDS ops outstanding: %s' % self.lg
        self.e('s_barrier')
    def nop(self, n):
        while n > 0:
            k = min(n, 16); self.e('s_nop %d' % (k - 1)); n -= k
    def text(self):
        out = ['.globl %s' % self.name, '.p2align 8', '.type %s,@function' % self.name, '%s:' % self.name]
        for l in self.lines:
            if l.endswith(':') or l.startswith(';') or l.startswith('.'): out.append(l)
            else: out.append('  ' + l)
        return '\n'.join(out) + '\n'
    def desc(self):
        acc_off = (self.vgpr + 3) // 4 * 4
        nfv = acc_off + self.agpr if self.agpr else self.vgpr
        return '\n'.join(['.amdhsa_kernel %s' % self.name,
            '  .amdhsa_next_free_vgpr %d' % nfv, '  .amdhsa_next_free_sgpr %d' % self.sgpr,
            '  .amdhsa_accum_offset %d' % acc_off, '  .amdhsa_group_segment_fixed_size 0',
            '  .amdhsa_kernarg_size 80', '  .amdhsa_user_sgpr_count 2',
            '  .amdhsa_user_sgpr_kernarg_segment_ptr 1', '  .amdhsa_system_sgpr_workgroup_id_x 1',
            '  .amdhsa_float_denorm_mode_32 3', '.end_amdhsa_kernel']) + '\n'

_REG = re.compile(r'^(-|abs\()?([vas])(\d+)\)?$|^(-)?([vas])\[(\d+):(\d+)\]$')
def regs(tok):
    tok = tok.strip()
    if tok in ('vcc', 'vcc_lo', 'vcc_hi'): return {('s', 'vcc')}
    if tok == 'exec': return {('s', 'exec')}
    if tok == 'm0': return {('s', 'm0')}
    m = _REG.match(tok)
    if not m: return set()
    if m.group(2): return {(m.group(2), int(m.group(3)))}
    return {(m.group(5), i) for i in range(int(m.group(6)), int(m.group(7)) + 1)}

TRANS = ('v_exp_f32', 'v_log_f32', 'v_rcp_f32', 'v_rsq_f32', 'v_sqrt_f32', 'v_sin_f32', 'v_cos_f32', 'v_rcp_iflag_f32')
class I:
    def __init__(self, line):
        self.line = line
        body = line.split(';')[0].strip()
        p = body.split(None, 1)
        self.op = p[0]
        rest = p[1] if len(p) > 1 else ''
        ops = [o.strip() for o in rest.split(',')] if rest else []
        if ops:
            last = ops[-1].split()
            ops[-1] = last[0] if last else ''
            self.mods = last[1:]
        else: self.mods = []
        self.ops = ops
        op = self.op
        self.kind = 'other'; self.defs = set(); self.uses = set(); self.states = 1
        R = [regs(o) for o in ops]
        if op == 's_nop': self.states = int(ops[0]) + 1; self.kind = 'nop'
        elif op.startswith('v_mfma'):
            self.kind = 'mfma'; self.defs = R[0]; self.A = R[1]; self.B = R[2]; self.C = R[3]; self.uses = R[1] | R[2] | R[3]
        elif op.startswith('v_cmp'):
            self.kind = 'valu'; self.defs = R[0]; self.uses = set().union(*R[1:])
            if op.startswith('v_cmpx'): self.defs = self.defs | {('s', 'exec')}
        elif op in ('v_readfirstlane_b32', 'v_readlane_b32'):
            self.kind = 'valu'; self.defs = R[0]; self.uses = set().union(*R[1:]); self.readlane = True
        elif op.startswith('v_permlane'):
            self.kind = 'valu'; self.defs = R[0] | R[1]; self.uses = R[0] | R[1]; self.perm = True
        elif op.startswith('v_'):
            self.kind = 'valu'; self.defs = R[0]; self.uses = set().union(*R[1:]) if len(R) > 1 else set()
            if op.startswith(('v_fmac', 'v_dot2c', 'v_mac')): self.uses |= R[0]
            if op.startswith('v_cndmask') and len(R) == 3: self.uses |= {('s', 'vcc')}
            if op.startswith('v_cndmask') and op.endswith('_e32'): self.uses |= {('s', 'vcc')}
            if '_co_' in op: self.defs = R[0] | R[1]; self.uses = set().union(*R[2:])
            self.trans = op.replace('_e32', '').replace('_e64', '') in TRANS
        elif op.startswith(('buffer_', 'global_')):
            self.kind = 'vmem'
            if 'lds' in self.mods or '_lds_' in op:
                self.uses = set().union(*R) | {('s', 'm0')}; self.ldsdma = True
            elif '_load' in op: self.defs = R[0]; self.uses = set().union(*R[1:])
            elif '_atomic' in op and 'sc0' in self.mods: self.defs = R[0]; self.uses = set().union(*R[1:])
            else: self.uses = set().union(*R) if R else set(); self.store = True
        elif op.startswith('ds_'):
            self.kind = 'ds'
            if op.startswith('ds_read') or op.startswith('ds_bpermute') or op.startswith('ds_swizzle'):
                self.defs = R[0]; self.uses = set().union(*R[1:])
            else: self.uses = set().union(*R)
        elif op.startswith('s_'):
            self.kind = 'salu'
            if op.startswith(('s_cmp', 's_cbranch', 's_branch', 's_waitcnt', 's_barrier', 's_endpgm', 's_sleep', 's_setprio', 's_bitcmp')):
                self.uses = set().union(*R) if R else set()
            else:
                self.defs = R[0] if R else set(); self.uses = set().union(*R[1:]) if len(R) > 1 else set()
                if 'saveexec' in op: self.defs |= {('s', 'exec')}
    def wide_store(self):
        return getattr(self, 'store', False) and (self.op.endswith('x4') or self.op.endswith('x3'))

def check_hazards(lines, name=''):
    ins = []
    for l in lines:
        b = l.split(';')[0].strip()
        if not b or b.endswith(':') or b.startswith('.'): continue
        ins.append(I(b))
    errs = []
    W = 24
    for j, c in enumerate(ins):
        dist = 0
        for i in range(j - 1, max(-1, j - W - 1), -1):
            p = ins[i]
            def need(n, why):
                if dist < n: errs.append('%s: need %d states (have %d) [%s]\n    %s\n    %s' % (name, n, dist, why, p.line, c.line))
            vdefs = {r for r in p.defs if r[0] in 'va'}
            sdefs = {r for r in p.defs if r[0] == 's'}
            if p.kind == 'valu':
                if c.kind == 'mfma' and vdefs & c.uses: need(2, 'VALU->MFMA operand')
                if c.kind == 'mfma' and ('s', 'exec') in p.defs: need(4, 'VALU exec->MFMA')
                if c.kind == 'vmem' and sdefs & c.uses: need(5, 'VALU sgpr->VMEM')
                if c.kind == 'valu' and (sdefs & c.uses) and not getattr(c, 'readlane', False): need(2, 'VALU sgpr->VALU const')
                if c.kind == 'valu' and getattr(c, 'readlane', False) and vdefs & c.uses: need(1, 'VALU->readlane')
                if c.kind == 'valu' and getattr(c, 'readlane', False) and sdefs & c.uses: need(4, 'VALU sgpr->readlane sel')
                if c.kind == 'valu' and getattr(c, 'perm', False) and vdefs & c.uses: need(2, 'VALU->permlane')
                if getattr(p, 'trans', False) and c.kind == 'valu' and not getattr(c, 'trans', False) and vdefs & c.uses: need(1, 'trans->VALU')
                if getattr(p, 'trans', False) and c.kind in ('mfma',) and vdefs & c.uses: need(2, 'trans->mfma')
                if c.kind == 'valu' and any('dpp' in m or 'row_' in m for m in c.mods) and vdefs & c.uses: need(2, 'VALU->DPP')
            if p.kind == 'mfma':
                D = p.defs
                if c.kind == 'mfma':
                    if D & (c.A | c.B): need(12, 'MFMA D->A/B')
                    if D & c.C and c.C != D: need(10, 'MFMA D->partial C')
                    if D & c.defs and c.C != D and not (D & c.C): need(12, 'MFMA D->D WAW (conservative)')
                elif c.kind in ('valu',) and D & (c.uses | c.defs): need(12, 'MFMA D->VALU')
                elif c.kind in ('vmem', 'ds') and D & (c.uses | c.defs): need(12, 'MFMA D->VMEM/DS')
                if c.kind == 'valu' and p.C & c.defs and not (D & c.defs): need(7, 'MFMA C WAR')
            if p.kind == 'vmem' and p.wide_store():
                data = regs(p.ops[0]) if p.op.startswith('buffer_') else regs(p.ops[1])
                if c.kind == 'valu' and data & c.defs: need(2, 'store data WAR')
                elif c.kind in ('ds', 'vmem', 'mfma') and data & c.defs: need(1, 'store data WAR')
            if p.kind == 'salu' and ('s', 'm0') in p.defs and getattr(c, 'ldsdma', False): need(1, 'M0->LDS DMA')
            dist += p.states
            if dist >= 21: break
    return errs
```

```python
from emit import *
from layout import *

def stats32(E, X, tmp, out_sum, out_m2):
    a, b, c = tmp
    E.e(f'v_add_f32 v{out_sum}, v{X[0]}, v{X[1]}')
    E.e(f'v_add_f32 v{a}, v{X[2]}, v{X[3]}')
    for i in range(4, 16, 2):
        E.e(f'v_add_f32 v{out_sum}, v{out_sum}, v{X[i]}')
        E.e(f'v_add_f32 v{a}, v{a}, v{X[i+1]}')
    E.e(f'v_add_f32 v{out_sum}, v{out_sum}, v{a}')
    E.e(f's_nop 0')
    E.e(f'v_mov_b32 v{a}, v{out_sum}')
    E.e(f's_nop 1')
    E.e(f'v_permlane32_swap_b32 v{out_sum}, v{a}')
    E.e(f's_nop 0')
    E.e(f'v_add_f32 v{out_sum}, v{out_sum}, v{a}')
    E.e(f'v_mul_f32 v{b}, 0x3d000000, v{out_sum}')
    E.e(f'v_sub_f32 v{a}, v{X[0]}, v{b}')
    E.e(f'v_mul_f32 v{out_m2}, v{a}, v{a}')
    for i in range(1, 16):
        r = a if i % 2 else c
        E.e(f'v_sub_f32 v{r}, v{X[i]}, v{b}')
        E.e(f'v_fmac_f32 v{out_m2}, v{r}, v{r}')
    E.e(f'v_mov_b32 v{a}, v{out_m2}')
    E.e(f's_nop 1')
    E.e(f'v_permlane32_swap_b32 v{out_m2}, v{a}')
    E.e(f's_nop 0')
    E.e(f'v_add_f32 v{out_m2}, v{out_m2}, v{a}')

def gen_k0(name='prep_kernel'):
    E = Em(name, vgpr=128, agpr=0, sgpr=96)
    E.e(f'''
    s_cmp_ge_u32 s2, 256
    s_cbranch_scc1 L_k0_end
    s_load_dwordx4 s[20:23], s[0:1], 0      ; x, wqkv
    s_load_dwordx2 s[24:25], s[0:1], 16     ; wo
    s_load_dwordx4 s[28:31], s[0:1], 32     ; w1, w3
    s_load_dwordx2 s[26:27], s[0:1], 48     ; w2
    s_load_dwordx2 s[4:5], s[0:1], 72       ; ws
    v_lshrrev_b32 v2, 6, v0
    v_and_b32 v0, 63, v0                    ; lane
    v_readfirstlane_b32 s33, v2             ; wave
    v_lshlrev_b32 v1, 4, v0                 ; lane*16
    s_waitcnt lgkmcnt(0)
    s_mov_b32 s6, {WS_BYTES}
    s_mov_b32 s7, 0x20000
    s_and_b32 s5, s5, 0xffff
    s_mov_b32 s16, s20
    s_and_b32 s17, s21, 0xffff
    s_mov_b32 s18, {2048*512*2}
    s_mov_b32 s19, 0x20000
    ''')
    E.c('x tile: c = wg>>4, r64 = (wg>>3)&1, cb = wg&7 ; wave: rh = w&1, t = w>>1')
    E.e('''
    s_lshr_b32 s34, s2, 3
    s_and_b32 s35, s2, 7           ; cb
    s_and_b32 s36, s33, 1          ; rh
    s_lshr_b32 s37, s33, 1         ; t
    s_lshl_b32 s38, s34, 1
    s_add_u32 s38, s38, s36
    s_lshl_b32 s39, s38, 15
    s_lshl_b32 s40, s35, 7         ; cb*128 B
    s_add_u32 s39, s39, s40
    s_lshl_b32 s40, s37, 6         ; t*64 B
    s_add_u32 s39, s39, s40
    v_and_b32 v2, 31, v0
    v_lshlrev_b32 v2, 10, v2       ; s*1024
    v_lshrrev_b32 v3, 5, v0
    v_lshlrev_b32 v3, 3, v3        ; hf*8
    v_add_u32 v2, v2, v3
    ''')
    XR = 8
    for i in range(4):
        E.vmem(f'buffer_load_dwordx2 v[{XR+2*i}:{XR+2*i+1}], v2, s[16:19], s39 offen offset:{16*i}', 'x')
    E.c('weight job decode -> srcA s[8:11], srcB s[12:15], s41 stride, s42 colA, s43 colB, s44 kb0(wave), s45 nfr, s46 dst0, s47 dstep, s48 aug flag, s49 aug dst')
    Lq, L13, Lo, L2, Lnone, Ljob = 'L_k0_jq', 'L_k0_j13', 'L_k0_jo', 'L_k0_j2', 'L_k0_none', 'L_k0_job'
    E.e(f'''
    s_mov_b32 s11, 0x20000
    s_mov_b32 s15, 0x20000
    s_mov_b32 s8, s22
    s_and_b32 s9, s23, 0xffff
    s_mov_b32 s10, {512*1536*2}
    s_mov_b32 s12, s8
    s_mov_b32 s13, s9
    s_mov_b32 s14, s10
    s_mov_b32 s45, 8
    s_mov_b32 s47, 1024
    s_mov_b32 s48, 1
    s_lshl_b32 s44, s33, 3         ; kb0 = 8*w
    s_cmp_ge_u32 s2, 240
    s_cbranch_scc1 {Lnone}
    s_cmp_ge_u32 s2, 176
    s_cbranch_scc1 {L2}
    s_cmp_ge_u32 s2, 160
    s_cbranch_scc1 {Lo}
    s_cmp_ge_u32 s2, 48
    s_cbranch_scc1 {L13}
    {Lq}:
    s_mul_i32 s50, s2, 43691
    s_lshr_b32 s50, s50, 17
    s_mul_i32 s51, s50, 3
    s_sub_u32 s51, s2, s51         ; part 0:k 1:v 2:q
    s_add_u32 s52, s51, 1
    s_cmp_eq_u32 s51, 2
    s_cselect_b32 s52, 0, s52
    s_lshl_b32 s52, s52, 10        ; *512*2 bytes
    s_lshl_b32 s53, s50, 6
    s_add_u32 s42, s52, s53
    s_add_u32 s43, s42, 32
    s_mov_b32 s41, 3072
    s_mul_i32 s49, s2, {SLAB33}
    s_add_u32 s49, s49, {WQKV}
    s_branch L_k0_typeA
    {L13}:
    s_sub_u32 s50, s2, 48          ; j = fg*7+t
    s_lshl_b32 s42, s50, 5
    s_mov_b32 s43, s42
    s_mov_b32 s41, 3584
    s_mov_b32 s8, s28
    s_and_b32 s9, s29, 0xffff
    s_mov_b32 s10, {512*1792*2}
    s_mov_b32 s12, s30
    s_and_b32 s13, s31, 0xffff
    s_mov_b32 s14, {512*1792*2}
    s_mul_i32 s49, s50, {SLAB33}
    s_add_u32 s49, s49, {W13}
    L_k0_typeA:
    s_lshl_b32 s46, s44, 10
    s_add_u32 s46, s46, s49
    s_add_u32 s49, s49, {32*1024}
    s_branch {Ljob}
    {Lo}:
    s_sub_u32 s50, s2, 160         ; j: cb = j>>1, t = j&1
    s_lshl_b32 s42, s50, 6
    s_add_u32 s43, s42, 32
    s_mov_b32 s41, 1024
    s_mov_b32 s8, s24
    s_and_b32 s9, s25, 0xffff
    s_mov_b32 s10, {512*512*2}
    s_mov_b32 s12, s8
    s_mov_b32 s13, s9
    s_mov_b32 s14, s10
    s_mov_b32 s48, 0
    s_mov_b32 s47, 4096
    s_lshr_b32 s51, s50, 1         ; cb
    s_and_b32 s52, s50, 1          ; t
    s_lshl_b32 s46, s51, 16
    s_add_u32 s46, s46, {WO}
    s_and_b32 s53, s33, 1
    s_lshl_b32 s53, s53, 5         ; (8*(w&1))*4
    s_lshr_b32 s54, s33, 1
    s_lshl_b32 s54, s54, 1         ; kh*2
    s_add_u32 s53, s53, s54
    s_add_u32 s53, s53, s52
    s_lshl_b32 s53, s53, 10
    s_add_u32 s46, s46, s53
    s_branch {Ljob}
    {L2}:
    s_sub_u32 s50, s2, 176         ; j: cb = j>>3, t = (j>>2)&1, q = j&3
    s_lshr_b32 s51, s50, 2         ; cb*2+t
    s_lshl_b32 s42, s51, 6
    s_add_u32 s43, s42, 32
    s_mov_b32 s41, 1024
    s_mov_b32 s8, s26
    s_and_b32 s9, s27, 0xffff
    s_mov_b32 s10, {1792*512*2}
    s_mov_b32 s12, s8
    s_mov_b32 s13, s9
    s_mov_b32 s14, s10
    s_mov_b32 s48, 0
    s_mov_b32 s47, 4096
    s_mov_b32 s45, 7
    s_and_b32 s52, s50, 3          ; q
    s_mul_i32 s44, s52, 28
    s_mul_i32 s53, s33, 7
    s_add_u32 s44, s44, s53        ; kb0 = 28q + 7w
    s_lshr_b32 s54, s52, 1         ; kh
    s_mul_i32 s55, s54, 56
    s_sub_u32 s55, s44, s55
    s_lshl_b32 s55, s55, 2
    s_lshl_b32 s54, s54, 1
    s_add_u32 s55, s55, s54
    s_and_b32 s54, s51, 1
    s_add_u32 s55, s55, s54        ; idx0
    s_lshl_b32 s55, s55, 10
    s_lshr_b32 s54, s51, 1         ; cb
    s_mul_i32 s54, s54, {224*1024}
    s_add_u32 s46, s54, s55
    s_add_u32 s46, s46, {W2}
    {Ljob}:
    ''')
    E.e('''
    v_lshrrev_b32 v4, 2, v0
    v_mul_lo_u32 v4, v4, s41
    v_and_b32 v5, 1, v0
    v_lshlrev_b32 v5, 4, v5
    v_add_u32 v4, v4, v5
    v_add_u32 v5, s43, v4
    v_add_u32 v4, s42, v4
    s_lshl_b32 s56, s41, 4         ; 16 rows
    s_mul_i32 s57, s44, s56
    s_lshl_b32 s58, s33, 13
    s_mov_b32 s60, 0x33333333
    s_mov_b32 s61, 0x33333333
    s_mov_b32 s62, 0xcccccccc
    s_mov_b32 s63, 0xcccccccc
    ''')
    for (vo, srd, m) in ((4, 's[8:11]', 's[60:61]'), (5, 's[12:15]', 's[62:63]')):
        E.e(f's_mov_b64 exec, {m}')
        E.e('s_mov_b32 s59, s57')
        for f in range(8):
            if f == 7:
                E.e('s_cmp_eq_u32 s45, 7'); E.e(f's_cbranch_scc1 L_k0_skip{vo}')
            E.e(f's_add_u32 m0, s58, {f*1024}')
            E.e('s_nop 0')
            E.vmem(f'buffer_load_dwordx4 v{vo}, {srd}, s59 offen lds', 'w')
            E.e('s_add_u32 s59, s59, s56')
        E.e(f'L_k0_skip{vo}:')
    E.e('s_mov_b64 exec, -1')
    E.e('''
    v_lshrrev_b32 v6, 5, v0
    v_lshlrev_b32 v6, 2, v6
    v_and_b32 v7, 15, v0
    v_lshrrev_b32 v7, 2, v7
    v_add_u32 v6, v6, v7
    v_lshlrev_b32 v6, 6, v6
    v_lshrrev_b32 v7, 4, v0
    v_and_b32 v7, 1, v7
    v_lshlrev_b32 v7, 5, v7
    v_add_u32 v6, v6, v7
    v_and_b32 v7, 3, v0
    v_lshlrev_b32 v7, 3, v7
    v_add_u32 v6, v6, v7
    v_add_u32 v6, s58, v6
    v_mov_b32 v20, 0x3f803f80
    v_mov_b32 v21, 0x3f803f80
    v_mov_b32 v22, 0x3f803f80
    v_mov_b32 v23, 0x3f803f80
    ''')
    E.e('s_waitcnt vmcnt(0)'); E.vm = []
    W = 64
    for f in range(8):
        E.ds(f'ds_read_b64_tr_b16 v[{W+4*f}:{W+4*f+1}], v6 offset:{f*1024}', f'w{f}') if f < 7 else None
        E.ds(f'ds_read_b64_tr_b16 v[{W+4*f+2}:{W+4*f+3}], v6 offset:{f*1024+512}', f'w{f}') if f < 7 else None
    E.wait_lg_all()
    for f in range(7):
        E.e(f'buffer_store_dwordx4 v[{W+4*f}:{W+4*f+3}], v1, s[4:7], s46 offen')
        E.e('s_add_u32 s46, s46, s47')
        E.e(f'v_mfma_f32_32x32x16_bf16 v[32:47], v[20:23], v[{W+4*f}:{W+4*f+3}], ' + ('0' if f == 0 else 'v[32:47]'))
    E.e('s_cmp_eq_u32 s45, 7')
    E.e('s_cbranch_scc1 L_k0_no8')
    E.e(f'ds_read_b64_tr_b16 v[{W+28}:{W+29}], v6 offset:{7*1024}')
    E.e(f'ds_read_b64_tr_b16 v[{W+30}:{W+31}], v6 offset:{7*1024+512}')
    E.e('s_waitcnt lgkmcnt(0)')
    E.e(f'buffer_store_dwordx4 v[{W+28}:{W+31}], v1, s[4:7], s46 offen')
    E.e(f'v_mfma_f32_32x32x16_bf16 v[32:47], v[20:23], v[{W+28}:{W+31}], v[32:47]')
    E.e('L_k0_no8:')
    E.e('''
    s_nop 15
    v_lshlrev_b32 v7, 2, v0
    s_lshl_b32 s59, s33, 8
    v_add_u32 v24, s59, v7
    v_add_u32 v24, 32768, v24
    ds_write_b32 v24, v32
    s_waitcnt lgkmcnt(0)
    s_barrier
    s_cmp_eq_u32 s48, 0
    s_cbranch_scc1 L_k0_none2
    s_cmp_lg_u32 s33, 0
    s_cbranch_scc1 L_k0_none2
    v_add_u32 v24, 32768, v7
    ds_read_b32 v25, v24
    ds_read_b32 v26, v24 offset:256
    ds_read_b32 v27, v24 offset:512
    ds_read_b32 v28, v24 offset:768
    s_waitcnt lgkmcnt(0)
    v_add_f32 v25, v25, v26
    v_add_f32 v27, v27, v28
    v_add_f32 v25, v25, v27
    v_cvt_pk_bf16_f32 v26, v25, v25
    v_lshlrev_b32 v26, 16, v26
    v_sub_f32 v26, v25, v26
    v_cvt_pk_bf16_f32 v28, v25, v26
    v_cmp_gt_u32 vcc, 32, v0
    s_nop 1
    v_cndmask_b32 v28, 0, v28, vcc
    v_mov_b32 v30, 0
    v_mov_b32 v31, 0
    v_mov_b32 v29, v28
    buffer_store_dwordx4 v[28:31], v1, s[4:7], s49 offen
    s_branch L_k0_none2
    L_k0_none:
    ''')
    E.e(f'''
    s_cmp_lg_u32 s2, 255
    s_cbranch_scc1 L_k0_none2
    v_mov_b32 v28, 0
    v_mov_b32 v29, 0
    v_mov_b32 v30, 0
    v_mov_b32 v31, 0
    s_lshl_b32 s59, s33, 12
    ''')
    for i in range(4):
        E.e(f'buffer_store_dwordx4 v[28:31], v1, s[4:7], s59 offen offset:{1024*i}')
    E.e('L_k0_none2:')
    E.e('s_waitcnt vmcnt(0)'); E.vm = []
    E.e(f'''
    s_lshl_b32 s59, s38, 15
    s_lshl_b32 s40, s35, 2
    s_lshl_b32 s50, s37, 1
    s_add_u32 s40, s40, s50
    s_lshl_b32 s40, s40, 10
    s_add_u32 s59, s59, s40
    s_add_u32 s59, s59, {XF0}
    buffer_store_dwordx4 v[8:11], v1, s[4:7], s59 offen
    buffer_store_dwordx4 v[12:15], v1, s[4:7], s59 offen offset:1024
    ''')
    X = list(range(96, 112))
    for i in range(8):
        E.e(f'v_lshlrev_b32 v{X[2*i]}, 16, v{XR+i}')
        E.e(f'v_and_b32 v{X[2*i+1]}, 0xffff0000, v{XR+i}')
    stats32(E, X, (112, 113, 114), 116, 117)
    E.e(f'''
    s_lshl_b32 s59, s38, 12        ; blk*4096
    s_lshl_b32 s40, s35, 1
    s_add_u32 s40, s40, s37        ; g = 2cb + t
    s_lshl_b32 s40, s40, 8
    s_add_u32 s59, s59, s40
    s_add_u32 s59, s59, {ST0}
    v_and_b32 v2, 31, v0
    v_lshlrev_b32 v2, 3, v2
    buffer_store_dwordx2 v[116:117], v2, s[4:7], s59 offen
    L_k0_end:
    s_endpgm
    ''')
    return E
```

```python
from emit import *
from layout import *
from k0 import stats32

SLOT = SLAB33
MISC = 4 * SLOT
L_RS = MISC
L_KVS = MISC + 1024
L_KVF = MISC + 10240
L_XCH = MISC + 1024
LDS_BYTES = 163840
TS_OFF = 0x3000000

S_W, S_C, S_M, S_L, S_MODE, S_STEP = 12, 13, 14, 15, 16, 17
S_SLOT = 20
S_W8K = 24
S_WQ, S_WO, S_W13, S_W2 = 25, 26, 27, 28
S_XF, S_ST, S_LB = 29, 30, 31
S_RH, S_KH, S_R64, S_CB, S_SBW = 32, 33, 34, 35, 36
S_FLOFF = 37
S_T = 40
S_TSN = 64
V_LANE, V_L16 = 0, 1
V_SLOT = 2
V_L8 = 6
V_S8 = 7
V_FLAG = 8
V_T0 = 9
ACC = [16, 32, 48]
WF = 64
RES = 88
PQ = 96
V_R, V_C1, V_C2 = 104, 105, 106
MF = 108
ONES = 112
ST = 116
T = 132
LOG2E = 0x3fb8aa3b
NLOG2E = 0xbfb8aa3b
EPS_PHI = 0x358637bd
EPS_LN = 0x3727c5ac

class Fill:
    def __init__(self, E): self.E = E; self.q = []
    def add(self, *items):
        for it in items:
            if isinstance(it, str):
                for l in it.strip('\n').split('\n'):
                    l = l.strip()
                    if l: self.q.append(l)
            else: self.q.append(it)
    def pump(self, n):
        while n > 0 and self.q:
            it = self.q.pop(0)
            if isinstance(it, str): self.E.e(it)
            else: it()
            n -= 1
    def flush(self): self.pump(10 ** 9)

class K1:
    def __init__(self, name, stop=None, ts=False, spin=1 << 22):
        self.E = Em(name, vgpr=256, agpr=256, sgpr=100)
        self.stop = stop; self.ts = ts; self.spin = spin
    def stamp(self, idx):
        if not self.ts: return
        E = self.E
        L = E.label('ts')
        E.e(f'''
        s_cmp_lg_u32 s{S_W}, 0
        s_cbranch_scc1 {L}
        s_memtime s[66:67]
        s_lshl_b32 s68, s2, 8
        s_lshl_b32 s69, s{S_L}, 7
        s_add_u32 s68, s68, s69
        s_add_u32 s68, s68, {TS_OFF + idx * 4}
        s_waitcnt lgkmcnt(0)
        v_mov_b32 v{V_T0}, s66
        s_mov_b64 s[70:71], exec
        s_mov_b64 exec, 1
        buffer_store_dword v{V_T0}, v{V_LANE}, s[4:7], s68 offen
        s_mov_b64 exec, s[70:71]
        s_waitcnt vmcnt(0)
        {L}:
        ''')
        assert not E.lg
        if E.vm: E.e('s_waitcnt vmcnt(0)'); E.vm = []
    def dma(self, p, src_sreg, src_imm, nfr):
        E = self.E; n = 9 if nfr == 33 else 8
        a, b = S_T, S_T + 1
        E.e(f's_add_u32 s{a}, s{S_SLOT + p % 4}, s{S_W8K}')
        E.e(f's_add_u32 s{b}, s{src_sreg}, s{S_W8K}')
        if src_imm: E.e(f's_add_u32 s{b}, s{b}, {src_imm}')
        for g in range(0, n, 4):
            if g == 0: E.e(f's_mov_b32 m0, s{a}')
            else:
                E.e(f's_add_u32 m0, s{a}, {g * 1024}')
                E.e(f's_add_u32 s{b}, s{b}, 4096')
            if g == 0: E.e('s_nop 0')
            for k in range(min(4, n - g)):
                E.vmem(f'buffer_load_dwordx4 v{V_L16}, s[4:7], s{b} offen offset:{k * 1024} lds', f'slab{p}')
    def dma_items(self, p, src_sreg, src_imm, nfr):
        E = self.E; n = 9 if nfr == 33 else 8
        a, b = S_T + 2, S_T + 3
        it = [f's_add_u32 s{a}, s{S_SLOT + p % 4}, s{S_W8K}', f's_add_u32 s{b}, s{src_sreg}, s{S_W8K}']
        if src_imm: it.append(f's_add_u32 s{b}, s{b}, {src_imm}')
        for g in range(0, n, 4):
            if g == 0: it.append(f's_mov_b32 m0, s{a}'); it.append('s_nop 0')
            else:
                it.append(f's_add_u32 m0, s{a}, {g * 1024}'); it.append(f's_add_u32 s{b}, s{b}, 4096')
            for k in range(min(4, n - g)):
                it.append((lambda k=k: E.vmem(f'buffer_load_dwordx4 v{V_L16}, s[4:7], s{b} offen offset:{k * 1024} lds', f'slab{p}')))
        return it
    def load_frags(self, n, areg0, soff_setup, tag, first=0):
        E = self.E
        for i in range(n):
            if i and i % 4 == 0: E.e('s_add_u32 s44, s44, 4096')
            E.vmem(f'buffer_load_dwordx4 a[{areg0 + 4 * i}:{areg0 + 4 * i + 3}], v{V_L16}, s[4:7], s44 offen offset:{(i % 4) * 1024} sc1', f'{tag}{first + i}')
    def store_act(self, items):
        E = self.E; Ls = E.label('st'); Ld = E.label('sd')
        E.e(f's_cmp_lg_u32 s{S_MODE}, 0'); E.e(f's_cbranch_scc1 {Ls}')
        for s in items: E.e(s)
        E.e(f's_branch {Ld}'); E.place(Ls)
        for s in items: E.e(s + ' sc1')
        E.place(Ld)
        for s in items: E.vm.append('st')
    def poll(self, off_sreg, val_sreg, code):
        E = self.E; Lp = E.label('poll'); Lx = E.label('pollx'); Lt = E.label('pollt')
        E.e(f'''
        s_mov_b32 s46, 0
        {Lp}:
        s_add_u32 s46, s46, 1
        s_cmp_gt_u32 s46, {self.spin}
        s_cbranch_scc1 {Lt}
        buffer_load_dword v{V_T0}, v{V_FLAG}, s[4:7], s{off_sreg} offen sc1
        s_waitcnt vmcnt(0)
        v_cmp_gt_u32 vcc, s{val_sreg}, v{V_T0}
        s_cbranch_vccnz {Lp}
        s_branch {Lx}
        {Lt}:
        s_mov_b32 s{S_MODE + 2}, {code}
        {Lx}:
        ''')
    def hop_local(self):
        E = self.E; L = E.label('hop'); Ls = E.label('fs'); Ld = E.label('fd')
        E.wait_vm_all(force=True)
        E.wait_lg_all()
        E.barrier()
        E.e(f'''
        s_add_u32 s{S_STEP}, s{S_STEP}, 1
        s_cmp_lg_u32 s{S_W}, 0
        s_cbranch_scc1 {L}
        s_lshl_b32 s45, s{S_M}, 2
        s_add_u32 s45, s45, s{S_FLOFF}
        v_mov_b32 v{V_T0 + 1}, s{S_STEP}
        v_mov_b32 v{V_T0 + 2}, 0
        s_mov_b64 exec, 1
        s_cmp_lg_u32 s{S_MODE}, 0
        s_cbranch_scc1 {Ls}
        buffer_store_dword v{V_T0 + 1}, v{V_T0 + 2}, s[4:7], s45 offen
        s_branch {Ld}
        {Ls}:
        buffer_store_dword v{V_T0 + 1}, v{V_T0 + 2}, s[4:7], s45 offen sc1
        {Ld}:
        s_mov_b64 exec, -1
        ''')
        self.poll(S_FLOFF, S_STEP, 1)
        E.place(L)
        E.barrier()
    def stats_loads(self):
        E = self.E
        E.e(f's_lshl_b32 s44, s{S_W}, 12')
        E.e(f's_add_u32 s44, s44, s{S_ST}')
        for i in range(8):
            E.vmem(f'buffer_load_dwordx2 v[{ST + 2 * i}:{ST + 2 * i + 1}], v{V_L8}, s[4:7], s44 offen offset:{512 * i} sc1', 'stats')
    def stats_items(self, c1_sign):
        E = self.E; a, b, c, d = T, T + 1, T + 2, T + 3
        it = [lambda: E.wait_vm('stats')]
        it += [f'v_add_f32 v{a}, v{ST}, v{ST + 2}', f'v_add_f32 v{b}, v{ST + 4}, v{ST + 6}',
               f'v_add_f32 v{c}, v{ST + 1}, v{ST + 3}', f'v_add_f32 v{d}, v{ST + 5}, v{ST + 7}']
        for i in (4, 6):
            it += [f'v_add_f32 v{a}, v{a}, v{ST + 2 * i}', f'v_add_f32 v{b}, v{b}, v{ST + 2 * i + 2}',
                   f'v_add_f32 v{c}, v{c}, v{ST + 2 * i + 1}', f'v_add_f32 v{d}, v{d}, v{ST + 2 * i + 3}']
        it += [f'v_add_f32 v{a}, v{a}, v{b}', f'v_add_f32 v{c}, v{c}, v{d}', f'v_mov_b32 v{b}, v{a}', 's_nop 1',
               f'v_permlane32_swap_b32 v{a}, v{b}', f'v_add_f32 v{a}, v{a}, v{b}',
               f'v_mul_f32 v{a}, 0x3b000000, v{a}']
        it += [f'v_mov_b32 v{T + 4}, 0x3d000000']
        for i in range(8):
            it += [f'v_fma_f32 v{ST + 2 * i}, v{ST + 2 * i}, v{T + 4}, -v{a}']
        it += [f'v_mul_f32 v{b}, v{ST}, v{ST}', f'v_mul_f32 v{d}, v{ST + 2}, v{ST + 2}']
        for i in range(2, 8, 2):
            it += [f'v_fmac_f32 v{b}, v{ST + 2 * i}, v{ST + 2 * i}', f'v_fmac_f32 v{d}, v{ST + 2 * i + 2}, v{ST + 2 * i + 2}']
        it += [f'v_add_f32 v{b}, v{b}, v{d}', f'v_mov_b32 v{T + 4}, 0x42000000',
               f'v_fmac_f32 v{c}, v{T + 4}, v{b}',
               f'v_mov_b32 v{b}, v{c}', 's_nop 1' if False else f'v_sub_f32 v{a}, 0, v{a}', 's_nop 0',
               f'v_permlane32_swap_b32 v{c}, v{b}', f'v_add_f32 v{c}, v{c}, v{b}',
               f'v_mov_b32 v{d}, {EPS_LN:#x}',
               f'v_fmac_f32 v{d}, 0x3b000000, v{c}',
               f'v_cvt_pk_bf16_f32 v{MF}, v{a}, v{a}',
               f'v_rsq_f32 v{V_R}, v{d}',
               f'v_lshlrev_b32 v{b}, 16, v{MF}',
               f'v_sub_f32 v{b}, v{a}, v{b}',
               f'v_mul_f32 v{V_C1}, {(LOG2E if c1_sign > 0 else NLOG2E):#x}, v{V_R}',
               f'v_mul_f32 v{V_C2}, v{V_R}, v{V_R}',
               f'v_cvt_pk_bf16_f32 v{MF + 1}, v{b}, v{b}']
        return it
    def init(self):
        E = self.E
        E.e(f'''
        s_cmp_ge_u32 s2, 256
        s_cbranch_scc1 L_k1_end
        s_load_dwordx2 s[4:5], s[0:1], 72
        s_load_dwordx2 s[8:9], s[0:1], 56
        s_load_dwordx2 s[72:73], s[0:1], 64
        v_lshrrev_b32 v9, 6, v0
        v_and_b32 v{V_LANE}, 63, v0
        v_readfirstlane_b32 s{S_W}, v9
        s_getreg_b32 s47, hwreg(HW_REG_XCC_ID)
        s_and_b32 s47, s47, 15
        s_add_u32 s47, s47, 1
        v_lshlrev_b32 v{V_L16}, 4, v{V_LANE}
        v_lshlrev_b32 v{V_L8}, 3, v{V_LANE}
        v_and_b32 v9, 31, v{V_LANE}
        v_lshlrev_b32 v{V_S8}, 3, v9
        v_and_b32 v9, 15, v{V_LANE}
        v_lshlrev_b32 v{V_FLAG}, 2, v9
        s_and_b32 s40, s2, 7
        s_lshr_b32 s41, s2, 3
        s_lshl_b32 s{S_C}, s40, 1
        s_lshr_b32 s42, s41, 4
        s_add_u32 s{S_C}, s{S_C}, s42
        s_and_b32 s{S_M}, s41, 15
        s_mov_b32 s{S_L}, 0
        s_mov_b32 s{S_MODE}, 0
        s_mov_b32 s{S_STEP}, 0
        s_mov_b32 s{S_MODE + 2}, 0
        s_mov_b32 s{S_SLOT}, 0
        s_mov_b32 s{S_SLOT + 1}, {SLOT}
        s_mov_b32 s{S_SLOT + 2}, {2 * SLOT}
        s_mov_b32 s{S_SLOT + 3}, {3 * SLOT}
        s_lshl_b32 s{S_W8K}, s{S_W}, 13
        s_lshr_b32 s{S_R64}, s{S_M}, 3
        s_and_b32 s{S_CB}, s{S_M}, 7
        s_and_b32 s{S_RH}, s{S_W}, 1
        s_lshr_b32 s{S_KH}, s{S_W}, 1
        s_lshl_b32 s{S_SBW}, s{S_R64}, 1
        s_add_u32 s{S_SBW}, s{S_SBW}, s{S_RH}
        s_mul_i32 s{S_WQ}, s{S_M}, {3 * SLAB33}
        s_add_u32 s{S_WQ}, s{S_WQ}, {WQKV}
        s_lshl_b32 s{S_WO}, s{S_CB}, 16
        s_add_u32 s{S_WO}, s{S_WO}, {WO}
        s_mul_i32 s{S_W13}, s{S_M}, {7 * SLAB33}
        s_add_u32 s{S_W13}, s{S_W13}, {W13}
        s_mul_i32 s{S_W2}, s{S_CB}, {224 * 1024}
        s_add_u32 s{S_W2}, s{S_W2}, {W2}
        s_lshl_b32 s{S_XF}, s{S_C}, 17
        s_add_u32 s{S_XF}, s{S_XF}, {XF0}
        s_lshl_b32 s{S_ST}, s{S_C}, 14
        s_add_u32 s{S_ST}, s{S_ST}, {ST0}
        s_mov_b32 s{S_LB}, {LB(0)}
        s_lshl_b32 s{S_FLOFF}, s{S_C}, 7
        s_add_u32 s{S_FLOFF}, s{S_FLOFF}, {FL}
        v_mov_b32 v{MF + 2}, 0
        v_mov_b32 v{MF + 3}, 0
        v_mov_b32 v{ONES}, 0x3f803f80
        v_mov_b32 v{ONES + 1}, 0x3f803f80
        v_mov_b32 v{ONES + 2}, 0x3f803f80
        v_mov_b32 v{ONES + 3}, 0x3f803f80
        s_waitcnt lgkmcnt(0)
        s_and_b32 s5, s5, 0xffff
        s_mov_b32 s6, {WS_BYTES}
        s_mov_b32 s7, 0x20000
        s_and_b32 s9, s9, 0xffff
        s_mov_b32 s10, {2048 * 512 * 2}
        s_mov_b32 s11, 0x20000
        ''')
        for i in range(4): E.e(f'v_add_u32 v{V_SLOT + i}, s{S_SLOT + i}, v{V_L16}')
        L = E.label('reg')
        E.e(f'''
        s_cmp_lg_u32 s{S_W}, 0
        s_cbranch_scc1 {L}
        s_lshl_b32 s45, s{S_C}, 7
        s_lshl_b32 s46, s{S_M}, 2
        s_add_u32 s45, s45, s46
        s_add_u32 s45, s45, {REG}
        v_mov_b32 v10, s47
        v_mov_b32 v11, 0
        s_mov_b64 exec, 1
        buffer_store_dword v10, v11, s[4:7], s45 offen sc1
        s_mov_b64 exec, -1
        s_waitcnt vmcnt(0)
        {L}:
        s_mov_b32 s{S_MODE + 3}, s47
        ''')
        E.e(f'''
        s_lshl_b32 s44, s{S_SBW}, 15
        s_lshl_b32 s45, s{S_CB}, 2
        s_lshl_b32 s46, s{S_KH}, 1
        s_add_u32 s45, s45, s46
        s_lshl_b32 s45, s45, 10
        s_add_u32 s44, s44, s45
        s_add_u32 s44, s44, s{S_XF}
        ''')
        E.vmem(f'buffer_load_dwordx4 v[{RES}:{RES + 3}], v{V_L16}, s[4:7], s44 offen', 'res')
        E.vmem(f'buffer_load_dwordx4 v[{RES + 4}:{RES + 7}], v{V_L16}, s[4:7], s44 offen offset:1024', 'res')
        self.dma(0, S_WQ, 0, 33); self.dma(1, S_WQ, SLAB33, 33); self.dma(2, S_WQ, 2 * SLAB33, 33); self.dma(3, S_WO, 0, 32)
        E.wait_vm_all()
        E.barrier()
    def wfrag(self, idx): r = WF + 4 * (idx % 6); return r
    def phase_qkv(self):
        E = self.E; F = Fill(E)
        E.c('==== QKV ====')
        self.stats_loads()
        E.e(f's_lshl_b32 s44, s{S_W}, 15'); E.e(f's_add_u32 s44, s44, s{S_XF}')
        self.load_frags(32, 0, None, 'x')
        F.add(*self.stats_items(+1))
        F.add(f's_lshl_b32 s45, s{S_W}, 8', f's_add_u32 s45, s45, {L_RS}',
              f'v_lshrrev_b32 v{T}, 1, v{V_S8}', f'v_add_u32 v{T}, s45, v{T}',
              lambda: E.ds(f'ds_write_b32 v{T}, v{V_R}', 'rs'),
              lambda: E.ds(f'ds_write_b32 v{T}, v{V_C1} offset:128', 'rs'),
              f'v_lshrrev_b32 v{T + 1}, 5, v{V_LANE}', f'v_lshlrev_b32 v{T + 1}, 4, v{T + 1}', f'v_add_u32 v{T + 1}, s45, v{T + 1}')
        a_k, a_v, a_q = ACC
        vK, vV, vQ = V_SLOT + 0, V_SLOT + 1, V_SLOT + 2
        def rd(i):
            kb, j = divmod(i, 2)
            E.ds(f'ds_read_b128 v[{self.wfrag(i)}:{self.wfrag(i) + 3}], v{vK if j == 0 else vV} offset:{kb * 1024}', f'w{i}')
        for i in range(4): rd(i)
        for kb in range(33):
            if kb + 2 < 33: rd(2 * kb + 4); rd(2 * kb + 5)
            if kb < 32 and (kb % 2 == 0 or True): E.wait_vm(f'x{kb}')
            if kb == 32: F.flush(); E.e('s_nop 1')
            E.wait_lg(f'w{2 * kb + 1}')
            A = f'a[{4 * kb}:{4 * kb + 3}]' if kb < 32 else f'v[{MF}:{MF + 3}]'
            for j, acc in ((0, a_k), (1, a_v)):
                w = self.wfrag(2 * kb + j)
                C = '0' if kb == 0 else f'v[{acc}:{acc + 15}]'
                E.e(f'v_mfma_f32_32x32x16_bf16 v[{acc}:{acc + 15}], {A}, v[{w}:{w + 3}], {C}')
                if kb >= 2: F.pump(2)
        R, RL = T + 8, T + 24
        for i in range(4):
            E.ds(f'ds_read_b128 v[{R + 4 * i}:{R + 4 * i + 3}], v{T + 1} offset:{32 * i}', 'r')
            E.ds(f'ds_read_b128 v[{RL + 4 * i}:{RL + 4 * i + 3}], v{T + 1} offset:{128 + 32 * i}', 'r')
        E.e(f'v_mov_b32 v{T + 2}, {EPS_PHI:#x}')
        E.nop(8)
        E.wait_lg_all()
        PK, PV = T + 40, T + 48
        X1, X2 = T + 56, T + 64
        for h in range(2):
            rr = range(8 * h, 8 * h + 8)
            for r in rr: E.e(f'v_mul_f32 v{X2 + r % 8}, v{a_k + r}, v{RL + r}')
            for r in rr: E.e(f'v_fma_f32 v{X1 + r % 8}, v{a_k + r}, v{R + r}, v{T + 2}')
            for r in rr: E.e(f'v_exp_f32 v{X2 + r % 8}, v{X2 + r % 8} clamp')
            for r in rr: E.e(f'v_max_f32 v{X1 + r % 8}, v{X1 + r % 8}, v{T + 2}')
            for r in rr: E.e(f'v_add_f32 v{X1 + r % 8}, v{X1 + r % 8}, v{X2 + r % 8}')
            for r in range(0, 8, 2): E.e(f'v_cvt_pk_bf16_f32 v{PK + 4 * h + r // 2}, v{X1 + r}, v{X1 + r + 1}')
            for r in rr: E.e(f'v_mul_f32 v{X2 + r % 8}, v{a_v + r}, v{R + r}')
            for r in range(0, 8, 2): E.e(f'v_cvt_pk_bf16_f32 v{PV + 4 * h + r // 2}, v{X2 + r}, v{X2 + r + 1}')
        E.nop(2)
        D, D2 = a_k, a_v
        E.e(f'v_mfma_f32_32x32x16_bf16 v[{D}:{D + 15}], v[{PK}:{PK + 3}], v[{PV}:{PV + 3}], 0')
        E.e(f'v_mfma_f32_32x32x16_bf16 v[{D2}:{D2 + 15}], v[{PK}:{PK + 3}], v[{ONES}:{ONES + 3}], 0')
        E.e(f'v_mfma_f32_32x32x16_bf16 v[{D}:{D + 15}], v[{PK + 4}:{PK + 7}], v[{PV + 4}:{PV + 7}], v[{D}:{D + 15}]')
        E.e(f'v_mfma_f32_32x32x16_bf16 v[{D2}:{D2 + 15}], v[{PK + 4}:{PK + 7}], v[{ONES}:{ONES + 3}], v[{D2}:{D2 + 15}]')
        E.e(f'''
        s_mul_i32 s45, s{S_W}, 2304
        s_add_u32 s45, s45, {L_KVS}
        v_and_b32 v{T}, 15, v{V_LANE}
        v_lshrrev_b32 v{T + 3}, 5, v{V_LANE}
        v_lshlrev_b32 v{T + 4}, 4, v{T + 3}
        v_add_u32 v{T}, v{T}, v{T + 4}
        v_lshlrev_b32 v{T}, 5, v{T}
        v_and_b32 v{T + 4}, 16, v{V_LANE}
        v_lshlrev_b32 v{T + 5}, 6, v{T + 4}
        v_add_u32 v{T}, v{T}, v{T + 5}
        v_add_u32 v{T}, s45, v{T}
        v_cmp_eq_u32 vcc, 0, v{T + 4}
        v_lshlrev_b32 v{T + 3}, 5, v{T + 3}
        v_add_u32 v{T + 3}, s45, v{T + 3}
        s_nop 3
        ''')
        for r in range(8): E.e(f'v_cndmask_b32 v{X1 + r}, v{D + 8 + r}, v{D + r}, vcc')
        E.ds(f'ds_write_b128 v{T}, v[{X1}:{X1 + 3}]', 'kv')
        E.ds(f'ds_write_b128 v{T}, v[{X1 + 4}:{X1 + 7}] offset:16', 'kv')
        E.e('s_mov_b32 s60, 1'); E.e('s_mov_b32 s61, 1'); E.e('s_mov_b64 exec, s[60:61]')
        for q in range(4):
            E.ds(f'ds_write_b128 v{T + 3}, v[{D2 + 4 * q}:{D2 + 4 * q + 3}] offset:{2048 + (q // 2) * 64 + (q % 2) * 16}', 'kv')
        E.e('s_mov_b64 exec, -1')
        E.wait_lg_all()
        E.barrier()
        Lskip = E.label('kvp')
        E.e(f'''
        s_cmp_ge_u32 s{S_W}, 3
        s_cbranch_scc1 {Lskip}
        s_lshl_b32 s45, s{S_W}, 10
        v_add_u32 v{T}, s45, v{V_L16}
        v_add_u32 v{T + 1}, {L_KVS}, v{T}
        s_cmp_eq_u32 s{S_W}, 2
        s_cselect_b32 s60, 0xff, -1
        s_cselect_b32 s61, 0, -1
        s_mov_b64 exec, s[60:61]
        ds_read_b128 v[{X1}:{X1 + 3}], v{T + 1}
        ds_read_b128 v[{X1 + 4}:{X1 + 7}], v{T + 1} offset:2304
        ds_read_b128 v[{X2}:{X2 + 3}], v{T + 1} offset:4608
        ds_read_b128 v[{X2 + 4}:{X2 + 7}], v{T + 1} offset:6912
        s_mul_i32 s45, s{S_M}, {16 * KVP_STRIDE}
        s_mul_i32 s46, s{S_C}, {KVP_STRIDE}
        s_add_u32 s45, s45, s46
        s_add_u32 s45, s45, s{S_LB}
        s_add_u32 s45, s45, {KVP_}
        s_waitcnt lgkmcnt(0)
        ''')
        for j in range(4):
            E.e(f'v_add_f32 v{X1 + j}, v{X1 + j}, v{X1 + 4 + j}')
            E.e(f'v_add_f32 v{X2 + j}, v{X2 + j}, v{X2 + 4 + j}')
        for j in range(4): E.e(f'v_add_f32 v{X1 + j}, v{X1 + j}, v{X2 + j}')
        E.e(f'buffer_store_dwordx4 v[{X1}:{X1 + 3}], v{T}, s[4:7], s45 offen sc1')
        E.e('s_waitcnt vmcnt(0)')
        E.e('s_mov_b64 exec, -1')
        E.place(Lskip)
        E.barrier()
        L = E.label('fa')
        E.e(f'''
        s_lshl_b32 s48, s{S_L}, 4
        s_add_u32 s48, s48, s{S_M}
        s_lshl_b32 s48, s48, 7
        s_add_u32 s48, s48, {FA}
        s_cmp_lg_u32 s{S_W}, 0
        s_cbranch_scc1 {L}
        s_lshl_b32 s45, s{S_C}, 2
        s_add_u32 s45, s45, s48
        v_mov_b32 v{V_T0 + 1}, 1
        v_mov_b32 v{V_T0 + 2}, 0
        s_mov_b64 exec, 1
        buffer_store_dword v{V_T0 + 1}, v{V_T0 + 2}, s[4:7], s45 offen sc1
        s_mov_b64 exec, -1
        s_waitcnt vmcnt(0)
        {L}:
        ''')
        self.stamp(2)
        self.dma(4, S_WO, 32 * 1024, 32); self.dma(5, S_W13, 0, 33)
        def rq(kb): E.ds(f'ds_read_b128 v[{self.wfrag(kb)}:{self.wfrag(kb) + 3}], v{vQ} offset:{kb * 1024}', f'w{kb}')
        for kb in range(4): rq(kb)
        for kb in range(33):
            if kb + 4 < 33: rq(kb + 4)
            if kb % 2 == 0: E.wait_lg(f'w{min(kb + 1, 32)}')
            B = f'a[{4 * kb}:{4 * kb + 3}]' if kb < 32 else f'v[{MF}:{MF + 3}]'
            w = self.wfrag(kb); C = '0' if kb == 0 else f'v[{a_q}:{a_q + 15}]'
            E.e(f'v_mfma_f32_32x32x16_bf16 v[{a_q}:{a_q + 15}], v[{w}:{w + 3}], {B}, {C}')
        E.e(f'v_mov_b32 v{T + 2}, {EPS_PHI:#x}')
        E.nop(12)
        for h in range(2):
            rr = range(8 * h, 8 * h + 8)
            for r in rr: E.e(f'v_mul_f32 v{X2 + r % 8}, v{a_q + r}, v{V_C1}')
            for r in rr: E.e(f'v_fma_f32 v{X1 + r % 8}, v{a_q + r}, v{V_R}, v{T + 2}')
            for r in rr: E.e(f'v_exp_f32 v{X2 + r % 8}, v{X2 + r % 8} clamp')
            for r in rr: E.e(f'v_max_f32 v{X1 + r % 8}, v{X1 + r % 8}, v{T + 2}')
            for r in rr: E.e(f'v_add_f32 v{X1 + r % 8}, v{X1 + r % 8}, v{X2 + r % 8}')
            for r in range(0, 8, 2): E.e(f'v_cvt_pk_bf16_f32 v{PQ + 4 * h + r // 2}, v{X1 + r}, v{X1 + r + 1}')
        self.stamp(3)
        E.wait_vm_all(force=True)
        L = E.label('ga'); Lr = E.label('regchk')
        E.e(f'''
        s_cmp_lg_u32 s{S_W}, 0
        s_cbranch_scc1 {L}
        s_cmp_lg_u32 s{S_L}, 0
        s_cbranch_scc1 {Lr}
        s_lshl_b32 s45, s{S_C}, 7
        s_add_u32 s45, s45, {REG}
        s_mov_b32 s47, 1
        ''')
        self.poll(45, 47, 2)
        E.e(f'''
        v_cmp_ne_u32 vcc, s{S_MODE + 3}, v{V_T0}
        s_cmp_lg_u64 vcc, 0
        s_cselect_b32 s47, 1, 0
        v_mov_b32 v{V_T0 + 1}, s47
        v_mov_b32 v{V_T0 + 2}, {L_KVF + 2240}
        ds_write_b32 v{V_T0 + 2}, v{V_T0 + 1}
        s_waitcnt lgkmcnt(0)
        {Lr}:
        s_mov_b32 s47, 1
        ''')
        self.poll(48, 47, 3)
        E.place(L)
        E.barrier()
        Lm = E.label('mode')
        E.e(f'''
        s_cmp_lg_u32 s{S_L}, 0
        s_cbranch_scc1 {Lm}
        v_mov_b32 v{V_T0 + 2}, {L_KVF + 2240}
        ds_read_b32 v{V_T0 + 1}, v{V_T0 + 2}
        s_waitcnt lgkmcnt(0)
        v_readfirstlane_b32 s{S_MODE}, v{V_T0 + 1}
        {Lm}:
        ''')
        self.stamp(4)
        Lg = E.label('gat')
        E.e(f'''
        s_cmp_ge_u32 s{S_W}, 3
        s_cbranch_scc1 {Lg}
        s_lshl_b32 s45, s{S_W}, 10
        v_add_u32 v{T}, s45, v{V_L16}
        s_cmp_eq_u32 s{S_W}, 2
        s_cselect_b32 s60, 0xff, -1
        s_cselect_b32 s61, 0, -1
        s_mov_b64 exec, s[60:61]
        s_mul_i32 s45, s{S_M}, {16 * KVP_STRIDE}
        s_add_u32 s45, s45, s{S_LB}
        s_add_u32 s45, s45, {KVP_}
        ''')
        G = T + 72
        G = 140
        for c in range(16):
            E.e(f'buffer_load_dwordx4 v[{G + 4 * c}:{G + 4 * c + 3}], v{T}, s[4:7], s45 offen sc1')
            if c < 15: E.e(f's_add_u32 s45, s45, {KVP_STRIDE}')
        E.e(f'v_add_u32 v{T + 1}, {L_KVF}, v{T}')
        for half in range(2):
            E.e(f's_waitcnt vmcnt({8 if half == 0 else 0})')
            b0 = G + 32 * half
            for j in range(4):
                for st in (1, 2, 4):
                    pass
            for lv, (x, y) in enumerate(((0, 1), (2, 3), (4, 5), (6, 7), (0, 2), (4, 6), (0, 4))):
                for j in range(4): E.e(f'v_add_f32 v{b0 + 4 * x + j}, v{b0 + 4 * x + j}, v{b0 + 4 * y + j}')
        for j in range(4): E.e(f'v_add_f32 v{G + j}, v{G + j}, v{G + 32 + j}')
        E.e(f'ds_write_b128 v{T + 1}, v[{G}:{G + 3}]')
        E.e('s_waitcnt lgkmcnt(0)')
        E.e('s_mov_b64 exec, -1')
        E.place(Lg)
        E.barrier()
        E.e(f'''
        v_and_b32 v{T}, 15, v{V_LANE}
        v_lshrrev_b32 v{T + 3}, 5, v{V_LANE}
        v_lshlrev_b32 v{T + 4}, 4, v{T + 3}
        v_add_u32 v{T}, v{T}, v{T + 4}
        v_lshlrev_b32 v{T}, 5, v{T}
        v_lshlrev_b32 v{T + 3}, 5, v{T + 3}
        v_add_u32 v{T + 3}, 2048, v{T + 3}
        v_and_b32 v{T + 4}, 16, v{V_LANE}
        v_cmp_eq_u32 vcc, 0, v{T + 4}
        v_add_u32 v{T + 5}, 1024, v{T}
        v_add_u32 v{T + 6}, 64, v{T + 3}
        v_cndmask_b32 v{T}, v{T + 3}, v{T}, vcc
        v_cndmask_b32 v{T + 5}, v{T + 6}, v{T + 5}, vcc
        v_add_u32 v{T}, {L_KVF}, v{T}
        v_add_u32 v{T + 5}, {L_KVF}, v{T + 5}
        ''')
        for h, ad in ((0, T), (1, T + 5)):
            E.ds(f'ds_read_b128 v[{X1 + 8 * h}:{X1 + 8 * h + 3}], v{ad}', 'kz')
            E.ds(f'ds_read_b128 v[{X1 + 8 * h + 4}:{X1 + 8 * h + 7}], v{ad} offset:16', 'kz')
        E.wait_lg_all()
        KZ = PK
        for h in range(2):
            for r in range(4): E.e(f'v_cvt_pk_bf16_f32 v{KZ + 4 * h + r}, v{X1 + 8 * h + 2 * r}, v{X1 + 8 * h + 2 * r + 1}')
        E.nop(2)
        for h, acc in ((0, a_k), (1, a_v)):
            E.e(f'v_mfma_f32_32x32x16_bf16 v[{acc}:{acc + 15}], v[{KZ + 4 * h}:{KZ + 4 * h + 3}], v[{PQ + 4 * h}:{PQ + 4 * h + 3}], 0')
        E.e(f'''
        s_lshl_b32 s44, s{S_C}, 17
        s_lshl_b32 s45, s{S_W}, 15
        s_add_u32 s44, s44, s45
        s_lshl_b32 s45, s{S_M}, 11
        s_add_u32 s44, s44, s45
        s_add_u32 s44, s44, s{S_LB}
        v_mov_b32 v{T + 2}, {EPS_PHI:#x}
        ''')
        if OF_: E.e(f's_add_u32 s44, s44, {OF_}')
        E.nop(6)
        OFR = PV
        for h, acc in ((0, a_k), (1, a_v)):
            E.e(f'v_add_f32 v{T + h}, v{acc + 8}, v{T + 2}')
        for h in range(2): E.e(f'v_rcp_f32 v{T + h}, v{T + h}')
        E.e('s_nop 0')
        for h, acc in ((0, a_k), (1, a_v)):
            for r in range(8): E.e(f'v_mul_f32 v{X1 + 8 * h + r}, v{acc + r}, v{T + h}')
        for h in range(2):
            for r in range(4): E.e(f'v_cvt_pk_bf16_f32 v{OFR + 4 * h + r}, v{X1 + 8 * h + 2 * r}, v{X1 + 8 * h + 2 * r + 1}')
        self.store_act([f'buffer_store_dwordx4 v[{OFR}:{OFR + 3}], v{V_L16}, s[4:7], s44 offen',
                        f'buffer_store_dwordx4 v[{OFR + 4}:{OFR + 7}], v{V_L16}, s[4:7], s44 offen offset:1024'])
    def phase_proj(self, name, nsteps, act_base_imm, act_stride_sb, p0, src_sreg, dma_plan, out_x, out_st, last_check):
        E = self.E; F = Fill(E)
        E.c(f'==== {name} ====')
        accM, accO = ACC[0], ACC[1]
        E.e(f'''
        s_lshl_b32 s44, s{S_C}, 2
        s_add_u32 s44, s44, s{S_SBW}
        s_mul_i32 s44, s44, {act_stride_sb}
        s_mul_i32 s45, s{S_KH}, {nsteps * 1024}
        s_add_u32 s44, s44, s45
        s_add_u32 s44, s44, s{S_LB}
        ''')
        if act_base_imm: E.e(f's_add_u32 s44, s44, {act_base_imm}')
        E.e('s_mov_b32 s50, s44')
        n0 = min(nsteps, 32)
        self.load_frags(n0, 0, None, 'h')
        E.e(f'''
        s_mul_i32 s45, s{S_KH}, 3072
        s_lshl_b32 s46, s{S_KH}, 10
        s_add_u32 s46, s46, 1024
        ''')
        vM, vO = T, T + 1
        def setaddr(p):
            E.e(f'v_add_u32 v{vM}, s45, v{V_SLOT + p % 4}')
            E.e(f'v_add_u32 v{vO}, s46, v{V_SLOT + p % 4}')
        pairs = [(T, T + 1), (T + 2, T + 3)]
        def setpair(sl):
            a, b = pairs[sl % 2]; p = p0 + sl
            return [f'v_add_u32 v{a}, s45, v{V_SLOT + p % 4}', f'v_add_u32 v{b}, s46, v{V_SLOT + p % 4}']
        for s in setpair(0): E.e(s)
        for (pp, sreg, imm, nfr) in dma_plan.get('start', []): self.dma(pp, sreg, imm, nfr)
        E.e(f's_mul_i32 s45, s{S_KH}, 3072'); E.e(f's_lshl_b32 s46, s{S_KH}, 10'); E.e('s_add_u32 s46, s46, 1024')
        nsl = nsteps // 8
        def rd(i):
            sl, ii = divmod(i, 8); a, b = pairs[sl % 2]
            E.ds(f'ds_read_b128 v[{self.wfrag(2 * i)}:{self.wfrag(2 * i) + 3}], v{a} offset:{ii * 4096}', f'w{2 * i}')
            E.ds(f'ds_read_b128 v[{self.wfrag(2 * i + 1)}:{self.wfrag(2 * i + 1) + 3}], v{b} offset:{ii * 4096}', f'w{2 * i + 1}')
        rd(0); rd(1)
        for i in range(nsteps):
            sl, ii = divmod(i, 8)
            if ii == 0 and sl + 1 < nsl:
                for s in setpair(sl + 1): E.e(s)
            if ii == 6 and sl + 1 < nsl:
                need = f'slab{p0 + sl + 1}'
                if need in E.vm:
                    E.wait_vm(need)
                E.e('s_barrier')
                for (pp, sreg, imm, nfr) in dma_plan.get(sl, []): self.dma(pp, sreg, imm, nfr)
                lo = 32 + 8 * sl
                if lo < nsteps:
                    E.e(f's_add_u32 s44, s50, {lo * 1024}')
                    self.load_frags(8, 4 * lo, None, 'h', first=lo)
                E.e(f's_mul_i32 s45, s{S_KH}, 3072'); E.e(f's_lshl_b32 s46, s{S_KH}, 10'); E.e('s_add_u32 s46, s46, 1024')
            if i + 2 < nsteps: rd(i + 2)
            E.wait_vm(f'h{i}')
            E.wait_lg(f'w{2 * i + 1}')
            for j, acc in ((0, accM), (1, accO)):
                w = self.wfrag(2 * i + j); C = '0' if i == 0 else f'v[{acc}:{acc + 15}]'
                E.e(f'v_mfma_f32_32x32x16_bf16 v[{acc}:{acc + 15}], v[{w}:{w + 3}], a[{4 * i}:{4 * i + 3}], {C}')
        E.e(f'''
        s_lshl_b32 s45, s{S_W}, 12
        s_add_u32 s45, s45, {L_XCH}
        v_add_u32 v{T}, s45, v{V_L16}
        s_xor_b32 s46, s{S_W}, 2
        s_lshl_b32 s46, s46, 12
        s_add_u32 s46, s46, {L_XCH}
        v_add_u32 v{T + 1}, s46, v{V_L16}
        ''')
        E.nop(6)
        for q in range(4): E.ds(f'ds_write_b128 v{T}, v[{accO + 4 * q}:{accO + 4 * q + 3}] offset:{1024 * q}', 'x')
        E.wait_lg_all()
        E.barrier()
        X = ACC[2]
        for q in range(4): E.ds(f'ds_read_b128 v[{X + 4 * q}:{X + 4 * q + 3}], v{T + 1} offset:{1024 * q}', 'x')
        for (pp, sreg, imm, nfr) in dma_plan.get('end', []): self.dma(pp, sreg, imm, nfr)
        U = T + 8
        for i in range(8):
            E.e(f'v_lshlrev_b32 v{U + 2 * i}, 16, v{RES + i}')
            E.e(f'v_and_b32 v{U + 2 * i + 1}, 0xffff0000, v{RES + i}')
        for r in range(16): E.e(f'v_add_f32 v{U + r}, v{U + r}, v{accM + r}')
        E.wait_lg_all()
        for r in range(16): E.e(f'v_add_f32 v{U + r}, v{U + r}, v{X + r}')
        for i in range(8): E.e(f'v_cvt_pk_bf16_f32 v{RES + i}, v{U + 2 * i}, v{U + 2 * i + 1}')
        E.e(f'''
        s_lshl_b32 s44, s{S_C}, 2
        s_add_u32 s44, s44, s{S_SBW}
        s_lshl_b32 s47, s44, 12
        s_lshl_b32 s44, s44, 15
        s_lshl_b32 s45, s{S_CB}, 2
        s_lshl_b32 s46, s{S_KH}, 1
        s_add_u32 s45, s45, s46
        s_lshl_b32 s45, s45, 10
        s_add_u32 s44, s44, s45
        s_add_u32 s44, s44, s{S_LB}
        s_add_u32 s44, s44, {out_x}
        s_lshl_b32 s45, s{S_CB}, 1
        s_add_u32 s45, s45, s{S_KH}
        s_lshl_b32 s45, s45, 8
        s_add_u32 s47, s47, s45
        s_add_u32 s47, s47, s{S_LB}
        s_add_u32 s47, s47, {out_st}
        ''')
        Lfin = E.label('fin'); Ldone = E.label('pdone')
        if last_check:
            E.e(f's_cmp_eq_u32 s{S_L}, 1'); E.e(f's_cbranch_scc1 {Lfin}')
        self.store_act([f'buffer_store_dwordx4 v[{RES}:{RES + 3}], v{V_L16}, s[4:7], s44 offen',
                        f'buffer_store_dwordx4 v[{RES + 4}:{RES + 7}], v{V_L16}, s[4:7], s44 offen offset:1024'])
        stats32(E, [U + r for r in range(16)], (T + 2, T + 3, T + 4), T + 6, T + 7)
        self.store_act([f'buffer_store_dwordx2 v[{T + 6}:{T + 7}], v{V_S8}, s[4:7], s47 offen'])
        if last_check:
            E.e(f's_branch {Ldone}')
            E.place(Lfin)
            E.e(f'''
            s_lshl_b32 s44, s{S_C}, 2
            s_add_u32 s44, s44, s{S_SBW}
            s_lshl_b32 s44, s44, 15
            s_lshl_b32 s45, s{S_CB}, 7
            s_add_u32 s44, s44, s45
            s_lshl_b32 s45, s{S_KH}, 6
            s_add_u32 s44, s44, s45
            v_and_b32 v{T}, 31, v{V_LANE}
            v_lshlrev_b32 v{T}, 10, v{T}
            v_lshrrev_b32 v{T + 1}, 5, v{V_LANE}
            v_lshlrev_b32 v{T + 1}, 4, v{T + 1}
            v_add_u32 v{T}, v{T}, v{T + 1}
            v_permlane32_swap_b32 v{RES}, v{RES + 2}
            v_permlane32_swap_b32 v{RES + 1}, v{RES + 3}
            v_permlane32_swap_b32 v{RES + 4}, v{RES + 6}
            v_permlane32_swap_b32 v{RES + 5}, v{RES + 7}
            s_nop 1
            buffer_store_dwordx4 v[{RES}:{RES + 3}], v{T}, s[8:11], s44 offen
            buffer_store_dwordx4 v[{RES + 4}:{RES + 7}], v{T}, s[8:11], s44 offen offset:32
            s_branch L_k1_end
            ''')
            E.place(Ldone)
    def h_epilogue_items(self, acc, t):
        E = self.E; P, X = T + 8, T + 16; H = T + 24
        it = []
        for r in range(8): it.append(f'v_mul_f32 v{X + r}, v{acc + r}, v{V_C1}')
        for r in range(8): it.append(f'v_mul_f32 v{P + r}, v{acc + r}, v{acc + 8 + r}')
        for r in range(8): it.append(f'v_exp_f32 v{X + r}, v{X + r}')
        for r in range(8): it.append(f'v_mul_f32 v{P + r}, v{P + r}, v{V_C2}')
        for r in range(8): it.append(f'v_add_f32 v{X + r}, 1.0, v{X + r}')
        for r in range(8): it.append(f'v_rcp_f32 v{X + r}, v{X + r}')
        it.append(f's_add_u32 s51, s50, {t * 1024}')
        for r in range(8): it.append(f'v_mul_f32 v{P + r}, v{P + r}, v{X + r}')
        for r in range(4): it.append(f'v_cvt_pk_bf16_f32 v{H + r}, v{P + 2 * r}, v{P + 2 * r + 1}')
        def st():
            self.store_act([f'buffer_store_dwordx4 v[{H}:{H + 3}], v{V_L16}, s[4:7], s51 offen'])
        it.append(st)
        return it
    def phase_ffn1(self):
        E = self.E; F = Fill(E)
        E.c('==== gate/up ====')
        self.stats_loads()
        E.e(f's_lshl_b32 s44, s{S_W}, 15'); E.e(f's_add_u32 s44, s44, s{S_XF}')
        self.load_frags(32, 0, None, 'x')
        self.dma(7, S_W13, 2 * SLAB33, 33); self.dma(8, S_W13, 3 * SLAB33, 33)
        E.e(f'''
        s_lshl_b32 s50, s{S_C}, 2
        s_add_u32 s50, s50, s{S_W}
        s_mul_i32 s50, s50, {112 * 1024}
        s_mul_i32 s51, s{S_M}, {7 * 1024}
        s_add_u32 s50, s50, s51
        s_add_u32 s50, s50, s{S_LB}
        s_add_u32 s50, s50, {HF_}
        ''')
        F.add(*self.stats_items(-1))
        v0, v1 = V_SLOT + 5 % 4, V_SLOT + 6 % 4
        def rd(i):
            kb, j = divmod(i, 2)
            E.ds(f'ds_read_b128 v[{self.wfrag(i)}:{self.wfrag(i) + 3}], v{v0 if j == 0 else v1} offset:{kb * 1024}', f'w{i}')
        for i in range(4): rd(i)
        for kb in range(33):
            if kb + 2 < 33: rd(2 * kb + 4); rd(2 * kb + 5)
            if kb < 32: E.wait_vm(f'x{kb}')
            if kb == 32: F.flush(); E.e('s_nop 1')
            E.wait_lg(f'w{2 * kb + 1}')
            B = f'a[{4 * kb}:{4 * kb + 3}]' if kb < 32 else f'v[{MF}:{MF + 3}]'
            for j in range(2):
                acc = ACC[j]; w = self.wfrag(2 * kb + j); C = '0' if kb == 0 else f'v[{acc}:{acc + 15}]'
                E.e(f'v_mfma_f32_32x32x16_bf16 v[{acc}:{acc + 15}], v[{w}:{w + 3}], {B}, {C}')
                if kb >= 2: F.pump(2)
        pend = [(0, ACC[0]), (1, ACC[1])]
        cnt = 0
        for t in range(2, 7):
            p = 5 + t; acc = ACC[t % 3]; vs = V_SLOT + p % 4
            if f'slab{p}' in E.vm: E.wait_vm(f'slab{p}')
            E.wait_lg_all()
            E.e('s_barrier')
            if t == 2:
                F.add(*self.dma_items(9, S_W13, 4 * SLAB33, 33));
                dm2 = self.dma_items(10, S_W13, 5 * SLAB33, 33)
            elif t == 3: dm2 = self.dma_items(11, S_W13, 6 * SLAB33, 33)
            else: dm2 = self.dma_items(12 + (t - 4), S_W2, (t - 4) * 32 * 1024, 32)
            def rq(kb): E.ds(f'ds_read_b128 v[{self.wfrag(kb)}:{self.wfrag(kb) + 3}], v{vs} offset:{kb * 1024}', f'w{kb}')
            for kb in range(4): rq(kb)
            tt, aa = pend.pop(0)
            ep = self.h_epilogue_items(aa, tt)
            if t == 2:
                tt2, aa2 = pend.pop(0)
                ep += self.h_epilogue_items(aa2, tt2)
            F.add(*dm2)
            F.add(*ep)
            per = -(-len(F.q) // 30)
            for kb in range(33):
                if kb + 4 < 33: rq(kb + 4)
                if kb % 2 == 0: E.wait_lg(f'w{min(kb + 1, 32)}')
                B = f'a[{4 * kb}:{4 * kb + 3}]' if kb < 32 else f'v[{MF}:{MF + 3}]'
                w = self.wfrag(kb); C = '0' if kb == 0 else f'v[{acc}:{acc + 15}]'
                E.e(f'v_mfma_f32_32x32x16_bf16 v[{acc}:{acc + 15}], v[{w}:{w + 3}], {B}, {C}')
                if kb >= 1: F.pump(per)
            F.flush()
            pend.append((t, acc))
        E.wait_lg_all()
        E.e('s_barrier')
        self.dma(15, S_W2, 3 * 32 * 1024, 32)
        E.nop(8)
        tt, aa = pend.pop(0)
        F.add(*self.h_epilogue_items(aa, tt)); F.flush()
    def gen(self):
        E = self.E
        self.init()
        E.place('L_k1_layer')
        self.stamp(0)
        self.phase_qkv()
        self.stamp(5)
        if self.stop == 'qkv': E.wait_vm_all(force=True); E.e('s_branch L_k1_end')
        self.hop_local()
        self.stamp(6)
        self.phase_proj('wo', 16, OF_, 32 * 1024, 3, S_WO,
                        {'start': [(6, S_W13, SLAB33, 33)]}, X1F_, ST1_, False)
        self.stamp(7)
        if self.stop == 'wo': E.wait_vm_all(force=True); E.e('s_branch L_k1_end')
        self.hop_local()
        self.stamp(8)
        E.e(f's_lshl_b32 s{S_XF}, s{S_C}, 17'); E.e(f's_add_u32 s{S_XF}, s{S_XF}, s{S_LB}'); E.e(f's_add_u32 s{S_XF}, s{S_XF}, {X1F_}')
        E.e(f's_lshl_b32 s{S_ST}, s{S_C}, 14'); E.e(f's_add_u32 s{S_ST}, s{S_ST}, s{S_LB}'); E.e(f's_add_u32 s{S_ST}, s{S_ST}, {ST1_}')
        self.phase_ffn1()
        self.stamp(9)
        if self.stop == 'ffn1': E.wait_vm_all(force=True); E.e('s_branch L_k1_end')
        self.hop_local()
        self.stamp(10)
        nx = [(19, S_WQ, 0, 33), (20, S_WQ, SLAB33, 33), (21, S_WQ, 2 * SLAB33, 33), (22, S_WO, 0, 32)]
        plan = {0: [], 1: [(16, S_W2, 4 * 32768, 32)], 2: [(17, S_W2, 5 * 32768, 32)], 3: [(18, S_W2, 6 * 32768, 32)],
                4: [nx[0]], 5: [nx[1]], 'end': [nx[2], nx[3]]}
        self.phase_proj('w2', 56, HF_, 112 * 1024, 12, S_W2, plan, X2F_, ST2_, True)
        self.stamp(11)
        if self.stop == 'w2': E.wait_vm_all(force=True); E.e('s_branch L_k1_end')
        self.hop_local()
        E.e(f's_lshl_b32 s{S_XF}, s{S_C}, 17'); E.e(f's_add_u32 s{S_XF}, s{S_XF}, s{S_LB}'); E.e(f's_add_u32 s{S_XF}, s{S_XF}, {X2F_}')
        E.e(f's_lshl_b32 s{S_ST}, s{S_C}, 14'); E.e(f's_add_u32 s{S_ST}, s{S_ST}, s{S_LB}'); E.e(f's_add_u32 s{S_ST}, s{S_ST}, {ST2_}')
        E.e(f's_add_u32 s{S_LB}, s{S_LB}, {LB(1) - LB(0)}')
        E.e(f's_add_u32 s{S_L}, s{S_L}, 1')
        E.e(f's_mov_b32 s40, s{S_SLOT + 3}')
        for i in (3, 2, 1): E.e(f's_mov_b32 s{S_SLOT + i}, s{S_SLOT + i - 1}')
        E.e(f's_mov_b32 s{S_SLOT}, s40')
        for i in range(4): E.e(f'v_add_u32 v{V_SLOT + i}, s{S_SLOT + i}, v{V_L16}')
        E.e('s_branch L_k1_layer')
        E.place('L_k1_end')
        E.e('s_endpgm')
        return E

def gen_k1(name='main_kernel', **kw):
    return K1(name, **kw).gen()
```

```python
FL   = 0x0000
REG  = 0x1000
FA   = 0x2000
ZERO_BYTES = 0x4000
SLAB33 = 33 * 1024
WQKV = 0x100000
WO   = 0x300000
W13  = 0x400000
W2   = 0x800000
XF0  = 0xA00000
ST0  = 0xC00000
def LB(l): return 0x1000000 + l * 0x1000000
OF_, X1F_, ST1_, X2F_, ST2_, KVP_, HF_ = 0, 0x200000, 0x400000, 0x500000, 0x700000, 0x740000, 0x800000
KVP_STRIDE = 2304
WS_BYTES = 0x10000000
EPOCH = 0x7000
PF2 = 0x8000
AUGP = 0x20000
```

```python
import sys
sys.path.insert(0, 'gen')
from build import build_file
from k0 import gen_k0
from k1 import gen_k1, LDS_BYTES
def make(path, **kw):
    s = build_file([gen_k0(), gen_k1(**kw)], [('prep_kernel', (256,1,1), (256,1,1), 34816), ('main_kernel', (256,1,1), (256,1,1), LDS_BYTES)])
    open(path, 'w').write(s)
    return path
if __name__ == '__main__':
    make(sys.argv[1] if len(sys.argv) > 1 else 'interleave_layers__linear_attn_block__glu_gated_swiglu__prompt.s')
```

```python
import re

class Em:
    def __init__(self, name, vgpr=256, agpr=256, sgpr=100):
        self.name = name; self.lines = []; self.vgpr = vgpr; self.agpr = agpr; self.sgpr = sgpr
        self.vm = []; self.lg = []; self._lab = 0; self._inj = None; self._every = 1; self._cnt = 0
    def e(self, s):
        for l in s.strip('\n').split('\n'):
            l = l.strip()
            if l:
                self.lines.append(l)
                if self._inj and l.startswith('v_') and not l.startswith(('v_cmp', 'v_readfirstlane', 'v_mfma')):
                    self._cnt += 1
                    if self._cnt >= self._every and self._inj:
                        self._cnt = 0
                        q = self._inj; self._inj = None
                        q.pop(0)()
                        self._inj = q
    def inject(self, queue, every):
        self._inj = queue; self._every = every; self._cnt = 0
    def inject_off(self, flush=True):
        q = self._inj; self._inj = None
        if flush and q:
            while q: q.pop(0)()
    def c(self, s): self.lines.append('; ' + s)
    def label(self, base='L'):
        self._lab += 1
        return '%s_%s_%d' % (base, self.name.replace('_kernel', '')[-8:], self._lab)
    def place(self, lab): self.lines.append(lab + ':')
    def vmem(self, s, tag):
        self.e(s); self.vm.append(tag)
        assert len(self.vm) <= 63, ('vmcnt overflow', len(self.vm))
    def vm_n(self, tag):
        idx = max(i for i, t in enumerate(self.vm) if t == tag)
        return len(self.vm) - 1 - idx, idx
    def wait_vm(self, tag, extra=''):
        if tag not in self.vm: return False
        n, idx = self.vm_n(tag)
        self.e('s_waitcnt vmcnt(%d)%s' % (n, extra))
        self.vm = self.vm[idx + 1:]
        return True
    def wait_vm_all(self, force=False):
        if self.vm or force: self.e('s_waitcnt vmcnt(0)')
        self.vm = []
    def ds(self, s, tag):
        self.e(s); self.lg.append(tag)
        assert len(self.lg) <= 15, ('lgkmcnt overflow', len(self.lg))
    def wait_lg(self, tag):
        if tag not in self.lg: return False
        idx = max(i for i, t in enumerate(self.lg) if t == tag)
        n = len(self.lg) - 1 - idx
        self.e('s_waitcnt lgkmcnt(%d)' % n)
        self.lg = self.lg[idx + 1:]
        return True
    def wait_lg_all(self, force=False):
        if self.lg or force: self.e('s_waitcnt lgkmcnt(0)')
        self.lg = []
    def barrier(self):
        assert not self.lg, 'barrier with LDS ops outstanding: %s' % self.lg
        self.e('s_barrier')
    def nop(self, n):
        while n > 0:
            k = min(n, 16); self.e('s_nop %d' % (k - 1)); n -= k
    def text(self):
        out = ['.globl %s' % self.name, '.p2align 8', '.type %s,@function' % self.name, '%s:' % self.name]
        for l in self.lines:
            if l.endswith(':') or l.startswith(';') or l.startswith('.'): out.append(l)
            else: out.append('  ' + l)
        return '\n'.join(out) + '\n'
    def desc(self):
        acc_off = (self.vgpr + 3) // 4 * 4
        nfv = acc_off + self.agpr if self.agpr else self.vgpr
        return '\n'.join(['.amdhsa_kernel %s' % self.name,
            '  .amdhsa_next_free_vgpr %d' % nfv, '  .amdhsa_next_free_sgpr %d' % self.sgpr,
            '  .amdhsa_accum_offset %d' % acc_off, '  .amdhsa_group_segment_fixed_size 0',
            '  .amdhsa_kernarg_size 80', '  .amdhsa_user_sgpr_count 2',
            '  .amdhsa_user_sgpr_kernarg_segment_ptr 1', '  .amdhsa_system_sgpr_workgroup_id_x 1',
            '  .amdhsa_float_denorm_mode_32 3', '.end_amdhsa_kernel']) + '\n'

_REG = re.compile(r'^(-|abs\()?([vas])(\d+)\)?$|^(-)?([vas])\[(\d+):(\d+)\]$')
def regs(tok):
    tok = tok.strip()
    if tok in ('vcc', 'vcc_lo', 'vcc_hi'): return {('s', 'vcc')}
    if tok == 'exec': return {('s', 'exec')}
    if tok == 'm0': return {('s', 'm0')}
    m = _REG.match(tok)
    if not m: return set()
    if m.group(2): return {(m.group(2), int(m.group(3)))}
    return {(m.group(5), i) for i in range(int(m.group(6)), int(m.group(7)) + 1)}

TRANS = ('v_exp_f32', 'v_log_f32', 'v_rcp_f32', 'v_rsq_f32', 'v_sqrt_f32', 'v_sin_f32', 'v_cos_f32', 'v_rcp_iflag_f32')
class I:
    def __init__(self, line):
        self.line = line
        body = line.split(';')[0].strip()
        p = body.split(None, 1)
        self.op = p[0]
        rest = p[1] if len(p) > 1 else ''
        ops = [o.strip() for o in rest.split(',')] if rest else []
        if ops:
            last = ops[-1].split()
            ops[-1] = last[0] if last else ''
            self.mods = last[1:]
        else: self.mods = []
        self.ops = ops
        op = self.op
        self.kind = 'other'; self.defs = set(); self.uses = set(); self.states = 1
        R = [regs(o) for o in ops]
        if op == 's_nop': self.states = int(ops[0]) + 1; self.kind = 'nop'
        elif op.startswith('v_mfma'):
            self.kind = 'mfma'; self.defs = R[0]; self.A = R[1]; self.B = R[2]; self.C = R[3]; self.uses = R[1] | R[2] | R[3]
        elif op.startswith('v_cmp'):
            self.kind = 'valu'; self.defs = R[0]; self.uses = set().union(*R[1:])
            if op.startswith('v_cmpx'): self.defs = self.defs | {('s', 'exec')}
        elif op in ('v_readfirstlane_b32', 'v_readlane_b32'):
            self.kind = 'valu'; self.defs = R[0]; self.uses = set().union(*R[1:]); self.readlane = True
        elif op.startswith('v_permlane'):
            self.kind = 'valu'; self.defs = R[0] | R[1]; self.uses = R[0] | R[1]; self.perm = True
        elif op.startswith('v_'):
            self.kind = 'valu'; self.defs = R[0]; self.uses = set().union(*R[1:]) if len(R) > 1 else set()
            if op.startswith(('v_fmac', 'v_dot2c', 'v_mac')): self.uses |= R[0]
            if op.startswith('v_cndmask') and len(R) == 3: self.uses |= {('s', 'vcc')}
            if op.startswith('v_cndmask') and op.endswith('_e32'): self.uses |= {('s', 'vcc')}
            if '_co_' in op: self.defs = R[0] | R[1]; self.uses = set().union(*R[2:])
            self.trans = op.replace('_e32', '').replace('_e64', '') in TRANS
        elif op.startswith(('buffer_', 'global_')):
            self.kind = 'vmem'
            if 'lds' in self.mods or '_lds_' in op:
                self.uses = set().union(*R) | {('s', 'm0')}; self.ldsdma = True
            elif '_load' in op: self.defs = R[0]; self.uses = set().union(*R[1:])
            elif '_atomic' in op and 'sc0' in self.mods: self.defs = R[0]; self.uses = set().union(*R[1:])
            else: self.uses = set().union(*R) if R else set(); self.store = True
        elif op.startswith('ds_'):
            self.kind = 'ds'
            if op.startswith('ds_read') or op.startswith('ds_bpermute') or op.startswith('ds_swizzle'):
                self.defs = R[0]; self.uses = set().union(*R[1:])
            else: self.uses = set().union(*R)
        elif op.startswith('s_'):
            self.kind = 'salu'
            if op.startswith(('s_cmp', 's_cbranch', 's_branch', 's_waitcnt', 's_barrier', 's_endpgm', 's_sleep', 's_setprio', 's_bitcmp')):
                self.uses = set().union(*R) if R else set()
            else:
                self.defs = R[0] if R else set(); self.uses = set().union(*R[1:]) if len(R) > 1 else set()
                if 'saveexec' in op: self.defs |= {('s', 'exec')}
    def wide_store(self):
        return getattr(self, 'store', False) and (self.op.endswith('x4') or self.op.endswith('x3'))

def check_hazards(lines, name=''):
    ins = []
    for l in lines:
        b = l.split(';')[0].strip()
        if not b or b.endswith(':') or b.startswith('.'): continue
        ins.append(I(b))
    errs = []
    W = 24
    for j, c in enumerate(ins):
        dist = 0
        for i in range(j - 1, max(-1, j - W - 1), -1):
            p = ins[i]
            def need(n, why):
                if dist < n: errs.append('%s: need %d states (have %d) [%s]\n    %s\n    %s' % (name, n, dist, why, p.line, c.line))
            vdefs = {r for r in p.defs if r[0] in 'va'}
            sdefs = {r for r in p.defs if r[0] == 's'}
            if p.kind == 'valu':
                if c.kind == 'mfma' and vdefs & c.uses: need(2, 'VALU->MFMA operand')
                if c.kind == 'mfma' and ('s', 'exec') in p.defs: need(4, 'VALU exec->MFMA')
                if c.kind == 'vmem' and sdefs & c.uses: need(5, 'VALU sgpr->VMEM')
                if c.kind == 'valu' and (sdefs & c.uses) and not getattr(c, 'readlane', False): need(2, 'VALU sgpr->VALU const')
                if c.kind == 'valu' and getattr(c, 'readlane', False) and vdefs & c.uses: need(1, 'VALU->readlane')
                if c.kind == 'valu' and getattr(c, 'readlane', False) and sdefs & c.uses: need(4, 'VALU sgpr->readlane sel')
                if c.kind == 'valu' and getattr(c, 'perm', False) and vdefs & c.uses: need(2, 'VALU->permlane')
                if getattr(p, 'trans', False) and c.kind == 'valu' and not getattr(c, 'trans', False) and vdefs & c.uses: need(1, 'trans->VALU')
                if getattr(p, 'trans', False) and c.kind in ('mfma',) and vdefs & c.uses: need(2, 'trans->mfma')
                if c.kind == 'valu' and any('dpp' in m or 'row_' in m for m in c.mods) and vdefs & c.uses: need(2, 'VALU->DPP')
            if p.kind == 'mfma':
                D = p.defs
                if c.kind == 'mfma':
                    if D & (c.A | c.B): need(12, 'MFMA D->A/B')
                    if D & c.C and c.C != D: need(10, 'MFMA D->partial C')
                    if D & c.defs and c.C != D and not (D & c.C): need(12, 'MFMA D->D WAW (conservative)')
                elif c.kind in ('valu',) and D & (c.uses | c.defs): need(12, 'MFMA D->VALU')
                elif c.kind in ('vmem', 'ds') and D & (c.uses | c.defs): need(12, 'MFMA D->VMEM/DS')
                if c.kind == 'valu' and p.C & c.defs and not (D & c.defs): need(7, 'MFMA C WAR')
            if p.kind == 'vmem' and p.wide_store():
                data = regs(p.ops[0]) if p.op.startswith('buffer_') else regs(p.ops[1])
                if c.kind == 'valu' and data & c.defs: need(2, 'store data WAR')
                elif c.kind in ('ds', 'vmem', 'mfma') and data & c.defs: need(1, 'store data WAR')
            if p.kind == 'salu' and ('s', 'm0') in p.defs and getattr(c, 'ldsdma', False): need(1, 'M0->LDS DMA')
            dist += p.states
            if dist >= 21: break
    return errs
```

```python
from emit import *
from layout import *

def stats32(E, X, tmp, out_sum, out_m2):
    a, b, c, d = tmp
    acc = [out_sum, a, b, c]
    for j in range(4): E.e(f'v_add_f32 v{acc[j]}, v{X[j]}, v{X[4 + j]}')
    for j in range(4): E.e(f'v_add_f32 v{acc[j]}, v{acc[j]}, v{X[8 + j]}')
    for j in range(4): E.e(f'v_add_f32 v{acc[j]}, v{acc[j]}, v{X[12 + j]}')
    E.e(f'v_add_f32 v{out_sum}, v{out_sum}, v{a}')
    E.e(f'v_add_f32 v{b}, v{b}, v{c}')
    E.e(f's_nop 0')
    E.e(f'v_add_f32 v{out_sum}, v{out_sum}, v{b}')
    E.e(f's_nop 0')
    E.e(f'v_mov_b32 v{a}, v{out_sum}')
    E.e(f's_nop 1')
    E.e(f'v_permlane32_swap_b32 v{out_sum}, v{a}')
    E.e(f's_nop 0')
    E.e(f'v_add_f32 v{out_sum}, v{out_sum}, v{a}')
    E.e(f's_nop 0')
    E.e(f'v_mul_f32 v{d}, 0xbd000000, v{out_sum}')
    E.e(f's_nop 0')
    for i in range(16): E.e(f'v_add_f32 v{X[i]}, v{X[i]}, v{d}')
    m = [out_m2, a, b, c]
    for j in range(4): E.e(f'v_mul_f32 v{m[j]}, v{X[j]}, v{X[j]}')
    for k in range(1, 4):
        for j in range(4): E.e(f'v_fmac_f32 v{m[j]}, v{X[4 * k + j]}, v{X[4 * k + j]}')
    E.e(f'v_add_f32 v{out_m2}, v{out_m2}, v{a}')
    E.e(f'v_add_f32 v{b}, v{b}, v{c}')
    E.e(f's_nop 0')
    E.e(f'v_add_f32 v{out_m2}, v{out_m2}, v{b}')
    E.e(f's_nop 0')
    E.e(f'v_mov_b32 v{a}, v{out_m2}')
    E.e(f's_nop 1')
    E.e(f'v_permlane32_swap_b32 v{out_m2}, v{a}')
    E.e(f's_nop 0')
    E.e(f'v_add_f32 v{out_m2}, v{out_m2}, v{a}')

def gen_k0(name='prep_kernel'):
    E = Em(name, vgpr=128, agpr=0, sgpr=96)
    E.e(f'''
    s_cmp_ge_u32 s2, 256
    s_cbranch_scc1 L_k0_end
    s_load_dwordx4 s[20:23], s[0:1], 0      ; x, wqkv
    s_load_dwordx2 s[24:25], s[0:1], 16     ; wo
    s_load_dwordx4 s[28:31], s[0:1], 32     ; w1, w3
    s_load_dwordx2 s[26:27], s[0:1], 48     ; w2
    s_load_dwordx2 s[4:5], s[0:1], 72       ; ws
    v_lshrrev_b32 v2, 6, v0
    v_and_b32 v0, 63, v0                    ; lane
    v_readfirstlane_b32 s33, v2             ; wave
    v_lshlrev_b32 v1, 4, v0                 ; lane*16
    s_waitcnt lgkmcnt(0)
    s_mov_b32 s6, {WS_BYTES}
    s_mov_b32 s7, 0x20000
    s_and_b32 s5, s5, 0xffff
    s_mov_b32 s16, s20
    s_and_b32 s17, s21, 0xffff
    s_mov_b32 s18, {2048*512*2}
    s_mov_b32 s19, 0x20000
    ''')
    E.c('x tile: c = wg>>4, r64 = (wg>>3)&1, cb = wg&7 ; wave: rh = w&1, t = w>>1')
    E.e('''
    s_lshr_b32 s34, s2, 3
    s_and_b32 s35, s2, 7           ; cb
    s_and_b32 s36, s33, 1          ; rh
    s_lshr_b32 s37, s33, 1         ; t
    s_lshl_b32 s38, s34, 1
    s_add_u32 s38, s38, s36
    s_lshl_b32 s39, s38, 15
    s_lshl_b32 s40, s35, 7         ; cb*128 B
    s_add_u32 s39, s39, s40
    s_lshl_b32 s40, s37, 6         ; t*64 B
    s_add_u32 s39, s39, s40
    v_and_b32 v2, 31, v0
    v_lshlrev_b32 v2, 10, v2       ; s*1024
    v_lshrrev_b32 v3, 5, v0
    v_lshlrev_b32 v3, 3, v3        ; hf*8
    v_add_u32 v2, v2, v3
    ''')
    XR = 8
    for i in range(4):
        E.vmem(f'buffer_load_dwordx2 v[{XR+2*i}:{XR+2*i+1}], v2, s[16:19], s39 offen offset:{16*i}', 'x')
    E.c('weight job decode -> srcA s[8:11], srcB s[12:15], s41 stride, s42 colA, s43 colB, s44 kb0(wave), s45 nfr, s46 dst0, s47 dstep, s48 aug flag, s49 aug dst')
    Lq, L13, Lo, L2, Lnone, Ljob = 'L_k0_jq', 'L_k0_j13', 'L_k0_jo', 'L_k0_j2', 'L_k0_none', 'L_k0_job'
    E.e(f'''
    s_mov_b32 s11, 0x20000
    s_mov_b32 s15, 0x20000
    s_mov_b32 s8, s22
    s_and_b32 s9, s23, 0xffff
    s_mov_b32 s10, {512*1536*2}
    s_mov_b32 s12, s8
    s_mov_b32 s13, s9
    s_mov_b32 s14, s10
    s_mov_b32 s45, 8
    s_mov_b32 s47, 1024
    s_mov_b32 s48, 1
    s_lshl_b32 s44, s33, 3         ; kb0 = 8*w
    s_cmp_ge_u32 s2, 240
    s_cbranch_scc1 {Lnone}
    s_cmp_ge_u32 s2, 176
    s_cbranch_scc1 {L2}
    s_cmp_ge_u32 s2, 160
    s_cbranch_scc1 {Lo}
    s_cmp_ge_u32 s2, 48
    s_cbranch_scc1 {L13}
    {Lq}:
    s_mul_i32 s50, s2, 43691
    s_lshr_b32 s50, s50, 17
    s_mul_i32 s51, s50, 3
    s_sub_u32 s51, s2, s51         ; part 0:k 1:v 2:q
    s_add_u32 s52, s51, 1
    s_cmp_eq_u32 s51, 2
    s_cselect_b32 s52, 0, s52
    s_lshl_b32 s52, s52, 10        ; *512*2 bytes
    s_lshl_b32 s53, s50, 6
    s_add_u32 s42, s52, s53
    s_add_u32 s43, s42, 32
    s_mov_b32 s41, 3072
    s_mul_i32 s49, s2, {SLAB33}
    s_add_u32 s49, s49, {WQKV}
    s_branch L_k0_typeA
    {L13}:
    s_sub_u32 s50, s2, 48          ; j = fg*7+t
    s_lshl_b32 s42, s50, 5
    s_mov_b32 s43, s42
    s_mov_b32 s41, 3584
    s_mov_b32 s8, s28
    s_and_b32 s9, s29, 0xffff
    s_mov_b32 s10, {512*1792*2}
    s_mov_b32 s12, s30
    s_and_b32 s13, s31, 0xffff
    s_mov_b32 s14, {512*1792*2}
    s_mul_i32 s49, s50, {SLAB33}
    s_add_u32 s49, s49, {W13}
    L_k0_typeA:
    s_lshl_b32 s46, s44, 10
    s_add_u32 s46, s46, s49
    s_add_u32 s49, s49, {32*1024}
    s_branch {Ljob}
    {Lo}:
    s_sub_u32 s50, s2, 160         ; j: cb = j>>1, t = j&1
    s_lshl_b32 s42, s50, 6
    s_add_u32 s43, s42, 32
    s_mov_b32 s41, 1024
    s_mov_b32 s8, s24
    s_and_b32 s9, s25, 0xffff
    s_mov_b32 s10, {512*512*2}
    s_mov_b32 s12, s8
    s_mov_b32 s13, s9
    s_mov_b32 s14, s10
    s_mov_b32 s48, 0
    s_mov_b32 s47, 4096
    s_lshr_b32 s51, s50, 1         ; cb
    s_and_b32 s52, s50, 1          ; t
    s_lshl_b32 s46, s51, 16
    s_add_u32 s46, s46, {WO}
    s_and_b32 s53, s33, 1
    s_lshl_b32 s53, s53, 5         ; (8*(w&1))*4
    s_lshr_b32 s54, s33, 1
    s_lshl_b32 s54, s54, 1         ; kh*2
    s_add_u32 s53, s53, s54
    s_add_u32 s53, s53, s52
    s_lshl_b32 s53, s53, 10
    s_add_u32 s46, s46, s53
    s_branch {Ljob}
    {L2}:
    s_sub_u32 s50, s2, 176         ; j: cb = j>>3, t = (j>>2)&1, q = j&3
    s_lshr_b32 s51, s50, 2         ; cb*2+t
    s_lshl_b32 s42, s51, 6
    s_add_u32 s43, s42, 32
    s_mov_b32 s41, 1024
    s_mov_b32 s8, s26
    s_and_b32 s9, s27, 0xffff
    s_mov_b32 s10, {1792*512*2}
    s_mov_b32 s12, s8
    s_mov_b32 s13, s9
    s_mov_b32 s14, s10
    s_mov_b32 s48, 0
    s_mov_b32 s47, 4096
    s_mov_b32 s45, 7
    s_and_b32 s52, s50, 3          ; q
    s_mul_i32 s44, s52, 28
    s_mul_i32 s53, s33, 7
    s_add_u32 s44, s44, s53        ; kb0 = 28q + 7w
    s_lshr_b32 s54, s52, 1         ; kh
    s_mul_i32 s55, s54, 56
    s_sub_u32 s55, s44, s55
    s_lshl_b32 s55, s55, 2
    s_lshl_b32 s54, s54, 1
    s_add_u32 s55, s55, s54
    s_and_b32 s54, s51, 1
    s_add_u32 s55, s55, s54        ; idx0
    s_lshl_b32 s55, s55, 10
    s_lshr_b32 s54, s51, 1         ; cb
    s_mul_i32 s54, s54, {224*1024}
    s_add_u32 s46, s54, s55
    s_add_u32 s46, s46, {W2}
    {Ljob}:
    ''')
    E.e('''
    v_lshrrev_b32 v4, 2, v0
    v_mul_lo_u32 v4, v4, s41
    v_and_b32 v5, 1, v0
    v_lshlrev_b32 v5, 4, v5
    v_add_u32 v4, v4, v5
    v_add_u32 v5, s43, v4
    v_add_u32 v4, s42, v4
    s_lshl_b32 s56, s41, 4         ; 16 rows
    s_mul_i32 s57, s44, s56
    s_lshl_b32 s58, s33, 13
    s_mov_b32 s60, 0x33333333
    s_mov_b32 s61, 0x33333333
    s_mov_b32 s62, 0xcccccccc
    s_mov_b32 s63, 0xcccccccc
    ''')
    for (vo, srd, m) in ((4, 's[8:11]', 's[60:61]'), (5, 's[12:15]', 's[62:63]')):
        E.e(f's_mov_b64 exec, {m}')
        E.e('s_mov_b32 s59, s57')
        for f in range(8):
            if f == 7:
                E.e('s_cmp_eq_u32 s45, 7'); E.e(f's_cbranch_scc1 L_k0_skip{vo}')
            E.e(f's_add_u32 m0, s58, {f*1024}')
            E.e('s_nop 0')
            E.vmem(f'buffer_load_dwordx4 v{vo}, {srd}, s59 offen lds', 'w')
            E.e('s_add_u32 s59, s59, s56')
        E.e(f'L_k0_skip{vo}:')
    E.e('s_mov_b64 exec, -1')
    E.e('''
    v_lshrrev_b32 v6, 5, v0
    v_lshlrev_b32 v6, 2, v6
    v_and_b32 v7, 15, v0
    v_lshrrev_b32 v7, 2, v7
    v_add_u32 v6, v6, v7
    v_lshlrev_b32 v6, 6, v6
    v_lshrrev_b32 v7, 4, v0
    v_and_b32 v7, 1, v7
    v_lshlrev_b32 v7, 5, v7
    v_add_u32 v6, v6, v7
    v_and_b32 v7, 3, v0
    v_lshlrev_b32 v7, 3, v7
    v_add_u32 v6, v6, v7
    v_add_u32 v6, s58, v6
    v_mov_b32 v20, 0x3f803f80
    v_mov_b32 v21, 0x3f803f80
    v_mov_b32 v22, 0x3f803f80
    v_mov_b32 v23, 0x3f803f80
    ''')
    E.e('s_waitcnt vmcnt(0)'); E.vm = []
    W = 64
    for f in range(8):
        E.ds(f'ds_read_b64_tr_b16 v[{W+4*f}:{W+4*f+1}], v6 offset:{f*1024}', f'w{f}') if f < 7 else None
        E.ds(f'ds_read_b64_tr_b16 v[{W+4*f+2}:{W+4*f+3}], v6 offset:{f*1024+512}', f'w{f}') if f < 7 else None
    E.wait_lg_all()
    for f in range(7):
        E.e(f'buffer_store_dwordx4 v[{W+4*f}:{W+4*f+3}], v1, s[4:7], s46 offen sc1')
        E.e('s_add_u32 s46, s46, s47')
        E.e(f'v_mfma_f32_32x32x16_bf16 v[32:47], v[20:23], v[{W+4*f}:{W+4*f+3}], ' + ('0' if f == 0 else 'v[32:47]'))
    E.e('s_cmp_eq_u32 s45, 7')
    E.e('s_cbranch_scc1 L_k0_no8')
    E.e(f'ds_read_b64_tr_b16 v[{W+28}:{W+29}], v6 offset:{7*1024}')
    E.e(f'ds_read_b64_tr_b16 v[{W+30}:{W+31}], v6 offset:{7*1024+512}')
    E.e('s_waitcnt lgkmcnt(0)')
    E.e(f'buffer_store_dwordx4 v[{W+28}:{W+31}], v1, s[4:7], s46 offen sc1')
    E.e(f'v_mfma_f32_32x32x16_bf16 v[32:47], v[20:23], v[{W+28}:{W+31}], v[32:47]')
    E.e('L_k0_no8:')
    E.e('''
    s_nop 15
    v_lshlrev_b32 v7, 2, v0
    s_lshl_b32 s59, s33, 8
    v_add_u32 v24, s59, v7
    v_add_u32 v24, 32768, v24
    ds_write_b32 v24, v32
    s_waitcnt lgkmcnt(0)
    s_barrier
    s_cmp_eq_u32 s48, 0
    s_cbranch_scc1 L_k0_none2
    s_cmp_lg_u32 s33, 0
    s_cbranch_scc1 L_k0_none2
    v_add_u32 v24, 32768, v7
    ds_read_b32 v25, v24
    ds_read_b32 v26, v24 offset:256
    ds_read_b32 v27, v24 offset:512
    ds_read_b32 v28, v24 offset:768
    s_waitcnt lgkmcnt(0)
    v_add_f32 v25, v25, v26
    v_add_f32 v27, v27, v28
    v_add_f32 v25, v25, v27
    v_cvt_pk_bf16_f32 v26, v25, v25
    v_lshlrev_b32 v26, 16, v26
    v_sub_f32 v26, v25, v26
    v_cvt_pk_bf16_f32 v28, v25, v26
    v_cmp_gt_u32 vcc, 32, v0
    s_nop 1
    v_cndmask_b32 v28, 0, v28, vcc
    v_mov_b32 v30, 0
    v_mov_b32 v31, 0
    v_mov_b32 v29, v28
    buffer_store_dwordx4 v[28:31], v1, s[4:7], s49 offen sc1
    s_branch L_k0_none2
    L_k0_none:
    ''')
    E.e(f'''
    s_cmp_lg_u32 s2, 255
    s_cbranch_scc1 L_k0_none2
    v_mov_b32 v28, 0
    v_mov_b32 v29, 0
    v_mov_b32 v30, 0
    v_mov_b32 v31, 0
    s_lshl_b32 s59, s33, 12
    ''')
    for i in range(4):
        E.e(f'buffer_store_dwordx4 v[28:31], v1, s[4:7], s59 offen offset:{1024*i} sc1')
    E.e('L_k0_none2:')
    E.e('s_waitcnt vmcnt(0)'); E.vm = []
    E.e(f'''
    s_lshl_b32 s59, s38, 15
    s_lshl_b32 s40, s35, 2
    s_lshl_b32 s50, s37, 1
    s_add_u32 s40, s40, s50
    s_lshl_b32 s40, s40, 10
    s_add_u32 s59, s59, s40
    s_add_u32 s59, s59, {XF0}
    buffer_store_dwordx4 v[8:11], v1, s[4:7], s59 offen sc1
    buffer_store_dwordx4 v[12:15], v1, s[4:7], s59 offen offset:1024 sc1
    ''')
    X = list(range(96, 112))
    for i in range(8):
        E.e(f'v_lshlrev_b32 v{X[2*i]}, 16, v{XR+i}')
        E.e(f'v_and_b32 v{X[2*i+1]}, 0xffff0000, v{XR+i}')
    stats32(E, X, (112, 113, 114, 115), 116, 117)
    E.e(f'''
    s_lshl_b32 s59, s38, 12        ; blk*4096
    s_lshr_b32 s40, s35, 1
    s_lshl_b32 s40, s40, 10        ; (cb>>1)*1024
    s_add_u32 s59, s59, s40
    s_and_b32 s40, s35, 1
    s_lshl_b32 s40, s40, 9         ; (cb&1)*512
    s_add_u32 s59, s59, s40
    s_lshl_b32 s40, s37, 3         ; t*8
    s_add_u32 s59, s59, s40
    s_add_u32 s59, s59, {ST0}
    v_and_b32 v2, 31, v0
    v_lshlrev_b32 v2, 4, v2
    buffer_store_dwordx2 v[116:117], v2, s[4:7], s59 offen sc1
    L_k0_end:
    s_endpgm
    ''')
    return E
```

```python
from emit import *
from layout import *
from k0 import stats32

SLOT = SLAB33
MISC = 4 * SLOT
L_RS = MISC
L_KVS = MISC + 1024
L_KVF = MISC + 10240
L_XCH = MISC + 1024
LDS_BYTES = 163840
TS_OFF = 0x3000000

S_W, S_C, S_M, S_L, S_MODE, S_STEP = 12, 13, 14, 15, 16, 17
S_SLOT = 20
S_W8K = 24
S_WQ, S_WO, S_W13, S_W2 = 25, 26, 27, 28
S_XF, S_ST, S_LB = 29, 30, 31
S_RH, S_KH, S_R64, S_CB, S_SBW = 32, 33, 34, 35, 36
S_FLOFF = 37
S_T = 40
S_TSN = 64
V_LANE, V_L16 = 0, 1
V_SLOT = 2
V_L8 = 6
V_S8 = 7
V_FLAG = 8
V_T0 = 9
ACC = [16, 32, 48]
WF = 208
A_RSW, A_RSR, A_KVW, A_ZW, A_RED, A_KZ0, A_KZ1, A_XW, A_XR, A_FA = range(64, 74)
AUG = 74
AQ = (84, 204)
S_XD, S_SD, S_OD, S_HD, S_KP, S_KG, S_FAW, S_FAR, S_OUT = range(82, 91)
RES = 88
WF8 = 208
PQ = 96
V_R, V_C1, V_C2 = 104, 105, 106
MF = 108
ONES = 112
ST = 116
T = 132
V_PF = 250
LOG2E = 0x3fb8aa3b
NLOG2E = 0xbfb8aa3b
EPS_PHI = 0x358637bd
EPS_LN = 0x3727c5ac

DEFAULT_PF = {}

class Fill:
    def __init__(self, E): self.E = E; self.q = []
    def add(self, *items):
        for it in items:
            if isinstance(it, str):
                for l in it.strip('\n').split('\n'):
                    l = l.strip()
                    if l: self.q.append(l)
            else: self.q.append(it)
    def pump(self, n):
        while n > 0 and self.q:
            it = self.q.pop(0)
            if isinstance(it, str): self.E.e(it)
            else: it()
            n -= 1
    def flush(self): self.pump(10 ** 9)

class K1:
    def __init__(self, name, stop=None, ts=False, spin=1 << 22, nodma=False, noact=False, tiles_ts=False, ts_wave=0, **opt):
        self.E = Em(name, vgpr=256, agpr=256, sgpr=100)
        self.stop = stop; self.ts = ts; self.spin = spin; self.nodma = nodma; self.noact = noact; self.tiles_ts = tiles_ts; self._prev = None; self._last_idx = None; self.ts_wave = ts_wave; self.opt = opt
    def stamp(self, idx):
        if not self.ts: return
        E = self.E
        E.e('s_waitcnt lgkmcnt(0)'); E.lg = []
        E.e(f'v_writelane_b32 v255, s66, {self._prev}')
        E.e('s_memtime s[66:67]')
        self._prev = idx
    def stamp_flush(self):
        if not self.ts: return
        E = self.E; L = E.label('tsf')
        E.e('s_memrealtime s[80:81]')
        E.e('s_waitcnt lgkmcnt(0)')
        E.e(f'v_writelane_b32 v255, s66, {self._prev}')
        E.e('v_writelane_b32 v255, s76, 40'); E.e('v_writelane_b32 v255, s80, 41'); E.e('v_writelane_b32 v255, s78, 42')
        E.e(f's_cmp_lg_u32 s{S_W}, {self.ts_wave}'); E.e(f's_cbranch_scc1 {L}')
        E.e(f's_lshl_b32 s68, s2, 9'); E.e(f's_add_u32 s68, s68, {TS_OFF}')
        E.e(f'v_lshlrev_b32 v{V_T0}, 2, v{V_LANE}')
        E.e(f'buffer_store_dword v254, v{V_T0}, s[4:7], s68 offen')
        E.e(f'buffer_store_dword v255, v{V_T0}, s[4:7], s68 offen offset:256')
        E.place(L)
    def dma(self, p, src_sreg, src_imm, nfr):
        E = self.E; n = 8
        if self.nodma: return
        a, b = S_T, S_T + 1
        E.e(f's_add_u32 s{a}, s{S_SLOT + p % 4}, s{S_W8K}')
        E.e(f's_add_u32 s{b}, s{src_sreg}, s{S_W8K}')
        if src_imm: E.e(f's_add_u32 s{b}, s{b}, {src_imm}')
        for g in range(0, n, 4):
            if g == 0: E.e(f's_mov_b32 m0, s{a}')
            else:
                E.e(f's_add_u32 m0, s{a}, {g * 1024}')
                E.e(f's_add_u32 s{b}, s{b}, 4096')
            if g == 0: E.e('s_nop 0')
            for k in range(min(4, n - g)):
                E.vmem(f'buffer_load_dwordx4 v{V_L16}, s[4:7], s{b} offen offset:{k * 1024} lds', f'slab{p}')
    def dma_items(self, p, src_sreg, src_imm, nfr):
        E = self.E; n = 8
        if self.nodma: return []
        a, b = S_T + 2, S_T + 3
        it = [f's_add_u32 s{a}, s{S_SLOT + p % 4}, s{S_W8K}', f's_add_u32 s{b}, s{src_sreg}, s{S_W8K}']
        if src_imm: it.append(f's_add_u32 s{b}, s{b}, {src_imm}')
        for g in range(0, n, 4):
            if g == 0: it.append(f's_mov_b32 m0, s{a}'); it.append('s_nop 0')
            else:
                it.append(f's_add_u32 m0, s{a}, {g * 1024}'); it.append(f's_add_u32 s{b}, s{b}, 4096')
            for k in range(min(4, n - g)):
                it.append((lambda k=k: E.vmem(f'buffer_load_dwordx4 v{V_L16}, s[4:7], s{b} offen offset:{k * 1024} lds', f'slab{p}')))
        return it
    def dma_units(self, p, src_sreg, src_imm, nfr):
        E = self.E; n = 8
        if self.nodma: return []
        a, b = S_T + 2, S_T + 3
        us = []
        for k in range(n):
            def u(k=k):
                if k == 0:
                    E.e(f's_add_u32 s{a}, s{S_SLOT + p % 4}, s{S_W8K}'); E.e(f's_add_u32 s{b}, s{src_sreg}, s{S_W8K}')
                    if src_imm: E.e(f's_add_u32 s{b}, s{b}, {src_imm}')
                    E.e(f's_mov_b32 m0, s{a}'); E.e('s_nop 0')
                elif k % 4 == 0:
                    E.e(f's_add_u32 m0, s{a}, {k * 1024}'); E.e(f's_add_u32 s{b}, s{b}, 4096')
                E.vmem(f'buffer_load_dwordx4 v{V_L16}, s[4:7], s{b} offen offset:{(k % 4) * 1024} lds', f'slab{p}')
            u.tag = f'slab{p}'
            us.append(u)
        return us
    def pf_units(self, src_sreg, src_imm, nbytes, parts):
        E = self.E
        if self.nodma or not self.opt.get('pf', True): return []
        piece = nbytes // parts; per_wave = piece // 4; lines = -(-per_wave // 128)
        assert lines <= 64
        def u():
            idx = 55 if parts == 2 else 56
            E.e(f's_mul_i32 s58, s{idx}, {piece}')
            E.e(f's_mul_i32 s59, s{S_W}, {per_wave}')
            E.e(f's_add_u32 s58, s58, s59')
            E.e(f's_add_u32 s58, s58, s{src_sreg}')
            if src_imm: E.e(f's_add_u32 s58, s58, {src_imm}')
            E.e(f'v_min_u32 v{V_PF}, {lines - 1}, v{V_LANE}')
            E.e(f'v_lshlrev_b32 v{V_PF}, 7, v{V_PF}')
            E.vmem(f'buffer_load_dword v{V_PF + 1}, v{V_PF}, s[4:7], s58 offen', 'pf')
        u.tag = 'pf'
        return [u]
    def pf_site(self, site):
        plan = self.opt.get('pfplan', DEFAULT_PF)
        us = []
        for nm in plan.get(site, []):
            k, i = nm[0], int(nm[1:]) if len(nm) > 1 else 0
            if k == 'T': us += self.pf_units(S_W13, i * SLAB33, SLAB33, 2)
            elif k == 'W': us += self.pf_units(S_W2, i * 32768, 32768, 4)
            elif k == 'O': us += self.pf_units(S_WO, i * 32768, 32768, 4)
            elif k == 'A': us += self.pf_units(S_WQ, i * SLAB33, SLAB33, 2)
        return us
    def frag_units(self, n, areg0, tag, first=0, sreg=44, base=None):
        E = self.E
        if self.noact: return []
        us = []
        for i in range(n):
            def u(i=i):
                if i == 0 and base: base()
                if i and i % 4 == 0: E.e(f's_add_u32 s{sreg}, s{sreg}, 4096')
                E.vmem(f'buffer_load_dwordx4 a[{areg0 + 4 * i}:{areg0 + 4 * i + 3}], v{V_L16}, s[4:7], s{sreg} offen offset:{(i % 4) * 1024} sc1', f'{tag}{first + i}')
            us.append(u)
        return us
    def stats_units(self):
        E = self.E; us = []
        for i in range(4):
            def u(i=i):
                if i == 0: E.e(f's_lshl_b32 s52, s{S_W}, 12'); E.e(f's_add_u32 s52, s52, s{S_ST}')
                E.vmem(f'buffer_load_dwordx4 v[{ST + 4 * i}:{ST + 4 * i + 3}], v{V_L16}, s[4:7], s52 offen offset:{1024 * i} sc1', 'stats')
            us.append(u)
        return us
    def load_frags(self, n, areg0, soff_setup, tag, first=0):
        E = self.E
        if self.noact: return
        for i in range(n):
            if i and i % 4 == 0: E.e('s_add_u32 s44, s44, 4096')
            E.vmem(f'buffer_load_dwordx4 a[{areg0 + 4 * i}:{areg0 + 4 * i + 3}], v{V_L16}, s[4:7], s44 offen offset:{(i % 4) * 1024} sc1', f'{tag}{first + i}')
    def store_act(self, items, kind='x'):
        E = self.E
        if kind not in self.opt.get('plain', 'x'):
            for s in items: E.vmem(s + ' sc1', 'st')
            return
        Ls = E.label('st'); Ld = E.label('sd')
        E.e(f's_cmp_lg_u32 s{S_MODE}, 0'); E.e(f's_cbranch_scc1 {Ls}')
        for s in items: E.e(s)
        E.e(f's_branch {Ld}'); E.place(Ls)
        for s in items: E.e(s + ' sc1')
        E.place(Ld)
        for s in items: E.vm.append('st')
    def poll(self, off_sreg, val_sreg, code):
        E = self.E; Lp = E.label('poll'); Lx = E.label('pollx'); Lt = E.label('pollt')
        E.e(f'''
        s_mov_b32 s46, 0
        {Lp}:
        s_add_u32 s46, s46, 1
        s_cmp_gt_u32 s46, {self.spin}
        s_cbranch_scc1 {Lt}
        buffer_load_dword v{V_T0}, v{V_FLAG}, s[4:7], s{off_sreg} offen sc1
        s_waitcnt vmcnt(0)
        v_cmp_gt_u32 vcc, s{val_sreg}, v{V_T0}
        s_cbranch_vccnz {Lp}
        s_branch {Lx}
        {Lt}:
        s_mov_b32 s{S_MODE + 2}, {code}
        {Lx}:
        ''')
    def hop_local(self):
        E = self.E; L = E.label('hop'); Ls = E.label('fs'); Ld = E.label('fd')
        if 'st' in E.vm: E.wait_vm('st')
        else: E.wait_vm_all(force=True)
        self._left = list(E.vm)
        E.wait_lg_all()
        E.barrier()
        E.e(f'''
        s_add_u32 s{S_STEP}, s{S_STEP}, 1
        s_cmp_lg_u32 s{S_W}, 0
        s_cbranch_scc1 {L}
        s_lshl_b32 s45, s{S_M}, 2
        s_add_u32 s45, s45, s{S_FLOFF}
        v_mov_b32 v{V_T0 + 1}, s{S_STEP}
        v_mov_b32 v{V_T0 + 2}, 0
        s_mov_b64 exec, 1
        s_cmp_lg_u32 s{S_MODE}, 0
        s_cbranch_scc1 {Ls}
        buffer_store_dword v{V_T0 + 1}, v{V_T0 + 2}, s[4:7], s45 offen
        s_branch {Ld}
        {Ls}:
        buffer_store_dword v{V_T0 + 1}, v{V_T0 + 2}, s[4:7], s45 offen sc1
        {Ld}:
        s_mov_b64 exec, -1
        ''')
        self.poll(S_FLOFF, S_STEP, 1)
        E.place(L)
        E.barrier()
    def stats_loads(self):
        E = self.E
        E.e(f's_lshl_b32 s44, s{S_W}, 12')
        E.e(f's_add_u32 s44, s44, s{S_ST}')
        for i in range(8):
            E.vmem(f'buffer_load_dwordx2 v[{ST + 2 * i}:{ST + 2 * i + 1}], v{V_L8}, s[4:7], s44 offen offset:{512 * i} sc1', 'stats')
    def stats_items(self, c1_sign):
        E = self.E; a, b, c, d = T, T + 1, T + 2, T + 3
        it = [lambda: E.wait_vm('stats')]
        it += [f'v_add_f32 v{a}, v{ST}, v{ST + 2}', f'v_add_f32 v{b}, v{ST + 4}, v{ST + 6}',
               f'v_add_f32 v{c}, v{ST + 1}, v{ST + 3}', f'v_add_f32 v{d}, v{ST + 5}, v{ST + 7}']
        for i in (4, 6):
            it += [f'v_add_f32 v{a}, v{a}, v{ST + 2 * i}', f'v_add_f32 v{b}, v{b}, v{ST + 2 * i + 2}',
                   f'v_add_f32 v{c}, v{c}, v{ST + 2 * i + 1}', f'v_add_f32 v{d}, v{d}, v{ST + 2 * i + 3}']
        it += [f'v_add_f32 v{a}, v{a}, v{b}', f'v_add_f32 v{c}, v{c}, v{d}', f'v_mov_b32 v{b}, v{a}', 's_nop 1',
               f'v_permlane32_swap_b32 v{a}, v{b}', f'v_add_f32 v{a}, v{a}, v{b}',
               f'v_mul_f32 v{a}, 0x3b000000, v{a}']
        it += [f'v_mov_b32 v{T + 4}, 0x3d000000']
        for i in range(8):
            it += [f'v_fma_f32 v{ST + 2 * i}, v{ST + 2 * i}, v{T + 4}, -v{a}']
        it += [f'v_mul_f32 v{b}, v{ST}, v{ST}', f'v_mul_f32 v{d}, v{ST + 2}, v{ST + 2}']
        for i in range(2, 8, 2):
            it += [f'v_fmac_f32 v{b}, v{ST + 2 * i}, v{ST + 2 * i}', f'v_fmac_f32 v{d}, v{ST + 2 * i + 2}, v{ST + 2 * i + 2}']
        it += [f'v_add_f32 v{b}, v{b}, v{d}', f'v_mov_b32 v{T + 4}, 0x42000000',
               f'v_fmac_f32 v{c}, v{T + 4}, v{b}',
               f'v_mov_b32 v{b}, v{c}', 's_nop 1' if False else f'v_sub_f32 v{a}, 0, v{a}', 's_nop 0',
               f'v_permlane32_swap_b32 v{c}, v{b}', f'v_add_f32 v{c}, v{c}, v{b}',
               f'v_mov_b32 v{d}, {EPS_LN:#x}',
               f'v_fmac_f32 v{d}, 0x3b000000, v{c}',
               f'v_cvt_pk_bf16_f32 v{MF}, v{a}, v{a}',
               f'v_rsq_f32 v{V_R}, v{d}',
               f'v_lshlrev_b32 v{b}, 16, v{MF}',
               f'v_sub_f32 v{b}, v{a}, v{b}',
               f'v_mul_f32 v{V_C1}, {(LOG2E if c1_sign > 0 else NLOG2E):#x}, v{V_R}',
               f'v_mov_b32 v{V_C2}, v{d}',
               f'v_cvt_pk_bf16_f32 v{MF + 1}, v{b}, v{b}']
        return it
    def init(self):
        E = self.E
        E.e(f'''
        s_cmp_ge_u32 s2, 256
        s_cbranch_scc1 L_k1_end
        {'s_memrealtime s[76:77]' if self.ts else ''}
        {'s_memtime s[78:79]' if self.ts else ''}
        s_load_dwordx2 s[4:5], s[0:1], 72
        s_load_dwordx2 s[8:9], s[0:1], 56
        s_load_dwordx2 s[72:73], s[0:1], 64
        v_lshrrev_b32 v9, 6, v0
        v_and_b32 v{V_LANE}, 63, v0
        v_readfirstlane_b32 s{S_W}, v9
        s_getreg_b32 s47, hwreg(HW_REG_XCC_ID)
        s_and_b32 s47, s47, 15
        s_add_u32 s{S_MODE + 3}, s47, 1
        v_lshlrev_b32 v{V_L16}, 4, v{V_LANE}
        v_lshlrev_b32 v{V_L8}, 3, v{V_LANE}
        v_and_b32 v9, 31, v{V_LANE}
        v_lshlrev_b32 v{V_S8}, 3, v9
        v_and_b32 v9, 15, v{V_LANE}
        v_lshlrev_b32 v{V_FLAG}, 2, v9
        s_and_b32 s40, s2, 7
        s_lshr_b32 s41, s2, 3
        s_lshl_b32 s{S_C}, s40, 1
        s_lshr_b32 s42, s41, 4
        s_add_u32 s{S_C}, s{S_C}, s42
        s_and_b32 s{S_M}, s41, 15
        s_mov_b32 s{S_L}, 0
        s_mov_b32 s{S_MODE}, 0
        s_mov_b32 s{S_STEP}, 0
        s_mov_b32 s{S_MODE + 2}, 0
        s_mov_b32 s{S_SLOT}, 0
        s_mov_b32 s{S_SLOT + 1}, {SLOT}
        s_mov_b32 s{S_SLOT + 2}, {2 * SLOT}
        s_mov_b32 s{S_SLOT + 3}, {3 * SLOT}
        s_lshl_b32 s{S_W8K}, s{S_W}, 13
        s_lshr_b32 s{S_R64}, s{S_M}, 3
        s_and_b32 s{S_CB}, s{S_M}, 7
        s_and_b32 s{S_RH}, s{S_W}, 1
        s_lshr_b32 s{S_KH}, s{S_W}, 1
        s_lshl_b32 s{S_SBW}, s{S_R64}, 1
        s_add_u32 s{S_SBW}, s{S_SBW}, s{S_RH}
        s_mul_i32 s{S_WQ}, s{S_M}, {3 * SLAB33}
        s_add_u32 s{S_WQ}, s{S_WQ}, {WQKV}
        s_lshl_b32 s{S_WO}, s{S_CB}, 16
        s_add_u32 s{S_WO}, s{S_WO}, {WO}
        s_mul_i32 s{S_W13}, s{S_M}, {7 * SLAB33}
        s_add_u32 s{S_W13}, s{S_W13}, {W13}
        s_mul_i32 s{S_W2}, s{S_CB}, {224 * 1024}
        s_add_u32 s{S_W2}, s{S_W2}, {W2}
        s_lshl_b32 s{S_XF}, s{S_C}, 17
        s_add_u32 s{S_XF}, s{S_XF}, {XF0}
        s_lshl_b32 s{S_ST}, s{S_C}, 14
        s_add_u32 s{S_ST}, s{S_ST}, {ST0}
        s_mov_b32 s{S_LB}, {LB(0)}
        s_lshl_b32 s{S_FLOFF}, s{S_C}, 7
        s_add_u32 s{S_FLOFF}, s{S_FLOFF}, {FL}
        s_and_b32 s55, s{S_C}, 1
        s_lshl_b32 s56, s55, 1
        s_add_u32 s56, s56, s{S_R64}
        s_mul_i32 s53, s{S_KH}, 3072
        s_lshl_b32 s54, s{S_KH}, 10
        s_add_u32 s54, s54, 1024
        v_mov_b32 v{MF + 2}, 0
        v_mov_b32 v{MF + 3}, 0
        v_mov_b32 v{ONES}, 0x3f803f80
        v_mov_b32 v{ONES + 1}, 0x3f803f80
        v_mov_b32 v{ONES + 2}, 0x3f803f80
        v_mov_b32 v{ONES + 3}, 0x3f803f80
        s_waitcnt lgkmcnt(0)
        s_and_b32 s5, s5, 0xffff
        s_mov_b32 s6, {WS_BYTES}
        s_mov_b32 s7, 0x20000
        s_and_b32 s9, s9, 0xffff
        s_mov_b32 s10, {2048 * 512 * 2}
        s_mov_b32 s11, 0x20000
        ''')
        for i in range(4): E.e(f'v_add_u32 v{V_SLOT + i}, s{S_SLOT + i}, v{V_L16}')
        E.e(f'''
        s_lshl_b32 s45, s{S_W}, 8
        s_add_u32 s45, s45, {L_RS}
        v_lshrrev_b32 v9, 1, v{V_S8}
        v_add_u32 v{A_RSW}, s45, v9
        v_lshrrev_b32 v10, 5, v{V_LANE}
        v_lshlrev_b32 v9, 4, v10
        v_add_u32 v{A_RSR}, s45, v9
        s_mul_i32 s45, s{S_W}, 2304
        s_add_u32 s45, s45, {L_KVS}
        v_and_b32 v9, 15, v{V_LANE}
        v_lshlrev_b32 v11, 4, v10
        v_add_u32 v9, v9, v11
        v_lshlrev_b32 v9, 5, v9
        v_and_b32 v11, 16, v{V_LANE}
        v_lshlrev_b32 v12, 6, v11
        v_add_u32 v12, v9, v12
        v_add_u32 v{A_KVW}, s45, v12
        v_lshlrev_b32 v12, 5, v10
        v_add_u32 v{A_ZW}, s45, v12
        v_add_u32 v12, 2048, v12
        v_cmp_eq_u32 vcc, 0, v11
        v_add_u32 v13, 1024, v9
        v_add_u32 v14, 64, v12
        v_cndmask_b32 v9, v12, v9, vcc
        v_cndmask_b32 v13, v14, v13, vcc
        v_add_u32 v{A_KZ0}, {L_KVF}, v9
        v_add_u32 v{A_KZ1}, {L_KVF}, v13
        s_lshl_b32 s45, s{S_W}, 10
        v_add_u32 v{A_RED}, s45, v{V_L16}
        s_lshl_b32 s45, s{S_W}, 12
        s_add_u32 s45, s45, {L_XCH}
        v_add_u32 v{A_XW}, s45, v{V_L16}
        s_xor_b32 s46, s{S_W}, 2
        s_lshl_b32 s46, s46, 12
        s_add_u32 s46, s46, {L_XCH}
        v_add_u32 v{A_XR}, s46, v{V_L16}
        v_lshlrev_b32 v{A_FA}, 2, v{V_LANE}
        v_lshlrev_b32 v{V_S8}, 1, v{V_S8}
        s_lshl_b32 s44, s{S_C}, 2
        s_add_u32 s44, s44, s{S_SBW}
        s_lshl_b32 s47, s44, 12
        s_lshl_b32 s44, s44, 15
        s_lshl_b32 s45, s{S_CB}, 2
        s_lshl_b32 s46, s{S_KH}, 1
        s_add_u32 s45, s45, s46
        s_lshl_b32 s45, s45, 10
        s_add_u32 s{S_XD}, s44, s45
        s_add_u32 s{S_XD}, s{S_XD}, {XF0}
        s_lshr_b32 s45, s{S_CB}, 1
        s_lshl_b32 s45, s45, 10
        s_add_u32 s47, s47, s45
        s_and_b32 s45, s{S_CB}, 1
        s_lshl_b32 s45, s45, 9
        s_add_u32 s47, s47, s45
        s_lshl_b32 s45, s{S_KH}, 3
        s_add_u32 s{S_SD}, s47, s45
        s_add_u32 s{S_SD}, s{S_SD}, {ST0}
        s_lshl_b32 s45, s{S_CB}, 7
        s_add_u32 s{S_OUT}, s44, s45
        s_lshl_b32 s45, s{S_KH}, 6
        s_add_u32 s{S_OUT}, s{S_OUT}, s45
        s_lshl_b32 s44, s{S_C}, 17
        s_lshl_b32 s45, s{S_W}, 15
        s_add_u32 s44, s44, s45
        s_lshl_b32 s45, s{S_M}, 11
        s_add_u32 s44, s44, s45
        s_add_u32 s{S_OD}, s44, {LB(0) + OF_}
        s_lshl_b32 s44, s{S_C}, 2
        s_add_u32 s44, s44, s{S_W}
        s_mul_i32 s44, s44, {112 * 1024}
        s_mul_i32 s45, s{S_M}, {7 * 1024}
        s_add_u32 s44, s44, s45
        s_add_u32 s{S_HD}, s44, {LB(0) + HF_}
        s_mul_i32 s{S_KG}, s{S_M}, {16 * KVP_STRIDE}
        s_add_u32 s{S_KG}, s{S_KG}, {LB(0) + KVP_}
        s_mul_i32 s45, s{S_C}, {KVP_STRIDE}
        s_add_u32 s{S_KP}, s{S_KG}, s45
        s_lshl_b32 s{S_FAR}, s{S_M}, 8
        s_add_u32 s{S_FAR}, s{S_FAR}, {FA}
        s_lshl_b32 s45, s{S_C}, 2
        s_add_u32 s45, s45, s{S_W}
        s_lshl_b32 s45, s45, 2
        s_add_u32 s{S_FAW}, s{S_FAR}, s45
        ''')
        L = E.label('reg')
        E.e(f'''
        s_cmp_lg_u32 s{S_W}, 0
        s_cbranch_scc1 {L}
        s_lshl_b32 s45, s{S_C}, 7
        s_lshl_b32 s46, s{S_M}, 2
        s_add_u32 s45, s45, s46
        s_add_u32 s45, s45, {REG}
        v_mov_b32 v10, s{S_MODE + 3}
        v_mov_b32 v11, 0
        s_mov_b64 exec, 1
        buffer_store_dword v10, v11, s[4:7], s45 offen sc1
        s_mov_b64 exec, -1
        {L}:
        ''')
        self.dma(0, S_WQ, 0, 33); self.dma(1, S_WQ, SLAB33, 33)
        for i in range(10):
            base, k = (S_WQ, i) if i < 3 else (S_W13, i - 3)
            E.e(f's_add_u32 s44, s{base}, {k * SLAB33 + 32 * 1024}')
            E.vmem(f'buffer_load_dword v{AUG + i}, v{V_L16}, s[4:7], s44 offen', 'aug')
        for q in AQ: E.e(f'v_mov_b32 v{q + 2}, 0'); E.e(f'v_mov_b32 v{q + 3}, 0')
        E.e(f'''
        s_lshl_b32 s44, s{S_SBW}, 15
        s_lshl_b32 s45, s{S_CB}, 2
        s_lshl_b32 s46, s{S_KH}, 1
        s_add_u32 s45, s45, s46
        s_lshl_b32 s45, s45, 10
        s_add_u32 s44, s44, s45
        s_add_u32 s44, s44, s{S_XF}
        ''')
        E.vmem(f'buffer_load_dwordx4 v[{RES}:{RES + 3}], v{V_L16}, s[4:7], s44 offen', 'res')
        E.vmem(f'buffer_load_dwordx4 v[{RES + 4}:{RES + 7}], v{V_L16}, s[4:7], s44 offen offset:1024', 'res')
    def kouter(self, v0, v1, acc0, acc1, transposed, F, tail_units, aug, fine=None, pre_wait=None):
        E = self.E; D = self.opt.get('D', 10)
        xq = self.frag_units(32, 0, 'x', base=lambda: (E.e(f's_lshl_b32 s44, s{S_W}, 15'), E.e(f's_add_u32 s44, s44, s{S_XF}')))
        sq = self.stats_units()
        order = xq[:4] + sq + xq[4:]
        npro = min(len(order), D + 4)
        def rd(i):
            kb, j = divmod(i, 2)
            E.ds(f'ds_read_b128 v[{self.wfrag(i)}:{self.wfrag(i) + 3}], v{v0 if j == 0 else v1} offset:{kb * 1024}', f'w{i}')
        if pre_wait:
            for u in order[:npro]: u()
            for tag in pre_wait:
                if tag in E.vm: E.wait_vm(tag)
            E.e('s_barrier')
            for i in range(4): rd(i)
        else:
            for u in order[:2]: u()
            for i in range(4): rd(i)
            for u in order[2:npro]: u()
        q = order[npro:] + list(tail_units)
        ntail = len(tail_units)
        for kb in range(33):
            if kb + 2 < 32: rd(2 * kb + 4); rd(2 * kb + 5)
            if kb == 30:
                for j in range(2):
                    E.e(f'v_mov_b32 v{AQ[j]}, v{aug[j]}'); E.e(f'v_mov_b32 v{AQ[j] + 1}, v{aug[j]}')
            if q:
                n = 1 if len(q) > ntail else self.opt.get('tailrate', 2)
                for _ in range(min(n, len(q))): q.pop(0)()
            if kb < 32: E.wait_vm(f'x{kb}')
            if fine and kb in (0, 8, 16, 24): self.stamp(12 + kb // 8)
            if kb == 32: F.flush(); E.e('s_nop 1')
            if kb < 32: E.wait_lg(f'w{2 * kb + 1}')
            X = f'a[{4 * kb}:{4 * kb + 3}]' if kb < 32 else f'v[{MF}:{MF + 3}]'
            for j, acc in ((0, acc0), (1, acc1)):
                w = self.wfrag(2 * kb + j) if kb < 32 else AQ[j]; W = f'v[{w}:{w + 3}]'
                C = '0' if kb == 0 else f'v[{acc}:{acc + 15}]'
                A, B = (W, X) if transposed else (X, W)
                E.e(f'v_mfma_f32_32x32x16_bf16 v[{acc}:{acc + 15}], {A}, {B}, {C}')
                if kb >= 3: F.pump(2)
        for u in q: u()
    def wfrag(self, idx, ring=6): return (WF if ring == 6 else WF8) + 4 * (idx % ring)
    def phase_qkv(self):
        E = self.E; F = Fill(E)
        E.c('==== QKV ====')
        F.add(*self.stats_items(+1))
        R, RL = T + 8, T + 24
        F.add(lambda: E.ds(f'ds_write_b32 v{A_RSW}, v{V_R}', 'rs'), lambda: None,
              lambda: E.ds(f'ds_write_b32 v{A_RSW}, v{V_C1} offset:128', 'rs'), lambda: None)
        for i in range(4):
            F.add(lambda i=i: E.ds(f'ds_read_b128 v[{R + 4 * i}:{R + 4 * i + 3}], v{A_RSR} offset:{32 * i}', 'r'), lambda: None)
            F.add(lambda i=i: E.ds(f'ds_read_b128 v[{RL + 4 * i}:{RL + 4 * i + 3}], v{A_RSR} offset:{128 + 32 * i}', 'r'), lambda: None)
        F.add(f'v_mov_b32 v{T + 2}, {EPS_PHI:#x}', f'v_and_b32 v{T + 4}, 16, v{V_LANE}')
        a_k, a_v, a_q = ACC
        vK, vV, vQ = V_SLOT + 0, V_SLOT + 1, V_SLOT + 2
        qw = self.dma_units(2, S_WQ, 2 * SLAB33, 33) + self.dma_units(3, S_WO, 0, 32) + self.pf_site('qkvtail')
        self.kouter(vK, vV, a_k, a_v, False, F, qw, (AUG, AUG + 1), fine=self.opt.get('fine_q'), pre_wait=['slab0', 'slab1'])
        if self.opt.get('fine_q'): self.stamp(1)
        PK, PV = T + 40, T + 48
        X1, X2 = T + 56, T + 64
        D, D2 = a_q, 140 + 64 - 16
        D2 = 240 - 0 if False else WF + 24
        E.e(f'v_cmp_eq_u32 vcc, 0, v{T + 4}')
        E.wait_lg_all()
        E.nop(11)
        for h in range(2):
            rr = range(8 * h, 8 * h + 8)
            for r in rr: E.e(f'v_mul_f32 v{X2 + r % 8}, v{a_k + r}, v{RL + r}')
            for r in rr: E.e(f'v_fma_f32 v{X1 + r % 8}, v{a_k + r}, v{R + r}, v{T + 2}')
            for r in rr: E.e(f'v_exp_f32 v{X2 + r % 8}, v{X2 + r % 8} clamp')
            for r in rr: E.e(f'v_max_f32 v{X1 + r % 8}, v{X1 + r % 8}, v{T + 2}')
            for r in rr: E.e(f'v_add_f32 v{X1 + r % 8}, v{X1 + r % 8}, v{X2 + r % 8}')
            for r in rr: E.e(f'v_mul_f32 v{X2 + r % 8}, v{a_v + r}, v{R + r}')
            for r in range(0, 8, 2): E.e(f'v_cvt_pk_bf16_f32 v{PK + 4 * h + r // 2}, v{X1 + r}, v{X1 + r + 1}')
            for r in range(0, 8, 2): E.e(f'v_cvt_pk_bf16_f32 v{PV + 4 * h + r // 2}, v{X2 + r}, v{X2 + r + 1}')
            E.nop(2)
            C1 = '0' if h == 0 else f'v[{D}:{D + 15}]'; C2 = '0' if h == 0 else f'v[{D2}:{D2 + 15}]'
            E.e(f'v_mfma_f32_32x32x16_bf16 v[{D}:{D + 15}], v[{PK + 4 * h}:{PK + 4 * h + 3}], v[{PV + 4 * h}:{PV + 4 * h + 3}], {C1}')
            E.e(f'v_mfma_f32_32x32x16_bf16 v[{D2}:{D2 + 15}], v[{PK + 4 * h}:{PK + 4 * h + 3}], v[{ONES}:{ONES + 3}], {C2}')
        E.e(f"""
        s_cmp_eq_u32 s{S_W}, 2
        s_cselect_b32 s60, 0xff, -1
        s_cselect_b32 s61, 0, -1
        s_mov_b32 s62, 1
        s_mov_b32 s63, 1
        v_add_u32 v{T + 1}, {L_KVS}, v{A_RED}
        v_mov_b32 v{V_T0 + 1}, 1
        v_mov_b32 v{V_T0 + 2}, 0
        """)
        E.nop(4)
        for r in range(8): E.e(f'v_cndmask_b32 v{X1 + r}, v{D + 8 + r}, v{D + r}, vcc')
        E.ds(f'ds_write_b128 v{A_KVW}, v[{X1}:{X1 + 3}]', 'kv')
        E.ds(f'ds_write_b128 v{A_KVW}, v[{X1 + 4}:{X1 + 7}] offset:16', 'kv')
        E.e('s_mov_b64 exec, s[62:63]')
        for q in range(4):
            E.ds(f'ds_write_b128 v{A_ZW}, v[{D2 + 4 * q}:{D2 + 4 * q + 3}] offset:{2048 + (q // 2) * 64 + (q % 2) * 16}', 'kv')
        E.e('s_mov_b64 exec, -1')
        E.wait_vm_all()
        E.wait_lg_all()
        if self.opt.get('fine_q'): self.stamp(24)
        E.barrier()
        Lskip = E.label('kvp')
        E.e(f"""
        s_cmp_ge_u32 s{S_W}, 3
        s_cbranch_scc1 {Lskip}
        s_mov_b64 exec, s[60:61]
        ds_read_b128 v[{X1}:{X1 + 3}], v{T + 1}
        ds_read_b128 v[{X1 + 4}:{X1 + 7}], v{T + 1} offset:2304
        ds_read_b128 v[{X2}:{X2 + 3}], v{T + 1} offset:4608
        ds_read_b128 v[{X2 + 4}:{X2 + 7}], v{T + 1} offset:6912
        s_waitcnt lgkmcnt(2)
        """)
        for j in range(4): E.e(f'v_add_f32 v{X1 + j}, v{X1 + j}, v{X1 + 4 + j}')
        E.e('s_waitcnt lgkmcnt(0)')
        for j in range(4): E.e(f'v_add_f32 v{X2 + j}, v{X2 + j}, v{X2 + 4 + j}')
        for j in range(4): E.e(f'v_add_f32 v{X1 + j}, v{X1 + j}, v{X2 + j}')
        E.e(f'buffer_store_dwordx4 v[{X1}:{X1 + 3}], v{A_RED}, s[4:7], s{S_KP} offen sc1')
        E.e('s_mov_b64 exec, -1')
        E.place(Lskip)
        def rq(kb): E.ds(f'ds_read_b128 v[{self.wfrag(kb)}:{self.wfrag(kb) + 3}], v{vQ} offset:{kb * 1024}', f'w{kb}')
        for kb in range(4): rq(kb)
        Lf = E.label('fa')
        E.e(f"""
        s_cmp_ge_u32 s{S_W}, 3
        s_cbranch_scc1 {Lf}
        s_waitcnt vmcnt(0)
        s_mov_b64 exec, 1
        buffer_store_dword v{V_T0 + 1}, v{V_T0 + 2}, s[4:7], s{S_FAW} offen sc1
        s_mov_b64 exec, -1
        {Lf}:
        """)
        if self.opt.get('fine_q'): self.stamp(25)
        self.stamp(2)
        if self.ts:
            for kb in range(4): rq(kb)
        dq = self.dma_units(4, S_WO, 32 * 1024, 32) + self.dma_units(5, S_W13, 0, 33) + self.pf_site('qwin')
        late = self.opt.get('wt0', 'q') == 'gat'
        dq2 = []
        if late: dq2, dq = dq, []
        for kb in range(33):
            if kb + 4 < 32: rq(kb + 4)
            if kb == 28: E.e(f'v_mov_b32 v{AQ[0]}, v{AUG + 2}'); E.e(f'v_mov_b32 v{AQ[0] + 1}, v{AUG + 2}')
            if kb % 2 == 0 and kb < 32: E.wait_lg(f'w{kb + 1}')
            B = f'a[{4 * kb}:{4 * kb + 3}]' if kb < 32 else f'v[{MF}:{MF + 3}]'
            w = self.wfrag(kb) if kb < 32 else AQ[0]; C = '0' if kb == 0 else f'v[{a_q}:{a_q + 15}]'
            E.e(f'v_mfma_f32_32x32x16_bf16 v[{a_q}:{a_q + 15}], v[{w}:{w + 3}], {B}, {C}')
            if dq and kb % 2 == 0: dq.pop(0)()
        for u in dq: u()
        self.stamp(3)
        G = 140
        Lg = E.label('gat'); Lr = E.label('regchk')
        E.e(f"""
        s_mov_b32 s62, 0x77777777
        s_mov_b32 s63, 0x77777777
        s_cmp_ge_u32 s{S_W}, 3
        s_cbranch_scc1 {Lg}
        s_cmp_lg_u32 s{S_W}, 0
        s_cbranch_scc1 {Lr}
        s_cmp_lg_u32 s{S_L}, 0
        s_cbranch_scc1 {Lr}
        s_lshl_b32 s45, s{S_C}, 7
        s_add_u32 s45, s45, {REG}
        s_mov_b32 s47, 1
        """)
        self.poll(45, 47, 2)
        E.e(f"""
        v_cmp_ne_u32 vcc, s{S_MODE + 3}, v{V_T0}
        s_cmp_lg_u64 vcc, 0
        s_cselect_b32 s47, 1, 0
        v_mov_b32 v{V_T0 + 1}, s47
        v_mov_b32 v{V_T0 + 2}, {L_KVF + 2240}
        ds_write_b32 v{V_T0 + 2}, v{V_T0 + 1}
        s_waitcnt lgkmcnt(0)
        {Lr}:
        """)
        Lp = E.label('gp'); Lx = E.label('gpx'); Lt = E.label('gpt')
        E.e(f"""
        s_mov_b32 s46, 0
        {Lp}:
        s_add_u32 s46, s46, 1
        s_cmp_gt_u32 s46, {self.spin}
        s_cbranch_scc1 {Lt}
        buffer_load_dword v{V_T0}, v{A_FA}, s[4:7], s{S_FAR} offen sc1
        s_waitcnt vmcnt(0)
        v_cmp_eq_u32 vcc, 0, v{V_T0}
        s_nop 1
        s_and_b64 vcc, vcc, s[62:63]
        s_cbranch_scc1 {Lp}
        s_branch {Lx}
        {Lt}:
        s_mov_b32 s{S_MODE + 2}, 3
        {Lx}:
        s_mov_b64 exec, s[60:61]
        s_mov_b32 s45, s{S_KG}
        """)
        for c in range(16):
            E.e(f'buffer_load_dwordx4 v[{G + 4 * c}:{G + 4 * c + 3}], v{A_RED}, s[4:7], s45 offen sc1')
            if c < 15: E.e(f's_add_u32 s45, s45, {KVP_STRIDE}')
        E.e('s_mov_b64 exec, -1')
        E.place(Lg)
        E.vm = []
        self.stamp(4)
        Y1, Y2, EP = ST, ST + 8, V_T0 + 3
        E.e(f'v_mov_b32 v{EP}, {EPS_PHI:#x}')
        E.nop(4)
        n2 = len(dq2)
        E.inject(dq2, 5)
        for h in range(2):
            rr = range(8 * h, 8 * h + 8)
            for r in rr: E.e(f'v_mul_f32 v{Y2 + r % 8}, v{a_q + r}, v{V_C1}')
            for r in rr: E.e(f'v_fma_f32 v{Y1 + r % 8}, v{a_q + r}, v{V_R}, v{EP}')
            for r in rr: E.e(f'v_exp_f32 v{Y2 + r % 8}, v{Y2 + r % 8} clamp')
            for r in rr: E.e(f'v_max_f32 v{Y1 + r % 8}, v{Y1 + r % 8}, v{EP}')
            for r in rr: E.e(f'v_add_f32 v{Y1 + r % 8}, v{Y1 + r % 8}, v{Y2 + r % 8}')
            for r in range(0, 8, 2): E.e(f'v_cvt_pk_bf16_f32 v{PQ + 4 * h + r // 2}, v{Y1 + r}, v{Y1 + r + 1}')
        E.inject_off()
        Lg2 = E.label('gat2')
        E.e(f"""
        s_cmp_ge_u32 s{S_W}, 3
        s_cbranch_scc1 {Lg2}
        s_mov_b64 exec, s[60:61]
        v_add_u32 v{T + 1}, {L_KVF}, v{A_RED}
        """)
        for half in range(2):
            E.e(f's_waitcnt vmcnt({n2 + (8 if half == 0 else 0)})')
            b0 = G + 32 * half
            for lv, (x, y) in enumerate(((0, 1), (2, 3), (4, 5), (6, 7), (0, 2), (4, 6), (0, 4))):
                for j in range(4): E.e(f'v_add_f32 v{b0 + 4 * x + j}, v{b0 + 4 * x + j}, v{b0 + 4 * y + j}')
        for j in range(4): E.e(f'v_add_f32 v{G + j}, v{G + j}, v{G + 32 + j}')
        E.e(f'ds_write_b128 v{T + 1}, v[{G}:{G + 3}]')
        E.e('s_mov_b64 exec, -1')
        E.place(Lg2)
        E.e('s_waitcnt lgkmcnt(0)' if late else 's_waitcnt vmcnt(0) lgkmcnt(0)')
        for u in self.pf_site('gat'): u()
        E.barrier()
        for h, ad in ((0, A_KZ0), (1, A_KZ1)):
            E.ds(f'ds_read_b128 v[{X1 + 8 * h}:{X1 + 8 * h + 3}], v{ad}', 'kz')
            E.ds(f'ds_read_b128 v[{X1 + 8 * h + 4}:{X1 + 8 * h + 7}], v{ad} offset:16', 'kz')
        Lm = E.label('mode')
        E.e(f"""
        s_cmp_lg_u32 s{S_L}, 0
        s_cbranch_scc1 {Lm}
        v_mov_b32 v{V_T0 + 2}, {L_KVF + 2240}
        ds_read_b32 v{V_T0 + 1}, v{V_T0 + 2}
        s_waitcnt lgkmcnt(0)
        v_readfirstlane_b32 s{S_MODE}, v{V_T0 + 1}
        {Lm}:
        """)
        KZ = PK
        E.wait_lg('kz') if False else None
        E.e('s_waitcnt lgkmcnt(2)')
        for r in range(4): E.e(f'v_cvt_pk_bf16_f32 v{KZ + r}, v{X1 + 2 * r}, v{X1 + 2 * r + 1}')
        E.e('s_waitcnt lgkmcnt(0)'); E.lg = []
        for r in range(4): E.e(f'v_cvt_pk_bf16_f32 v{KZ + 4 + r}, v{X1 + 8 + 2 * r}, v{X1 + 8 + 2 * r + 1}')
        E.nop(1)
        for h, acc in ((0, a_k), (1, a_v)):
            E.e(f'v_mfma_f32_32x32x16_bf16 v[{acc}:{acc + 15}], v[{KZ + 4 * h}:{KZ + 4 * h + 3}], v[{PQ + 4 * h}:{PQ + 4 * h + 3}], 0')
        E.nop(11)
        OFR = PV
        for h, acc in ((0, a_k), (1, a_v)):
            E.e(f'v_add_f32 v{T + h}, v{acc + 8}, v{EP}')
        for h in range(2): E.e(f'v_rcp_f32 v{T + h}, v{T + h}')
        E.e('s_nop 0')
        for h, acc in ((0, a_k), (1, a_v)):
            for r in range(8): E.e(f'v_mul_f32 v{X1 + 8 * h + r}, v{acc + r}, v{T + h}')
            for r in range(4): E.e(f'v_cvt_pk_bf16_f32 v{OFR + 4 * h + r}, v{X1 + 8 * h + 2 * r}, v{X1 + 8 * h + 2 * r + 1}')
            self.store_act([f'buffer_store_dwordx4 v[{OFR + 4 * h}:{OFR + 4 * h + 3}], v{V_L16}, s[4:7], s{S_OD} offen offset:{1024 * h}'], 'o')
        for u in self.pf_site('ostore'): u()
    def phase_proj(self, name, nsteps, act_base_imm, act_stride_sb, p0, src_sreg, dma_plan, out_x, out_st, last_check):
        E = self.E; F = Fill(E)
        E.c(f'==== {name} ====')
        accM, accO = ACC[0], ACC[1]
        E.e(f'''
        s_lshl_b32 s44, s{S_C}, 2
        s_add_u32 s44, s44, s{S_SBW}
        s_mul_i32 s44, s44, {act_stride_sb}
        s_mul_i32 s45, s{S_KH}, {nsteps * 1024}
        s_add_u32 s44, s44, s45
        s_add_u32 s44, s44, {LB(0) + act_base_imm}
        ''')
        D = self.opt.get('D2', 10)
        aq = self.frag_units(nsteps, 0, 'h')
        pairs = [(T, T + 1), (T + 2, T + 3)]
        def setpair(sl):
            a, b = pairs[sl % 2]; p = p0 + sl
            return [f'v_add_u32 v{a}, s53, v{V_SLOT + p % 4}', f'v_add_u32 v{b}, s54, v{V_SLOT + p % 4}']
        for x in setpair(0): E.e(x)
        nsl = nsteps // 8
        def rd(i):
            sl, ii = divmod(i, 8); a, b = pairs[sl % 2]
            E.ds(f'ds_read_b128 v[{self.wfrag(2 * i)}:{self.wfrag(2 * i) + 3}], v{a} offset:{ii * 4096}', f'w{2 * i}')
            E.ds(f'ds_read_b128 v[{self.wfrag(2 * i + 1)}:{self.wfrag(2 * i + 1) + 3}], v{b} offset:{ii * 4096}', f'w{2 * i + 1}')
        for u in aq[:2]: u()
        rd(0); rd(1)
        for u in aq[2:D]: u()
        aq = aq[D:]
        dq = []
        for (pp, sreg, imm, nfr) in dma_plan.get('start', []): dq += self.dma_units(pp, sreg, imm, nfr)
        dq += self.pf_site(name + 'start')
        for i in range(nsteps):
            sl, ii = divmod(i, 8)
            if ii == 0 and sl + 1 < nsl:
                for x in setpair(sl + 1): E.e(x)
            if ii == 6 and sl + 1 < nsl:
                need = f'slab{p0 + sl + 1}'
                assert not any(need == u.tag for u in dq), need
                if need in E.vm: E.wait_vm(need)
                E.e('s_barrier')
                for (pp, sreg, imm, nfr) in dma_plan.get(sl, []): dq += self.dma_units(pp, sreg, imm, nfr)
                dq += self.pf_site(f'{name}{sl}')
            if ii == 6 and sl + 1 == nsl and nsteps == 16 and dma_plan.get('loopend'):
                E.e('s_barrier')
            if i + 2 < nsteps: rd(i + 2)
            if aq: aq.pop(0)()
            rate = self.opt.get('dmarate2', 1) if aq else 2
            for _ in range(min(rate, len(dq))): dq.pop(0)()
            E.wait_vm(f'h{i}')
            if self.opt.get('fine_w2') and nsteps == 56 and i % 8 == 0: self.stamp(12 + i // 8 if i < 32 else 24 + (i - 32) // 8)
            E.wait_lg(f'w{2 * i + 1}')
            for j, acc in ((0, accM), (1, accO)):
                w = self.wfrag(2 * i + j); C = '0' if i == 0 else f'v[{acc}:{acc + 15}]'
                E.e(f'v_mfma_f32_32x32x16_bf16 v[{acc}:{acc + 15}], v[{w}:{w + 3}], a[{4 * i}:{4 * i + 3}], {C}')
        eq = []
        for (pp, sreg, imm, nfr) in dma_plan.get('loopend', []): eq += self.dma_units(pp, sreg, imm, nfr)
        eq += self.pf_site(name + 'end')
        for u in dq: u()
        if self.opt.get('fine_w2') and nsteps == 56: self.stamp(27)
        for _ in range(min(len(eq), self.opt.get('pre_x', 4))): eq.pop(0)()
        U = T + 8
        for i in range(6):
            E.e(f'v_lshlrev_b32 v{U + 2 * i}, 16, v{RES + i}')
            E.e(f'v_and_b32 v{U + 2 * i + 1}, 0xffff0000, v{RES + i}')
        for q in range(4): E.ds(f'ds_write_b128 v{A_XW}, v[{accO + 4 * q}:{accO + 4 * q + 3}] offset:{1024 * q}', 'x')
        for i in range(6, 8):
            E.e(f'v_lshlrev_b32 v{U + 2 * i}, 16, v{RES + i}')
            E.e(f'v_and_b32 v{U + 2 * i + 1}, 0xffff0000, v{RES + i}')
        for r in range(16): E.e(f'v_add_f32 v{U + r}, v{U + r}, v{accM + r}')
        E.wait_lg_all()
        E.barrier()
        X = ACC[2]
        for q in range(4): E.ds(f'ds_read_b128 v[{X + 4 * q}:{X + 4 * q + 3}], v{A_XR} offset:{1024 * q}', f'x{q}')
        for (pp, sreg, imm, nfr) in dma_plan.get('end', []): eq += self.dma_units(pp, sreg, imm, nfr)
        E.inject(eq, self.opt.get('pevery', 4))
        for q in range(4):
            E.wait_lg(f'x{q}')
            for r in range(4 * q, 4 * q + 4): E.e(f'v_add_f32 v{U + r}, v{U + r}, v{X + r}')
            for i in range(2 * q, 2 * q + 2): E.e(f'v_cvt_pk_bf16_f32 v{RES + i}, v{U + 2 * i}, v{U + 2 * i + 1}')
        E.inject_off()
        Lfin = E.label('fin'); Ldone = E.label('pdone')
        if last_check:
            E.e(f's_cmp_eq_u32 s{S_L}, 1'); E.e(f's_cbranch_scc1 {Lfin}')
        self.store_act([f'buffer_store_dwordx4 v[{RES}:{RES + 3}], v{V_L16}, s[4:7], s{S_XD} offen',
                        f'buffer_store_dwordx4 v[{RES + 4}:{RES + 7}], v{V_L16}, s[4:7], s{S_XD} offen offset:1024'])
        stats32(E, [U + r for r in range(16)], (T + 2, T + 3, T + 4, T + 5), T + 6, T + 7)
        self.store_act([f'buffer_store_dwordx2 v[{T + 6}:{T + 7}], v{V_S8}, s[4:7], s{S_SD} offen'])
        for (pp, sreg, imm, nfr) in dma_plan.get('post', []): self.dma(pp, sreg, imm, nfr)
        if last_check:
            E.e(f's_branch {Ldone}')
            E.place(Lfin)
            E.e(f'''
            s_mov_b32 s44, s{S_OUT}
            v_and_b32 v{T}, 31, v{V_LANE}
            v_lshlrev_b32 v{T}, 10, v{T}
            v_lshrrev_b32 v{T + 1}, 5, v{V_LANE}
            v_lshlrev_b32 v{T + 1}, 4, v{T + 1}
            v_add_u32 v{T}, v{T}, v{T + 1}
            v_permlane32_swap_b32 v{RES}, v{RES + 2}
            v_permlane32_swap_b32 v{RES + 1}, v{RES + 3}
            v_permlane32_swap_b32 v{RES + 4}, v{RES + 6}
            v_permlane32_swap_b32 v{RES + 5}, v{RES + 7}
            s_nop 1
            buffer_store_dwordx4 v[{RES}:{RES + 3}], v{T}, s[8:11], s44 offen
            buffer_store_dwordx4 v[{RES + 4}:{RES + 7}], v{T}, s[8:11], s44 offen offset:32
            ''')
            sv = self._prev; self.stamp(11); self.stamp_flush(); self._prev = sv
            E.e('s_branch L_k1_end')
            E.place(Ldone)
    def h_epilogue_items(self, acc, t):
        E = self.E; P, X = T + 8, T + 16; H = T + 24
        it = []
        for r in range(8): it.append(f'v_mul_f32 v{X + r}, v{acc + r}, v{V_C1}')
        for r in range(8): it.append(f'v_mul_f32 v{P + r}, v{acc + r}, v{acc + 8 + r}')
        for r in range(8): it.append(f'v_exp_f32 v{X + r}, v{X + r}')
        for r in range(8): it.append(f'v_fma_f32 v{X + r}, v{X + r}, v{V_C2}, v{V_C2}')
        for r in range(8): it.append(f'v_rcp_f32 v{X + r}, v{X + r}')
        it.append(f's_add_u32 s51, s{S_HD}, {t * 1024}')
        for r in range(8): it.append(f'v_mul_f32 v{P + r}, v{P + r}, v{X + r}')
        for r in range(4): it.append(f'v_cvt_pk_bf16_f32 v{H + r}, v{P + 2 * r}, v{P + 2 * r + 1}')
        def st():
            self.store_act([f'buffer_store_dwordx4 v[{H}:{H + 3}], v{V_L16}, s[4:7], s51 offen'], 'h')
        it.append(st)
        return it
    def phase_ffn1(self):
        E = self.E; F = Fill(E)
        E.c('==== gate/up ====')
        F.add(*self.stats_items(-1))
        tail = []
        if self.opt.get('t2site', 'loopend') == 't01': tail += self.dma_units(7, S_W13, 2 * SLAB33, 33)
        if self.opt.get('t3site', 't01') == 't01': tail += self.dma_units(8, S_W13, 3 * SLAB33, 33)
        tail += self.pf_site('t01tail')
        self.kouter(V_SLOT + 5 % 4, V_SLOT + 6 % 4, ACC[0], ACC[1], True, F, tail, (AUG + 3, AUG + 4), fine=self.opt.get('fine_ts'))
        if self.tiles_ts: self.stamp(18)
        NT = 5
        WE = self.opt.get('we', 4); RING = 10 if WE == 4 else 6; PD = self.opt.get('pd', 7) if WE == 4 else 4
        def step(g): return 2 + g // 33, g % 33
        def rq(g):
            t, kb = step(g); p = 5 + t
            if kb == 32: return
            E.ds(f'ds_read_b128 v[{self.wfrag(g, RING)}:{self.wfrag(g, RING) + 3}], v{V_SLOT + p % 4} offset:{kb * 1024}', f'g{g}')
        if 'slab7' in E.vm: E.wait_vm('slab7')
        E.wait_lg_all()
        E.e('s_barrier')
        for g in range(PD): rq(g)
        ep = []
        for j in range(6):
            first = 4 if j < 2 else (j - 1) * 33 + 3
            for it in self.h_epilogue_items(ACC[j % 3], j): ep.append((first, j, it))
        total = len(ep); done = 0
        dq = self.dma_units(9, S_W13, 4 * SLAB33, 33) + self.pf_site('tile2') + self.dma_units(10, S_W13, 5 * SLAB33, 33)
        G = NT * 33
        for g in range(G):
            t, kb = step(g)
            if kb == 1 and t > 2:
                E.e('s_barrier')
                if t == 3: dq += self.dma_units(11, S_W13, 6 * SLAB33, 33)
                else: dq += self.dma_units(12 + (t - 4), S_W2, (t - 4) * 32 * 1024, 32)
                dq += self.pf_site(f'tile{t}')
            if kb == 32 - PD and t < 6:
                need = f'slab{5 + t + 1}'
                assert not any(need == u.tag for u in dq), need
                if need in E.vm: E.wait_vm(need)
                E.e('s_barrier')
            if g + PD < G: rq(g + PD)
            if g % WE == 0:
                last = max(gg for gg in range(g, min(g + WE, G)) if gg % 33 != 32 or gg == g)
                E.wait_lg(f'g{last}')
            if kb == 28: E.e(f'v_mov_b32 v{AQ[t % 2]}, v{AUG + 3 + t}'); E.e(f'v_mov_b32 v{AQ[t % 2] + 1}, v{AUG + 3 + t}')
            acc = ACC[t % 3]
            B = f'a[{4 * kb}:{4 * kb + 3}]' if kb < 32 else f'v[{MF}:{MF + 3}]'
            w = self.wfrag(g, RING) if kb < 32 else AQ[t % 2]; C = '0' if kb == 0 else f'v[{acc}:{acc + 15}]'
            E.e(f'v_mfma_f32_32x32x16_bf16 v[{acc}:{acc + 15}], v[{w}:{w + 3}], {B}, {C}')
            if dq and g % self.opt.get('dstep', 2) == 0: dq.pop(0)()
            want = (total * (g + 1) + G - 3) // (G - 2)
            while done < min(want, total) and ep[0][0] <= g:
                _, j, it = ep.pop(0)
                assert g < (j + 3 - 2) * 33 or j + 3 > 6, (g, j)
                if isinstance(it, str): E.e(it)
                else: it()
                done += 1
            if self.tiles_ts and kb == 32: self.stamp(16 + t + 1)
        assert not ep, len(ep)
        for u in dq: u()
        E.wait_lg_all()
        E.nop(12)
        F.add(*self.h_epilogue_items(ACC[6 % 3], 6)); F.flush()
    def wo_plan(self):
        t2 = self.opt.get('t2site', 'loopend'); t3 = self.opt.get('t3site', 't01')
        plan = dict(start=[(6, S_W13, SLAB33, 33)])
        if t2 in ('post', 'loopend'): plan.setdefault(t2, []).append((7, S_W13, 2 * SLAB33, 33))
        if t3 in ('post', 'end'): plan.setdefault(t3, []).append((8, S_W13, 3 * SLAB33, 33))
        return plan
    def gen(self):
        E = self.E
        self.init()
        if self.ts: E.e('v_mov_b32 v255, 0'); E.e('v_mov_b32 v254, 0'); E.e('s_mov_b32 s66, 0')
        E.place('L_k1_layer')
        self._prev = 30
        self.stamp(0)
        self.phase_qkv()
        self.stamp(5)
        if self.stop == 'qkv': E.wait_vm_all(force=True); E.e('s_branch L_k1_end')
        self.hop_local()
        self.stamp(6)
        self.phase_proj('wo', 16, OF_, 32 * 1024, 3, S_WO,
                        self.wo_plan(), X1F_, ST1_, False)
        self.stamp(7)
        if self.stop == 'wo': E.wait_vm_all(force=True); E.e('s_branch L_k1_end')
        self.hop_local()
        self.stamp(8)
        self.phase_ffn1()
        self.stamp(9)
        if self.stop == 'ffn1': E.wait_vm_all(force=True); E.e('s_branch L_k1_end')
        self.hop_local()
        self.stamp(10)
        nx = [(19, S_WQ, 0, 33), (20, S_WQ, SLAB33, 33), (21, S_WQ, 2 * SLAB33, 33), (22, S_WO, 0, 32)]
        plan = {'start': [(15, S_W2, 3 * 32768, 32)], 0: [], 1: [(16, S_W2, 4 * 32768, 32)], 2: [(17, S_W2, 5 * 32768, 32)], 3: [(18, S_W2, 6 * 32768, 32)],
                }
        kv = self.opt.get('kvsite', 'post')
        if kv == 'loop': plan[4] = [nx[0]]; plan[5] = [nx[1]]
        else: plan[kv] = [nx[0], nx[1]]
        self.phase_proj('w2', 56, HF_, 112 * 1024, 12, S_W2, plan, X2F_, ST2_, True)
        self.stamp(11)
        if self.stop == 'w2': E.wait_vm_all(force=True); E.e('s_branch L_k1_end')
        self.hop_local()
        E.e(f's_add_u32 s{S_KG}, s{S_KG}, {LB(1) - LB(0)}'); E.e(f's_add_u32 s{S_KP}, s{S_KP}, {LB(1) - LB(0)}')
        E.e(f's_add_u32 s{S_FAR}, s{S_FAR}, 4096'); E.e(f's_add_u32 s{S_FAW}, s{S_FAW}, 4096')
        E.e(f's_add_u32 s{S_L}, s{S_L}, 1')
        if self.ts:
            E.e('s_waitcnt lgkmcnt(0)'); E.e(f'v_writelane_b32 v255, s66, {self._prev}'); E.e('v_mov_b32 v254, v255'); E.e('v_mov_b32 v255, 0')
        E.e(f's_mov_b32 s40, s{S_SLOT + 3}')
        for i in (3, 2, 1): E.e(f's_mov_b32 s{S_SLOT + i}, s{S_SLOT + i - 1}')
        E.e(f's_mov_b32 s{S_SLOT}, s40')
        for i in range(4): E.e(f'v_add_u32 v{V_SLOT + i}, s{S_SLOT + i}, v{V_L16}')
        E.e('s_branch L_k1_layer')
        E.place('L_k1_end')
        E.e('s_endpgm')
        return E

def gen_k1(name='main_kernel', **kw):
    return K1(name, **kw).gen()
```

```python
from emit import *
from layout import *

def stats32(E, X, tmp, out_sum, out_m2):
    a, b, c, d = tmp
    acc = [out_sum, a, b, c]
    for j in range(4): E.e(f'v_add_f32 v{acc[j]}, v{X[j]}, v{X[4 + j]}')
    for j in range(4): E.e(f'v_add_f32 v{acc[j]}, v{acc[j]}, v{X[8 + j]}')
    for j in range(4): E.e(f'v_add_f32 v{acc[j]}, v{acc[j]}, v{X[12 + j]}')
    E.e(f'v_add_f32 v{out_sum}, v{out_sum}, v{a}')
    E.e(f'v_add_f32 v{b}, v{b}, v{c}')
    E.e(f's_nop 0')
    E.e(f'v_add_f32 v{out_sum}, v{out_sum}, v{b}')
    E.e(f's_nop 0')
    E.e(f'v_mov_b32 v{a}, v{out_sum}')
    E.e(f's_nop 1')
    E.e(f'v_permlane32_swap_b32 v{out_sum}, v{a}')
    E.e(f's_nop 0')
    E.e(f'v_add_f32 v{out_sum}, v{out_sum}, v{a}')
    E.e(f's_nop 0')
    E.e(f'v_mul_f32 v{d}, 0xbd000000, v{out_sum}')
    E.e(f's_nop 0')
    for i in range(16): E.e(f'v_add_f32 v{X[i]}, v{X[i]}, v{d}')
    m = [out_m2, a, b, c]
    for j in range(4): E.e(f'v_mul_f32 v{m[j]}, v{X[j]}, v{X[j]}')
    for k in range(1, 4):
        for j in range(4): E.e(f'v_fmac_f32 v{m[j]}, v{X[4 * k + j]}, v{X[4 * k + j]}')
    E.e(f'v_add_f32 v{out_m2}, v{out_m2}, v{a}')
    E.e(f'v_add_f32 v{b}, v{b}, v{c}')
    E.e(f's_nop 0')
    E.e(f'v_add_f32 v{out_m2}, v{out_m2}, v{b}')
    E.e(f's_nop 0')
    E.e(f'v_mov_b32 v{a}, v{out_m2}')
    E.e(f's_nop 1')
    E.e(f'v_permlane32_swap_b32 v{out_m2}, v{a}')
    E.e(f's_nop 0')
    E.e(f'v_add_f32 v{out_m2}, v{out_m2}, v{a}')

def gen_k0(name='prep_kernel', codepf=True, tlb=0, dbgclk=False):
    E = Em(name, vgpr=128, agpr=0, sgpr=96)
    E.e(f'''
    s_cmp_ge_u32 s2, 256
    s_cbranch_scc1 L_k0_end
    {'s_memrealtime s[88:89]' if dbgclk else ''}
    s_load_dwordx4 s[20:23], s[0:1], 0      ; x, wqkv
    s_load_dwordx2 s[24:25], s[0:1], 16     ; wo
    s_load_dwordx4 s[28:31], s[0:1], 32     ; w1, w3
    s_load_dwordx2 s[26:27], s[0:1], 48     ; w2
    s_load_dwordx2 s[4:5], s[0:1], 72       ; ws
    v_lshrrev_b32 v2, 6, v0
    v_and_b32 v0, 63, v0                    ; lane
    v_readfirstlane_b32 s33, v2             ; wave
    v_lshlrev_b32 v1, 4, v0                 ; lane*16
    s_waitcnt lgkmcnt(0)
    s_mov_b32 s6, {WS_BYTES}
    s_mov_b32 s7, 0x20000
    s_and_b32 s5, s5, 0xffff
    s_mov_b32 s16, s20
    s_and_b32 s17, s21, 0xffff
    s_mov_b32 s18, {2048*512*2}
    s_mov_b32 s19, 0x20000
    ''')
    E.c('x tile: c = wg>>4, r64 = (wg>>3)&1, cb = wg&7 ; wave: rh = w&1, t = w>>1')
    E.e('''
    s_lshr_b32 s34, s2, 3
    s_and_b32 s35, s2, 7           ; cb
    s_and_b32 s36, s33, 1          ; rh
    s_lshr_b32 s37, s33, 1         ; t
    s_lshl_b32 s38, s34, 1
    s_add_u32 s38, s38, s36
    s_lshl_b32 s39, s38, 15
    s_lshl_b32 s40, s35, 7         ; cb*128 B
    s_add_u32 s39, s39, s40
    s_lshl_b32 s40, s37, 6         ; t*64 B
    s_add_u32 s39, s39, s40
    v_and_b32 v2, 31, v0
    v_lshlrev_b32 v2, 10, v2       ; s*1024
    v_lshrrev_b32 v3, 5, v0
    v_lshlrev_b32 v3, 3, v3        ; hf*8
    v_add_u32 v2, v2, v3
    ''')
    XR = 8
    for i in range(4):
        E.vmem(f'buffer_load_dwordx2 v[{XR+2*i}:{XR+2*i+1}], v2, s[16:19], s39 offen offset:{16*i}', 'x')
    if tlb:
        E.e(f'''
        v_min_u32 v30, {tlb - 1}, v0
        v_lshlrev_b32 v30, 21, v30
        ''')
        E.vmem('buffer_load_dword v31, v30, s[4:7], 0 offen', 'tlb')
    E.c('weight job decode -> srcA s[8:11], srcB s[12:15], s41 stride, s42 colA, s43 colB, s44 kb0(wave), s45 nfr, s46 dst0, s47 dstep, s48 aug flag, s49 aug dst')
    Lq, L13, Lo, L2, Lnone, Ljob = 'L_k0_jq', 'L_k0_j13', 'L_k0_jo', 'L_k0_j2', 'L_k0_none', 'L_k0_job'
    E.e(f'''
    s_mov_b32 s11, 0x20000
    s_mov_b32 s15, 0x20000
    s_mov_b32 s8, s22
    s_and_b32 s9, s23, 0xffff
    s_mov_b32 s10, {512*1536*2}
    s_mov_b32 s12, s8
    s_mov_b32 s13, s9
    s_mov_b32 s14, s10
    s_mov_b32 s45, 8
    s_mov_b32 s47, 1024
    s_mov_b32 s48, 1
    s_lshl_b32 s44, s33, 3         ; kb0 = 8*w
    s_cmp_ge_u32 s2, 240
    s_cbranch_scc1 {Lnone}
    s_cmp_ge_u32 s2, 176
    s_cbranch_scc1 {L2}
    s_cmp_ge_u32 s2, 160
    s_cbranch_scc1 {Lo}
    s_cmp_ge_u32 s2, 48
    s_cbranch_scc1 {L13}
    {Lq}:
    s_mul_i32 s50, s2, 43691
    s_lshr_b32 s50, s50, 17
    s_mul_i32 s51, s50, 3
    s_sub_u32 s51, s2, s51         ; part 0:k 1:v 2:q
    s_add_u32 s52, s51, 1
    s_cmp_eq_u32 s51, 2
    s_cselect_b32 s52, 0, s52
    s_lshl_b32 s52, s52, 10        ; *512*2 bytes
    s_lshl_b32 s53, s50, 6
    s_add_u32 s42, s52, s53
    s_add_u32 s43, s42, 32
    s_mov_b32 s41, 3072
    s_mul_i32 s49, s2, {SLAB33}
    s_add_u32 s49, s49, {WQKV}
    s_branch L_k0_typeA
    {L13}:
    s_sub_u32 s50, s2, 48          ; j = fg*7+t
    s_lshl_b32 s42, s50, 5
    s_mov_b32 s43, s42
    s_mov_b32 s41, 3584
    s_mov_b32 s8, s28
    s_and_b32 s9, s29, 0xffff
    s_mov_b32 s10, {512*1792*2}
    s_mov_b32 s12, s30
    s_and_b32 s13, s31, 0xffff
    s_mov_b32 s14, {512*1792*2}
    s_mul_i32 s49, s50, {SLAB33}
    s_add_u32 s49, s49, {W13}
    L_k0_typeA:
    s_lshl_b32 s46, s44, 10
    s_add_u32 s46, s46, s49
    s_add_u32 s49, s49, {32*1024}
    s_branch {Ljob}
    {Lo}:
    s_sub_u32 s50, s2, 160         ; j: cb = j>>1, t = j&1
    s_lshl_b32 s42, s50, 6
    s_add_u32 s43, s42, 32
    s_mov_b32 s41, 1024
    s_mov_b32 s8, s24
    s_and_b32 s9, s25, 0xffff
    s_mov_b32 s10, {512*512*2}
    s_mov_b32 s12, s8
    s_mov_b32 s13, s9
    s_mov_b32 s14, s10
    s_mov_b32 s48, 0
    s_mov_b32 s47, 4096
    s_lshr_b32 s51, s50, 1         ; cb
    s_and_b32 s52, s50, 1          ; t
    s_lshl_b32 s46, s51, 16
    s_add_u32 s46, s46, {WO}
    s_and_b32 s53, s33, 1
    s_lshl_b32 s53, s53, 5         ; (8*(w&1))*4
    s_lshr_b32 s54, s33, 1
    s_lshl_b32 s54, s54, 1         ; kh*2
    s_add_u32 s53, s53, s54
    s_add_u32 s53, s53, s52
    s_lshl_b32 s53, s53, 10
    s_add_u32 s46, s46, s53
    s_branch {Ljob}
    {L2}:
    s_sub_u32 s50, s2, 176         ; j: cb = j>>3, t = (j>>2)&1, q = j&3
    s_lshr_b32 s51, s50, 2         ; cb*2+t
    s_lshl_b32 s42, s51, 6
    s_add_u32 s43, s42, 32
    s_mov_b32 s41, 1024
    s_mov_b32 s8, s26
    s_and_b32 s9, s27, 0xffff
    s_mov_b32 s10, {1792*512*2}
    s_mov_b32 s12, s8
    s_mov_b32 s13, s9
    s_mov_b32 s14, s10
    s_mov_b32 s48, 0
    s_mov_b32 s47, 4096
    s_mov_b32 s45, 7
    s_and_b32 s52, s50, 3          ; q
    s_mul_i32 s44, s52, 28
    s_mul_i32 s53, s33, 7
    s_add_u32 s44, s44, s53        ; kb0 = 28q + 7w
    s_lshr_b32 s54, s52, 1         ; kh
    s_mul_i32 s55, s54, 56
    s_sub_u32 s55, s44, s55
    s_lshl_b32 s55, s55, 2
    s_lshl_b32 s54, s54, 1
    s_add_u32 s55, s55, s54
    s_and_b32 s54, s51, 1
    s_add_u32 s55, s55, s54        ; idx0
    s_lshl_b32 s55, s55, 10
    s_lshr_b32 s54, s51, 1         ; cb
    s_mul_i32 s54, s54, {224*1024}
    s_add_u32 s46, s54, s55
    s_add_u32 s46, s46, {W2}
    {Ljob}:
    ''')
    E.e('''
    v_lshrrev_b32 v4, 2, v0
    v_mul_lo_u32 v4, v4, s41
    v_and_b32 v5, 1, v0
    v_lshlrev_b32 v5, 4, v5
    v_add_u32 v4, v4, v5
    v_add_u32 v5, s43, v4
    v_add_u32 v4, s42, v4
    s_lshl_b32 s56, s41, 4         ; 16 rows
    s_mul_i32 s57, s44, s56
    s_lshl_b32 s58, s33, 13
    s_mov_b32 s60, 0x33333333
    s_mov_b32 s61, 0x33333333
    s_mov_b32 s62, 0xcccccccc
    s_mov_b32 s63, 0xcccccccc
    ''')
    for (vo, srd, m) in ((4, 's[8:11]', 's[60:61]'), (5, 's[12:15]', 's[62:63]')):
        E.e(f's_mov_b64 exec, {m}')
        E.e('s_mov_b32 s59, s57')
        for f in range(8):
            if f == 7:
                E.e('s_cmp_eq_u32 s45, 7'); E.e(f's_cbranch_scc1 L_k0_skip{vo}')
            E.e(f's_add_u32 m0, s58, {f*1024}')
            E.e('s_nop 0')
            E.vmem(f'buffer_load_dwordx4 v{vo}, {srd}, s59 offen lds', 'w')
            E.e('s_add_u32 s59, s59, s56')
        E.e(f'L_k0_skip{vo}:')
    E.e('s_mov_b64 exec, -1')
    E.e('''
    v_lshrrev_b32 v6, 5, v0
    v_lshlrev_b32 v6, 2, v6
    v_and_b32 v7, 15, v0
    v_lshrrev_b32 v7, 2, v7
    v_add_u32 v6, v6, v7
    v_lshlrev_b32 v6, 6, v6
    v_lshrrev_b32 v7, 4, v0
    v_and_b32 v7, 1, v7
    v_lshlrev_b32 v7, 5, v7
    v_add_u32 v6, v6, v7
    v_and_b32 v7, 3, v0
    v_lshlrev_b32 v7, 3, v7
    v_add_u32 v6, v6, v7
    v_add_u32 v6, s58, v6
    v_mov_b32 v20, 0x3f803f80
    v_mov_b32 v21, 0x3f803f80
    v_mov_b32 v22, 0x3f803f80
    v_mov_b32 v23, 0x3f803f80
    ''')
    E.e('s_waitcnt vmcnt(0)'); E.vm = []
    W = 64
    for f in range(8):
        E.ds(f'ds_read_b64_tr_b16 v[{W+4*f}:{W+4*f+1}], v6 offset:{f*1024}', f'w{f}') if f < 7 else None
        E.ds(f'ds_read_b64_tr_b16 v[{W+4*f+2}:{W+4*f+3}], v6 offset:{f*1024+512}', f'w{f}') if f < 7 else None
    E.wait_lg_all()
    for f in range(7):
        E.e(f'buffer_store_dwordx4 v[{W+4*f}:{W+4*f+3}], v1, s[4:7], s46 offen sc1')
        E.e('s_add_u32 s46, s46, s47')
        E.e(f'v_mfma_f32_32x32x16_bf16 v[32:47], v[20:23], v[{W+4*f}:{W+4*f+3}], ' + ('0' if f == 0 else 'v[32:47]'))
    E.e('s_cmp_eq_u32 s45, 7')
    E.e('s_cbranch_scc1 L_k0_no8')
    E.e(f'ds_read_b64_tr_b16 v[{W+28}:{W+29}], v6 offset:{7*1024}')
    E.e(f'ds_read_b64_tr_b16 v[{W+30}:{W+31}], v6 offset:{7*1024+512}')
    E.e('s_waitcnt lgkmcnt(0)')
    E.e(f'buffer_store_dwordx4 v[{W+28}:{W+31}], v1, s[4:7], s46 offen sc1')
    E.e(f'v_mfma_f32_32x32x16_bf16 v[32:47], v[20:23], v[{W+28}:{W+31}], v[32:47]')
    E.e('L_k0_no8:')
    E.e('''
    s_nop 15
    v_lshlrev_b32 v7, 2, v0
    s_lshl_b32 s59, s33, 8
    v_add_u32 v24, s59, v7
    v_add_u32 v24, 32768, v24
    ds_write_b32 v24, v32
    s_waitcnt lgkmcnt(0)
    s_barrier
    s_cmp_eq_u32 s48, 0
    s_cbranch_scc1 L_k0_none2
    s_cmp_lg_u32 s33, 0
    s_cbranch_scc1 L_k0_none2
    v_add_u32 v24, 32768, v7
    ds_read_b32 v25, v24
    ds_read_b32 v26, v24 offset:256
    ds_read_b32 v27, v24 offset:512
    ds_read_b32 v28, v24 offset:768
    s_waitcnt lgkmcnt(0)
    v_add_f32 v25, v25, v26
    v_add_f32 v27, v27, v28
    v_add_f32 v25, v25, v27
    v_cvt_pk_bf16_f32 v26, v25, v25
    v_lshlrev_b32 v26, 16, v26
    v_sub_f32 v26, v25, v26
    v_cvt_pk_bf16_f32 v28, v25, v26
    v_cmp_gt_u32 vcc, 32, v0
    s_nop 1
    v_cndmask_b32 v28, 0, v28, vcc
    v_mov_b32 v30, 0
    v_mov_b32 v31, 0
    v_mov_b32 v29, v28
    buffer_store_dwordx4 v[28:31], v1, s[4:7], s49 offen sc1
    s_branch L_k0_none2
    L_k0_none:
    ''')
    if codepf:
        E.e(f'''
        s_cmp_lg_u32 s2, 254
        s_cbranch_scc1 L_k0_nocode
        s_getpc_b64 s[92:93]
        L_k0_pc:
        s_add_u32 s92, s92, L_k1_pc-L_k0_pc
        s_addc_u32 s93, s93, 0
        s_lshl_b32 s59, s33, 6
        v_add_u32 v24, s59, v0
        v_lshlrev_b32 v24, 7, v24
        s_mov_b32 s59, L_k1_last-L_k1_pc
        v_min_u32 v24, s59, v24
        global_load_dword v25, v24, s[92:93]
        L_k0_nocode:
        ''')
    E.e(f'''
    s_cmp_lg_u32 s2, 255
    s_cbranch_scc1 L_k0_none2
    v_mov_b32 v28, 0
    v_mov_b32 v29, 0
    v_mov_b32 v30, 0
    v_mov_b32 v31, 0
    s_lshl_b32 s59, s33, 12
    ''')
    for i in range(4):
        E.e(f'buffer_store_dwordx4 v[28:31], v1, s[4:7], s59 offen offset:{1024*i} sc1')
    E.e('L_k0_none2:')
    E.e('s_waitcnt vmcnt(0)'); E.vm = []
    E.e(f'''
    s_lshl_b32 s59, s38, 15
    s_lshl_b32 s40, s35, 2
    s_lshl_b32 s50, s37, 1
    s_add_u32 s40, s40, s50
    s_lshl_b32 s40, s40, 10
    s_add_u32 s59, s59, s40
    s_add_u32 s59, s59, {XF0}
    buffer_store_dwordx4 v[8:11], v1, s[4:7], s59 offen sc1
    buffer_store_dwordx4 v[12:15], v1, s[4:7], s59 offen offset:1024 sc1
    ''')
    X = list(range(96, 112))
    for i in range(8):
        E.e(f'v_lshlrev_b32 v{X[2*i]}, 16, v{XR+i}')
        E.e(f'v_and_b32 v{X[2*i+1]}, 0xffff0000, v{XR+i}')
    stats32(E, X, (112, 113, 114, 115), 116, 117)
    E.e(f'''
    s_lshl_b32 s59, s38, 12        ; blk*4096
    s_lshr_b32 s40, s35, 1
    s_lshl_b32 s40, s40, 10        ; (cb>>1)*1024
    s_add_u32 s59, s59, s40
    s_and_b32 s40, s35, 1
    s_lshl_b32 s40, s40, 9         ; (cb&1)*512
    s_add_u32 s59, s59, s40
    s_lshl_b32 s40, s37, 3         ; t*8
    s_add_u32 s59, s59, s40
    s_add_u32 s59, s59, {ST0}
    v_and_b32 v2, 31, v0
    v_lshlrev_b32 v2, 4, v2
    buffer_store_dwordx2 v[116:117], v2, s[4:7], s59 offen sc1
    ''')
    if dbgclk:
        E.e('''
        s_waitcnt vmcnt(0)
        s_memrealtime s[90:91]
        s_waitcnt lgkmcnt(0)
        s_lshl_b32 s59, s2, 3
        s_add_u32 s59, s59, 0x3100000
        v_mov_b32 v10, s88
        v_mov_b32 v11, s90
        v_mov_b32 v12, 0
        buffer_store_dwordx2 v[10:11], v12, s[4:7], s59 offen sc1
        ''')
    E.e('''
    L_k0_end:
    s_endpgm
    ''')
    return E
```

```python
from emit import *
from layout import *
from k0 import stats32

SLOT = SLAB33
MISC = 4 * SLOT
L_RS = MISC
L_KVS = MISC + 1024
L_KVF = MISC + 10240
L_XCH = MISC + 1024
LDS_BYTES = 163840
TS_OFF = 0x3000000

S_W, S_C, S_M, S_L, S_MODE, S_STEP = 12, 13, 14, 15, 16, 17
S_SLOT = 20
S_W8K = 24
S_WQ, S_WO, S_W13, S_W2 = 25, 26, 27, 28
S_XF, S_ST, S_LB = 29, 30, 31
S_RH, S_KH, S_R64, S_CB, S_SBW = 32, 33, 34, 35, 36
S_FLOFF = 37
S_B, S_E = 38, 39
S_T = 40
S_TSN = 64
V_LANE, V_L16 = 0, 1
V_SLOT = 2
V_L8 = 6
V_S8 = 7
V_FLAG = 8
V_T0 = 9
ACC = [16, 32, 48]
WF = 208
A_RSW, A_RSR, A_KVW, A_ZW, A_RED, A_KZ0, A_KZ1, A_XW, A_XR, A_FA = range(64, 74)
AUG = 74
AQ = (84, 204)
S_XD, S_SD, S_OD, S_HD, S_KP, S_KG, S_FAW, S_FAR, S_OUT = range(82, 91)
RES = 88
WF8 = 208
PQ = 96
V_R, V_C1, V_C2 = 104, 105, 106
MF = 108
ONES = 112
ST = 116
T = 132
V_PF = 250
LOG2E = 0x3fb8aa3b
NLOG2E = 0xbfb8aa3b
EPS_PHI = 0x358637bd
EPS_LN = 0x3727c5ac

DEFAULT_PF = {}

class Fill:
    def __init__(self, E): self.E = E; self.q = []
    def add(self, *items):
        for it in items:
            if isinstance(it, str):
                for l in it.strip('\n').split('\n'):
                    l = l.strip()
                    if l: self.q.append(l)
            else: self.q.append(it)
    def pump(self, n):
        while n > 0 and self.q:
            it = self.q.pop(0)
            if isinstance(it, str): self.E.e(it)
            else: it()
            n -= 1
    def flush(self): self.pump(10 ** 9)

class K1:
    def __init__(self, name, stop=None, ts=False, spin=1 << 22, nodma=False, noact=False, tiles_ts=False, ts_wave=0, **opt):
        self.E = Em(name, vgpr=256, agpr=256, sgpr=100)
        self.stop = stop; self.ts = ts; self.spin = spin; self.nodma = nodma; self.noact = noact; self.tiles_ts = tiles_ts; self._prev = None; self._last_idx = None; self.ts_wave = ts_wave; self.opt = opt
    def stamp(self, idx):
        if not self.ts: return
        E = self.E
        E.e('s_waitcnt lgkmcnt(0)'); E.lg = []
        E.e(f'v_writelane_b32 v255, s66, {self._prev}')
        E.e('s_memtime s[66:67]')
        self._prev = idx
    def stamp_flush(self):
        if not self.ts: return
        E = self.E; L = E.label('tsf')
        E.e('s_memrealtime s[80:81]')
        E.e('s_waitcnt lgkmcnt(0)')
        E.e(f'v_writelane_b32 v255, s66, {self._prev}')
        E.e('v_writelane_b32 v255, s96, 40'); E.e('v_writelane_b32 v255, s80, 41'); E.e('v_writelane_b32 v255, s98, 42')
        E.e(f's_cmp_lg_u32 s{S_W}, {self.ts_wave}'); E.e(f's_cbranch_scc1 {L}')
        E.e(f's_lshl_b32 s68, s2, 9'); E.e(f's_add_u32 s68, s68, {TS_OFF}')
        E.e(f'v_lshlrev_b32 v{V_T0}, 2, v{V_LANE}')
        E.e(f'buffer_store_dword v254, v{V_T0}, s[4:7], s68 offen')
        E.e(f'buffer_store_dword v255, v{V_T0}, s[4:7], s68 offen offset:256')
        E.e(f's_lshl_b32 s68, s2, 8'); E.e(f's_add_u32 s68, s68, {TS_OFF + 0x40000}')
        E.e(f'buffer_store_dword v253, v{V_T0}, s[4:7], s68 offen')
        E.place(L)
    def dma(self, p, src_sreg, src_imm, nfr):
        E = self.E; n = 8
        if self.nodma: return
        a, b = S_T, S_T + 1
        E.e(f's_add_u32 s{a}, s{S_SLOT + p % 4}, s{S_W8K}')
        E.e(f's_add_u32 s{b}, s{src_sreg}, s{S_W8K}')
        if src_imm: E.e(f's_add_u32 s{b}, s{b}, {src_imm}')
        for g in range(0, n, 4):
            if g == 0: E.e(f's_mov_b32 m0, s{a}')
            else:
                E.e(f's_add_u32 m0, s{a}, {g * 1024}')
                E.e(f's_add_u32 s{b}, s{b}, 4096')
            if g == 0: E.e('s_nop 0')
            for k in range(min(4, n - g)):
                E.vmem(f'buffer_load_dwordx4 v{V_L16}, s[4:7], s{b} offen offset:{k * 1024} lds', f'slab{p}')
    def dma_items(self, p, src_sreg, src_imm, nfr):
        E = self.E; n = 8
        if self.nodma: return []
        a, b = S_T + 2, S_T + 3
        it = [f's_add_u32 s{a}, s{S_SLOT + p % 4}, s{S_W8K}', f's_add_u32 s{b}, s{src_sreg}, s{S_W8K}']
        if src_imm: it.append(f's_add_u32 s{b}, s{b}, {src_imm}')
        for g in range(0, n, 4):
            if g == 0: it.append(f's_mov_b32 m0, s{a}'); it.append('s_nop 0')
            else:
                it.append(f's_add_u32 m0, s{a}, {g * 1024}'); it.append(f's_add_u32 s{b}, s{b}, 4096')
            for k in range(min(4, n - g)):
                it.append((lambda k=k: E.vmem(f'buffer_load_dwordx4 v{V_L16}, s[4:7], s{b} offen offset:{k * 1024} lds', f'slab{p}')))
        return it
    def dma_units(self, p, src_sreg, src_imm, nfr):
        E = self.E; n = 8
        if self.nodma: return []
        a, b = S_T + 2, S_T + 3
        us = []
        for k in range(n):
            def u(k=k):
                if k == 0:
                    E.e(f's_add_u32 s{a}, s{S_SLOT + p % 4}, s{S_W8K}'); E.e(f's_add_u32 s{b}, s{src_sreg}, s{S_W8K}')
                    if src_imm: E.e(f's_add_u32 s{b}, s{b}, {src_imm}')
                    E.e(f's_mov_b32 m0, s{a}'); E.e('s_nop 0')
                elif k % 4 == 0:
                    E.e(f's_add_u32 m0, s{a}, {k * 1024}'); E.e(f's_add_u32 s{b}, s{b}, 4096')
                E.vmem(f'buffer_load_dwordx4 v{V_L16}, s[4:7], s{b} offen offset:{(k % 4) * 1024} lds', f'slab{p}')
            u.tag = f'slab{p}'
            us.append(u)
        return us
    def pf_units(self, src_sreg, src_imm, nbytes, parts):
        E = self.E
        if self.nodma or not self.opt.get('pf', True): return []
        piece = nbytes // parts; per_wave = piece // 4; lines = -(-per_wave // 128)
        assert lines <= 64
        def u():
            idx = 55 if parts == 2 else 56
            E.e(f's_mul_i32 s58, s{idx}, {piece}')
            E.e(f's_mul_i32 s59, s{S_W}, {per_wave}')
            E.e(f's_add_u32 s58, s58, s59')
            E.e(f's_add_u32 s58, s58, s{src_sreg}')
            if src_imm: E.e(f's_add_u32 s58, s58, {src_imm}')
            E.e(f'v_min_u32 v{V_PF}, {lines - 1}, v{V_LANE}')
            E.e(f'v_lshlrev_b32 v{V_PF}, 7, v{V_PF}')
            E.vmem(f'buffer_load_dword v{V_PF + 1}, v{V_PF}, s[4:7], s58 offen', 'pf')
        u.tag = 'pf'
        return [u]
    def stage_units(self, src_sreg, src_imm, areg):
        E = self.E
        if self.nodma: return []
        us = []
        for k in range(8):
            def u(k=k):
                if k == 0:
                    E.e(f's_add_u32 s57, s{src_sreg}, s{S_W8K}')
                    if src_imm: E.e(f's_add_u32 s57, s57, {src_imm}')
                elif k % 4 == 0: E.e('s_add_u32 s57, s57, 4096')
                pin = self.opt.get('pin', True)
                if pin: E.e('s_mov_b64 exec, s[94:95]')
                E.vmem(f'buffer_load_dwordx4 a[{areg + 4 * k}:{areg + 4 * k + 3}], v{V_L16}, s[4:7], s57 offen offset:{(k % 4) * 1024}', f'stg{areg}')
                if pin: E.e('s_mov_b64 exec, -1')
            u.tag = f'stg{areg}'
            us.append(u)
        return us
    def unstage_items(self, p, areg, vtmp):
        E = self.E
        if self.nodma: return []
        def first():
            E.wait_vm(f'stg{areg}')
            E.e(f'v_add_u32 v{vtmp}, s{S_W8K}, v{V_SLOT + p % 4}')
        its = [first]
        def wr(k):
            if len(E.lg) >= 14:
                E.e('s_waitcnt lgkmcnt(7)'); E.lg = E.lg[-7:]
            E.ds(f'ds_write_b128 v{vtmp}, a[{areg + 4 * k}:{areg + 4 * k + 3}] offset:{k * 1024}', f'us{p}')
        for k in range(8): its.append(lambda k=k: wr(k))
        return its
    def pinv(self):
        sel = self.opt.get('pinv', 'V')
        return [(0, 19, 172)] if sel == 'K' else [(1, 20, 172)] if sel == 'V' else []
    def copy_out_items(self, p, reg):
        E = self.E
        its = [lambda: E.e(f'v_add_u32 v248, s{S_W8K}, v{V_SLOT + p % 4}')]
        for k in range(8):
            its.append(lambda k=k: E.ds(f'ds_read_b128 v[{reg + 4 * k}:{reg + 4 * k + 3}], v248 offset:{k * 1024}', f'co{p}'))
        return its
    def copy_in(self, p, reg):
        E = self.E
        E.e(f'v_add_u32 v248, s{S_W8K}, v{V_SLOT + p % 4}')
        for k in range(8):
            if len(E.lg) >= 14: E.e('s_waitcnt lgkmcnt(7)'); E.lg = E.lg[-7:]
            E.ds(f'ds_write_b128 v248, v[{reg + 4 * k}:{reg + 4 * k + 3}] offset:{k * 1024}', f'us{p}')
    def staged(self, what): return what in self.opt.get('stage', 'W')
    def pf_site(self, site):
        plan = self.opt.get('pfplan', DEFAULT_PF)
        us = []
        for nm in plan.get(site, []):
            k, i = nm[0], int(nm[1:]) if len(nm) > 1 else 0
            if k == 'T': us += self.pf_units(S_W13, i * SLAB33, SLAB33, 2)
            elif k == 'W': us += self.pf_units(S_W2, i * 32768, 32768, 4)
            elif k == 'O': us += self.pf_units(S_WO, i * 32768, 32768, 4)
            elif k == 'A': us += self.pf_units(S_WQ, i * SLAB33, SLAB33, 2)
        return us
    def frag_units(self, n, areg0, tag, first=0, sreg=44, base=None):
        E = self.E
        if self.noact: return []
        us = []
        for i in range(n):
            def u(i=i):
                if i == 0 and base: base()
                if i and i % 4 == 0: E.e(f's_add_u32 s{sreg}, s{sreg}, 4096')
                ar = areg0 + 4 * (i % 32)
                E.vmem(f'buffer_load_dwordx4 a[{ar}:{ar + 3}], v{V_L16}, s[4:7], s{sreg} offen offset:{(i % 4) * 1024} sc1', f'{tag}{first + i}')
            us.append(u)
        return us
    def stats_units(self):
        E = self.E; us = []
        for i in range(4):
            def u(i=i):
                if i == 0: E.e(f's_lshl_b32 s52, s{S_W}, 12'); E.e(f's_add_u32 s52, s52, s{S_ST}')
                E.vmem(f'buffer_load_dwordx4 v[{ST + 4 * i}:{ST + 4 * i + 3}], v{V_L16}, s[4:7], s52 offen offset:{1024 * i} sc1', 'stats')
            us.append(u)
        return us
    def load_frags(self, n, areg0, soff_setup, tag, first=0):
        E = self.E
        if self.noact: return
        for i in range(n):
            if i and i % 4 == 0: E.e('s_add_u32 s44, s44, 4096')
            E.vmem(f'buffer_load_dwordx4 a[{areg0 + 4 * i}:{areg0 + 4 * i + 3}], v{V_L16}, s[4:7], s44 offen offset:{(i % 4) * 1024} sc1', f'{tag}{first + i}')
    def store_act(self, items, kind='x'):
        E = self.E
        if kind not in self.opt.get('plain', 'x'):
            for s in items: E.vmem(s + ' sc1', 'st')
            return
        Ls = E.label('st'); Ld = E.label('sd')
        E.e(f's_cmp_lg_u32 s{S_MODE}, 0'); E.e(f's_cbranch_scc1 {Ls}')
        for s in items: E.e(s)
        E.e(f's_branch {Ld}'); E.place(Ls)
        for s in items: E.e(s + ' sc1')
        E.place(Ld)
        for s in items: E.vm.append('st')
    def poll(self, off_sreg, val_sreg, code):
        E = self.E; Lp = E.label('poll'); Lx = E.label('pollx'); Lt = E.label('pollt')
        E.e(f'''
        s_mov_b32 s46, 0
        {Lp}:
        s_add_u32 s46, s46, 1
        s_cmp_gt_u32 s46, {self.spin}
        s_cbranch_scc1 {Lt}
        buffer_load_dword v{V_T0}, v{V_FLAG}, s[4:7], s{off_sreg} offen sc1
        s_waitcnt vmcnt(0)
        v_subrev_u32 v{V_T0 + 1}, s{val_sreg}, v{V_T0}
        v_cmp_le_u32 vcc, 8, v{V_T0 + 1}
        s_cbranch_vccnz {Lp}
        s_branch {Lx}
        {Lt}:
        s_mov_b32 s{S_MODE + 2}, {code}
        {Lx}:
        ''')
    def hop_local(self):
        E = self.E; L = E.label('hop'); Ls = E.label('fs'); Ld = E.label('fd')
        if 'st' in E.vm: E.wait_vm('st')
        else: E.wait_vm_all(force=True)
        self._left = list(E.vm)
        E.wait_lg_all()
        E.barrier()
        E.e(f'''
        s_add_u32 s{S_STEP}, s{S_STEP}, 1
        s_cmp_lg_u32 s{S_W}, 0
        s_cbranch_scc1 {L}
        s_lshl_b32 s45, s{S_M}, 2
        s_add_u32 s45, s45, s{S_FLOFF}
        v_mov_b32 v{V_T0 + 1}, s{S_STEP}
        v_mov_b32 v{V_T0 + 2}, 0
        s_mov_b64 exec, 1
        s_cmp_lg_u32 s{S_MODE}, 0
        s_cbranch_scc1 {Ls}
        buffer_store_dword v{V_T0 + 1}, v{V_T0 + 2}, s[4:7], s45 offen
        s_branch {Ld}
        {Ls}:
        buffer_store_dword v{V_T0 + 1}, v{V_T0 + 2}, s[4:7], s45 offen sc1
        {Ld}:
        s_mov_b64 exec, -1
        ''')
        if self.opt.get('allpoll'):
            E.place(L)
            self.poll(S_FLOFF, S_STEP, 1)
        else:
            self.poll(S_FLOFF, S_STEP, 1)
            E.place(L)
            E.barrier()
    def stats_loads(self):
        E = self.E
        E.e(f's_lshl_b32 s44, s{S_W}, 12')
        E.e(f's_add_u32 s44, s44, s{S_ST}')
        for i in range(8):
            E.vmem(f'buffer_load_dwordx2 v[{ST + 2 * i}:{ST + 2 * i + 1}], v{V_L8}, s[4:7], s44 offen offset:{512 * i} sc1', 'stats')
    def stats_items(self, c1_sign):
        E = self.E; a, b, c, d = T, T + 1, T + 2, T + 3
        it = [lambda: E.wait_vm('stats')]
        it += [f'v_add_f32 v{a}, v{ST}, v{ST + 2}', f'v_add_f32 v{b}, v{ST + 4}, v{ST + 6}',
               f'v_add_f32 v{c}, v{ST + 1}, v{ST + 3}', f'v_add_f32 v{d}, v{ST + 5}, v{ST + 7}']
        for i in (4, 6):
            it += [f'v_add_f32 v{a}, v{a}, v{ST + 2 * i}', f'v_add_f32 v{b}, v{b}, v{ST + 2 * i + 2}',
                   f'v_add_f32 v{c}, v{c}, v{ST + 2 * i + 1}', f'v_add_f32 v{d}, v{d}, v{ST + 2 * i + 3}']
        it += [f'v_add_f32 v{a}, v{a}, v{b}', f'v_add_f32 v{c}, v{c}, v{d}', f'v_mov_b32 v{b}, v{a}', 's_nop 1',
               f'v_permlane32_swap_b32 v{a}, v{b}', f'v_add_f32 v{a}, v{a}, v{b}',
               f'v_mul_f32 v{a}, 0x3b000000, v{a}']
        it += [f'v_mov_b32 v{T + 4}, 0x3d000000']
        for i in range(8):
            it += [f'v_fma_f32 v{ST + 2 * i}, v{ST + 2 * i}, v{T + 4}, -v{a}']
        it += [f'v_mul_f32 v{b}, v{ST}, v{ST}', f'v_mul_f32 v{d}, v{ST + 2}, v{ST + 2}']
        for i in range(2, 8, 2):
            it += [f'v_fmac_f32 v{b}, v{ST + 2 * i}, v{ST + 2 * i}', f'v_fmac_f32 v{d}, v{ST + 2 * i + 2}, v{ST + 2 * i + 2}']
        it += [f'v_add_f32 v{b}, v{b}, v{d}', f'v_mov_b32 v{T + 4}, 0x42000000',
               f'v_fmac_f32 v{c}, v{T + 4}, v{b}',
               f'v_mov_b32 v{b}, v{c}', 's_nop 1' if False else f'v_sub_f32 v{a}, 0, v{a}', 's_nop 0',
               f'v_permlane32_swap_b32 v{c}, v{b}', f'v_add_f32 v{c}, v{c}, v{b}',
               f'v_mov_b32 v{d}, {EPS_LN:#x}',
               f'v_fmac_f32 v{d}, 0x3b000000, v{c}',
               f'v_cvt_pk_bf16_f32 v{MF}, v{a}, v{a}',
               f'v_rsq_f32 v{V_R}, v{d}',
               f'v_lshlrev_b32 v{b}, 16, v{MF}',
               f'v_sub_f32 v{b}, v{a}, v{b}',
               f'v_mul_f32 v{V_C1}, {(LOG2E if c1_sign > 0 else NLOG2E):#x}, v{V_R}',
               f'v_mov_b32 v{V_C2}, v{d}',
               f'v_cvt_pk_bf16_f32 v{MF + 1}, v{b}, v{b}']
        return it
    def init(self):
        E = self.E; single = self.opt.get('single', True)
        dbg = self.ts or self.opt.get('dbgclk')
        E.e(f'''
        s_cmp_ge_u32 s2, 256
        s_cbranch_scc1 L_k1_end
        {'s_memrealtime s[96:97]' if dbg else ''}
        {'s_memtime s[98:99]' if dbg else ''}
        s_load_dwordx2 s[4:5], s[0:1], 72
        s_load_dwordx2 s[8:9], s[0:1], 56
        {'s_load_dwordx4 s[76:79], s[0:1], 0' if single else 's_load_dwordx2 s[72:73], s[0:1], 64'}
        {'s_load_dwordx2 s[80:81], s[0:1], 16' if single else ''}
        {'s_load_dwordx4 s[84:87], s[0:1], 32' if single else ''}
        {'s_load_dwordx2 s[88:89], s[0:1], 48' if single else ''}
        v_lshrrev_b32 v9, 6, v0
        v_and_b32 v{V_LANE}, 63, v0
        v_readfirstlane_b32 s{S_W}, v9
        s_getreg_b32 s{S_MODE + 3}, hwreg(HW_REG_XCC_ID)
        s_and_b32 s{S_MODE + 3}, s{S_MODE + 3}, 7
        v_lshlrev_b32 v{V_L16}, 4, v{V_LANE}
        v_lshlrev_b32 v{V_L8}, 3, v{V_LANE}
        v_and_b32 v9, 31, v{V_LANE}
        v_lshlrev_b32 v{V_S8}, 3, v9
        v_and_b32 v9, 15, v{V_LANE}
        v_lshlrev_b32 v{V_FLAG}, 2, v9
        s_and_b32 s40, s2, 7
        s_lshr_b32 s41, s2, 3
        s_lshl_b32 s{S_C}, s40, 1
        s_lshr_b32 s42, s41, 4
        s_add_u32 s{S_C}, s{S_C}, s42
        s_and_b32 s{S_M}, s41, 15
        s_mov_b32 s{S_L}, 0
        s_mov_b32 s{S_MODE}, 0
        s_mov_b32 s{S_MODE + 2}, 0
        s_mov_b32 s{S_SLOT}, 0
        s_mov_b32 s{S_SLOT + 1}, {SLOT}
        s_mov_b32 s{S_SLOT + 2}, {2 * SLOT}
        s_mov_b32 s{S_SLOT + 3}, {3 * SLOT}
        s_lshl_b32 s{S_W8K}, s{S_W}, 13
        s_lshr_b32 s{S_R64}, s{S_M}, 3
        s_and_b32 s{S_CB}, s{S_M}, 7
        s_and_b32 s{S_RH}, s{S_W}, 1
        s_lshr_b32 s{S_KH}, s{S_W}, 1
        s_lshl_b32 s{S_SBW}, s{S_R64}, 1
        s_add_u32 s{S_SBW}, s{S_SBW}, s{S_RH}
        s_mul_i32 s{S_WQ}, s{S_M}, {3 * SLAB33}
        s_add_u32 s{S_WQ}, s{S_WQ}, {WQKV}
        s_lshl_b32 s{S_WO}, s{S_CB}, 16
        s_add_u32 s{S_WO}, s{S_WO}, {WO}
        s_mul_i32 s{S_W13}, s{S_M}, {7 * SLAB33}
        s_add_u32 s{S_W13}, s{S_W13}, {W13}
        s_mul_i32 s{S_W2}, s{S_CB}, {224 * 1024}
        s_add_u32 s{S_W2}, s{S_W2}, {W2}
        s_lshl_b32 s{S_XF}, s{S_C}, 17
        s_add_u32 s{S_XF}, s{S_XF}, {XF0}
        s_lshl_b32 s{S_ST}, s{S_C}, 14
        s_add_u32 s{S_ST}, s{S_ST}, {ST0}
        s_lshl_b32 s{S_FLOFF}, s{S_C}, 7
        s_add_u32 s{S_FLOFF}, s{S_FLOFF}, {FL}
        v_mov_b32 v{MF + 2}, 0
        v_mov_b32 v{MF + 3}, 0
        v_mov_b32 v{ONES}, 0x3f803f80
        v_mov_b32 v{ONES + 1}, 0x3f803f80
        v_mov_b32 v{ONES + 2}, 0x3f803f80
        v_mov_b32 v{ONES + 3}, 0x3f803f80
        s_waitcnt lgkmcnt(0)
        s_and_b32 s5, s5, 0xffff
        s_mov_b32 s6, {WS_BYTES}
        s_mov_b32 s7, 0x20000
        ''')
        if single:
            E.e(f'v_mov_b32 v9, {EPOCH}')
            E.vmem(f'buffer_load_dword v{T + 71}, v9, s[4:7], 0 offen sc1', 'epoch')
            if self.opt.get('tlbw'):
                E.e(f'v_min_u32 v10, 6, v{V_LANE}'); E.e('v_lshlrev_b32 v10, 21, v10')
                E.vmem(f'buffer_load_dword v{T + 70}, v10, s[4:7], 0 offen', 'tlb')
        E.e(f'''
        s_and_b32 s9, s9, 0xffff
        s_mov_b32 s10, {2048 * 512 * 2}
        s_mov_b32 s11, 0x20000
        ''')
        if self.ts: E.e('v_mov_b32 v253, 0')
        self.pstamp(0)
        if single: self.prep_issue()
        self.pstamp(1)
        if self.opt.get('codepf', False):
            E.e('s_getpc_b64 s[92:93]')
            E.place('L_k1_pc')
            E.e(f's_lshl_b32 s40, s{S_W}, 6')
            E.e(f'v_add_u32 v9, s40, v{V_LANE}')
            E.e(f'v_lshlrev_b32 v9, 7, v9')
            E.e('s_mov_b32 s40, L_k1_last-L_k1_pc')
            E.e('v_min_u32 v9, s40, v9')
            E.e(f'global_load_dword v{V_PF + 1}, v9, s[92:93]')
            E.vm.append('code')
        if single: self.prep_finish()
        E.e(f'''
        s_and_b32 s55, s{S_C}, 1
        s_lshl_b32 s56, s55, 1
        s_add_u32 s56, s56, s{S_R64}
        s_mov_b32 s94, -1
        s_mov_b32 s95, -1
        s_mul_i32 s53, s{S_KH}, 3072
        s_lshl_b32 s54, s{S_KH}, 10
        s_add_u32 s54, s54, 1024
        ''')
        for i in range(4): E.e(f'v_add_u32 v{V_SLOT + i}, s{S_SLOT + i}, v{V_L16}')
        E.e(f'''
        s_lshl_b32 s45, s{S_W}, 8
        s_add_u32 s45, s45, {L_RS}
        v_lshrrev_b32 v9, 1, v{V_S8}
        v_add_u32 v{A_RSW}, s45, v9
        v_lshrrev_b32 v10, 5, v{V_LANE}
        v_lshlrev_b32 v9, 4, v10
        v_add_u32 v{A_RSR}, s45, v9
        s_mul_i32 s45, s{S_W}, 2304
        s_add_u32 s45, s45, {L_KVS}
        v_and_b32 v9, 15, v{V_LANE}
        v_lshlrev_b32 v11, 4, v10
        v_add_u32 v9, v9, v11
        v_lshlrev_b32 v9, 5, v9
        v_and_b32 v11, 16, v{V_LANE}
        v_lshlrev_b32 v12, 6, v11
        v_add_u32 v12, v9, v12
        v_add_u32 v{A_KVW}, s45, v12
        v_lshlrev_b32 v12, 5, v10
        v_add_u32 v{A_ZW}, s45, v12
        v_add_u32 v12, 2048, v12
        v_cmp_eq_u32 vcc, 0, v11
        v_add_u32 v13, 1024, v9
        v_add_u32 v14, 64, v12
        v_cndmask_b32 v9, v12, v9, vcc
        v_cndmask_b32 v13, v14, v13, vcc
        v_add_u32 v{A_KZ0}, {L_KVF}, v9
        v_add_u32 v{A_KZ1}, {L_KVF}, v13
        s_lshl_b32 s45, s{S_W}, 10
        v_add_u32 v{A_RED}, s45, v{V_L16}
        s_lshl_b32 s45, s{S_W}, 12
        s_add_u32 s45, s45, {L_XCH}
        v_add_u32 v{A_XW}, s45, v{V_L16}
        s_xor_b32 s46, s{S_W}, 2
        s_lshl_b32 s46, s46, 12
        s_add_u32 s46, s46, {L_XCH}
        v_add_u32 v{A_XR}, s46, v{V_L16}
        v_lshlrev_b32 v{A_FA}, 2, v{V_LANE}
        v_lshlrev_b32 v{V_S8}, 1, v{V_S8}
        s_lshl_b32 s44, s{S_C}, 2
        s_add_u32 s44, s44, s{S_SBW}
        s_lshl_b32 s47, s44, 12
        s_lshl_b32 s44, s44, 15
        s_lshl_b32 s45, s{S_CB}, 2
        s_lshl_b32 s46, s{S_KH}, 1
        s_add_u32 s45, s45, s46
        s_lshl_b32 s45, s45, 10
        s_add_u32 s{S_XD}, s44, s45
        s_add_u32 s{S_XD}, s{S_XD}, {XF0}
        s_lshr_b32 s45, s{S_CB}, 1
        s_lshl_b32 s45, s45, 10
        s_add_u32 s47, s47, s45
        s_and_b32 s45, s{S_CB}, 1
        s_lshl_b32 s45, s45, 9
        s_add_u32 s47, s47, s45
        s_lshl_b32 s45, s{S_KH}, 3
        s_add_u32 s{S_SD}, s47, s45
        s_add_u32 s{S_SD}, s{S_SD}, {ST0}
        s_lshl_b32 s45, s{S_CB}, 7
        s_add_u32 s{S_OUT}, s44, s45
        s_lshl_b32 s45, s{S_KH}, 6
        s_add_u32 s{S_OUT}, s{S_OUT}, s45
        s_lshl_b32 s44, s{S_C}, 17
        s_lshl_b32 s45, s{S_W}, 15
        s_add_u32 s44, s44, s45
        s_lshl_b32 s45, s{S_M}, 11
        s_add_u32 s44, s44, s45
        s_add_u32 s{S_OD}, s44, {LB(0) + OF_}
        s_lshl_b32 s44, s{S_C}, 2
        s_add_u32 s44, s44, s{S_W}
        s_mul_i32 s44, s44, {112 * 1024}
        s_mul_i32 s45, s{S_M}, {7 * 1024}
        s_add_u32 s44, s44, s45
        s_add_u32 s{S_HD}, s44, {LB(0) + HF_}
        s_mul_i32 s{S_KG}, s{S_M}, {16 * KVP_STRIDE}
        s_add_u32 s{S_KG}, s{S_KG}, {LB(0) + KVP_}
        s_mul_i32 s45, s{S_C}, {KVP_STRIDE}
        s_add_u32 s{S_KP}, s{S_KG}, s45
        s_lshl_b32 s{S_FAR}, s{S_M}, 8
        s_add_u32 s{S_FAR}, s{S_FAR}, {FA}
        s_lshl_b32 s45, s{S_C}, 2
        s_add_u32 s45, s45, s{S_W}
        s_lshl_b32 s45, s45, 2
        s_add_u32 s{S_FAW}, s{S_FAR}, s45
        ''')
        if not single:
            E.e(f's_mov_b32 s{S_B}, 0')
        E.e(f's_mov_b32 s{S_STEP}, s{S_B}')
        E.e(f's_add_u32 s{S_MODE + 3}, s{S_MODE + 3}, s{S_B}'); E.e(f's_add_u32 s{S_MODE + 3}, s{S_MODE + 3}, 1')
        if single and self.opt.get('warm'):
            for q in range(4): E.e(f'v_mov_b32 v{140 + q}, 0')
            if 'o' in self.opt['warm']:
                for k in range(2): E.e(f'buffer_store_dwordx4 v[140:143], v{V_L16}, s[4:7], s{S_OD} offen offset:{1024 * k} sc1')
            if 'h' in self.opt['warm']:
                E.e(f's_mov_b32 s44, s{S_HD}')
                for k in range(7):
                    if k == 4: E.e('s_add_u32 s44, s44, 4096')
                    E.e(f'buffer_store_dwordx4 v[140:143], v{V_L16}, s[4:7], s44 offen offset:{1024 * (k % 4)} sc1')
        if single: self.prep_publish()
        else:
            L = E.label('reg')
            E.e(f'''
            s_cmp_lg_u32 s{S_W}, 0
            s_cbranch_scc1 {L}
            s_lshl_b32 s45, s{S_C}, 7
            s_lshl_b32 s46, s{S_M}, 2
            s_add_u32 s45, s45, s46
            s_add_u32 s45, s45, {REG}
            v_mov_b32 v10, s{S_MODE + 3}
            v_mov_b32 v11, 0
            s_mov_b64 exec, 1
            buffer_store_dword v10, v11, s[4:7], s45 offen sc1
            s_mov_b64 exec, -1
            {L}:
            ''')
        if single:
            AP = T + 0
            E.e(f'v_and_b32 v9, 31, v{V_LANE}'); E.e('v_lshlrev_b32 v9, 4, v9')
            E.e(f's_mul_i32 s44, s{S_M}, {3 * 512}'); E.e(f's_add_u32 s44, s44, {AUGP}')
            for i in range(10):
                if i == 3:
                    E.e(f's_mul_i32 s44, s{S_M}, {7 * 512}'); E.e(f's_add_u32 s44, s44, {AUGP + 48 * 512}')
                k = i if i < 3 else i - 3
                E.vmem(f'buffer_load_dwordx4 v[{AP + 4 * i}:{AP + 4 * i + 3}], v9, s[4:7], s44 offen offset:{k * 512}', 'augp')
        self.dma(0, S_WQ, 0, 33); self.dma(1, S_WQ, SLAB33, 33)
        if not single:
            for i in range(10):
                base, k = (S_WQ, i) if i < 3 else (S_W13, i - 3)
                E.e(f's_add_u32 s44, s{base}, {k * SLAB33 + 32 * 1024}')
                E.vmem(f'buffer_load_dword v{AUG + i}, v{V_L16}, s[4:7], s44 offen', 'aug')
        for q in AQ: E.e(f'v_mov_b32 v{q + 2}, 0'); E.e(f'v_mov_b32 v{q + 3}, 0')
        if not single:
            E.vmem(f'buffer_load_dwordx4 v[{RES}:{RES + 3}], v{V_L16}, s[4:7], s{S_XD} offen', 'res')
            E.vmem(f'buffer_load_dwordx4 v[{RES + 4}:{RES + 7}], v{V_L16}, s[4:7], s{S_XD} offen offset:1024', 'res')
    def pstamp(self, i):
        if not self.ts: return
        E = self.E
        E.e('s_memtime s[90:91]'); E.e('s_waitcnt lgkmcnt(0)'); E.e(f'v_writelane_b32 v253, s90, {i}')
    def aug_finish(self):
        E = self.E; AP = T + 0; L = E.label('aug')
        n = len(E.vm) - 1 - max(i for i, t in enumerate(E.vm) if t == 'augp')
        E.e(f's_cmp_lg_u32 s{S_L}, 0'); E.e(f's_cbranch_scc1 {L}')
        E.e(f's_waitcnt vmcnt({n})')
        for i in range(10):
            b = AP + 4 * i
            E.e(f'v_add_f32 v{b}, v{b}, v{b + 1}'); E.e(f'v_add_f32 v{b + 2}, v{b + 2}, v{b + 3}')
        for i in range(10): E.e(f'v_add_f32 v{AP + 4 * i}, v{AP + 4 * i}, v{AP + 4 * i + 2}')
        for i in range(10): E.e(f'v_cvt_pk_bf16_f32 v{AP + 4 * i + 1}, v{AP + 4 * i}, v{AP + 4 * i}')
        for i in range(10): E.e(f'v_lshlrev_b32 v{AP + 4 * i + 1}, 16, v{AP + 4 * i + 1}')
        for i in range(10): E.e(f'v_sub_f32 v{AP + 4 * i + 1}, v{AP + 4 * i}, v{AP + 4 * i + 1}')
        E.e(f'v_cmp_gt_u32 vcc, 32, v{V_LANE}')
        for i in range(10): E.e(f'v_cvt_pk_bf16_f32 v{AP + 4 * i}, v{AP + 4 * i}, v{AP + 4 * i + 1}')
        for i in range(10): E.e(f'v_cndmask_b32 v{AUG + i}, 0, v{AP + 4 * i}, vcc')
        E.place(L)
    def prep_issue(self):
        E = self.E
        E.e(f"""
        s_mov_b32 s72, s76
        s_and_b32 s73, s77, 0xffff
        s_mov_b32 s74, {2048*512*2}
        s_mov_b32 s75, 0x20000
        s_lshl_b32 s40, s{S_C}, 2
        s_add_u32 s40, s40, s{S_SBW}
        s_lshl_b32 s40, s40, 15
        s_lshl_b32 s41, s{S_CB}, 7
        s_add_u32 s40, s40, s41
        s_lshl_b32 s41, s{S_KH}, 6
        s_add_u32 s40, s40, s41
        v_and_b32 v134, 31, v{V_LANE}
        v_lshlrev_b32 v134, 10, v134
        v_lshrrev_b32 v135, 5, v{V_LANE}
        v_lshlrev_b32 v135, 3, v135
        v_add_u32 v134, v134, v135
        """)
        for i in range(4):
            E.vmem(f'buffer_load_dwordx2 v[{RES+2*i}:{RES+2*i+1}], v134, s[72:75], s40 offen offset:{16*i}', 'x')
        E.e(f"""
        s_mov_b32 s67, 0x20000
        s_mov_b32 s71, 0x20000
        s_lshl_b32 s58, s{S_W}, 13
        s_add_u32 s58, s58, {2 * SLOT}
        s_mov_b32 s45, 0
        s_mov_b32 s49, 0
        s_cmp_ge_u32 s2, 232
        s_cbranch_scc1 L_p_none
        s_mov_b32 s45, 1
        s_cmp_ge_u32 s2, 176
        s_cbranch_scc1 L_p_j2
        s_cmp_ge_u32 s2, 160
        s_cbranch_scc1 L_p_jo
        s_cmp_ge_u32 s2, 48
        s_cbranch_scc1 L_p_j13
        s_lshr_b32 s50, s2, 4
        s_lshr_b32 s51, s2, 1
        s_and_b32 s51, s51, 7
        s_and_b32 s52, s2, 1
        s_mov_b32 s64, s78
        s_and_b32 s65, s79, 0xffff
        s_mov_b32 s66, {512*1536*2}
        s_mov_b32 s41, 3072
        s_add_u32 s53, s50, 1
        s_cmp_eq_u32 s50, 2
        s_cselect_b32 s53, 0, s53
        s_lshl_b32 s53, s53, 10
        s_lshl_b32 s42, s51, 7
        s_add_u32 s42, s42, s53
        s_lshl_b32 s44, s52, 4             ; first kb of the job
        s_lshl_b32 s53, s{S_W}, 2
        s_add_u32 s44, s44, s53            ; first kb of the wave
        s_mul_i32 s53, s51, 6
        s_add_u32 s53, s53, s50
        s_mul_i32 s46, s53, {SLAB33}
        s_add_u32 s46, s46, {WQKV}
        s_lshl_b32 s54, s44, 10
        s_add_u32 s46, s46, s54
        s_mov_b32 s47, {3 * SLAB33}
        s_mov_b32 s48, 1024
        s_lshl_b32 s49, s53, 9
        s_lshl_b32 s54, s52, 3
        s_add_u32 s49, s49, s54
        s_add_u32 s49, s49, {AUGP}
        s_branch L_p_jobA
        L_p_jo:
        s_sub_u32 s50, s2, 160
        s_lshr_b32 s51, s50, 1             ; cb
        s_and_b32 s52, s50, 1              ; khalf
        s_mov_b32 s64, s80
        s_and_b32 s65, s81, 0xffff
        s_mov_b32 s66, {512*512*2}
        s_mov_b32 s41, 1024
        s_lshl_b32 s42, s51, 7
        s_lshl_b32 s44, s52, 4
        s_lshl_b32 s53, s{S_W}, 2
        s_add_u32 s44, s44, s53
        s_lshl_b32 s46, s51, 16
        s_add_u32 s46, s46, {WO}
        s_lshl_b32 s54, s{S_W}, 4          ; (4w)*4
        s_lshl_b32 s55, s52, 1
        s_add_u32 s54, s54, s55
        s_lshl_b32 s54, s54, 10
        s_add_u32 s46, s46, s54
        s_mov_b32 s47, 1024
        s_mov_b32 s48, 4096
        s_branch L_p_jobA
        L_p_j2:
        s_sub_u32 s50, s2, 176
        s_mul_i32 s51, s50, 9363
        s_lshr_b32 s51, s51, 16
        s_mul_i32 s52, s51, 7
        s_sub_u32 s52, s50, s52            ; kp
        s_mov_b32 s64, s88
        s_and_b32 s65, s89, 0xffff
        s_mov_b32 s66, {1792*512*2}
        s_mov_b32 s41, 1024
        s_lshl_b32 s42, s51, 7
        s_lshl_b32 s44, s52, 4
        s_lshl_b32 s53, s{S_W}, 2
        s_add_u32 s44, s44, s53            ; kb0
        s_cmp_ge_u32 s44, 56
        s_cselect_b32 s54, 56, 0
        s_cselect_b32 s55, 2, 0
        s_sub_u32 s54, s44, s54
        s_lshl_b32 s54, s54, 2
        s_add_u32 s54, s54, s55
        s_lshl_b32 s54, s54, 10
        s_mul_i32 s46, s51, {224*1024}
        s_add_u32 s46, s46, s54
        s_add_u32 s46, s46, {W2}
        s_mov_b32 s47, 1024
        s_mov_b32 s48, 4096
        L_p_jobA:
        v_lshrrev_b32 v136, 2, v{V_LANE}
        v_and_b32 v136, 7, v136
        v_mul_lo_u32 v136, v136, s41
        v_lshrrev_b32 v137, 5, v{V_LANE}
        v_lshlrev_b32 v137, 6, v137
        v_add_u32 v136, v136, v137
        v_and_b32 v137, 3, v{V_LANE}
        v_lshlrev_b32 v137, 4, v137
        v_add_u32 v136, v136, v137
        s_lshl_b32 s56, s41, 3             ; 8 rows
        s_mul_i32 s57, s44, s41
        s_lshl_b32 s57, s57, 4
        s_add_u32 s57, s57, s42
        """)
        for q in range(8):
            E.e(f's_add_u32 m0, s58, {q*1024}')
            E.e('s_nop 0')
            E.e('buffer_load_dwordx4 v136, s[64:67], s57 offen lds')
            if q < 7: E.e('s_add_u32 s57, s57, s56')
        E.e(f"""
        s_branch L_p_none
        L_p_j13:
        s_mov_b32 s45, 2
        s_sub_u32 s50, s2, 48
        s_lshr_b32 s51, s50, 2             ; g
        s_and_b32 s52, s50, 3              ; kq
        s_mov_b32 s64, s84
        s_and_b32 s65, s85, 0xffff
        s_mov_b32 s66, {512*1792*2}
        s_mov_b32 s68, s86
        s_and_b32 s69, s87, 0xffff
        s_mov_b32 s70, {512*1792*2}
        s_lshl_b32 s44, s52, 3
        s_lshl_b32 s53, s{S_W}, 1
        s_add_u32 s44, s44, s53
        s_mul_i32 s46, s51, {4 * SLAB33}
        s_add_u32 s46, s46, {W13}
        s_lshl_b32 s54, s44, 10
        s_add_u32 s46, s46, s54
        s_mov_b32 s47, {SLAB33}
        s_mov_b32 s48, 1024
        s_lshl_b32 s49, s51, 2
        s_add_u32 s49, s49, 48
        s_add_u32 s49, s49, s{S_W}
        s_lshl_b32 s49, s49, 9
        s_lshl_b32 s54, s52, 2
        s_add_u32 s49, s49, s54
        s_add_u32 s49, s49, {AUGP}
        v_lshrrev_b32 v136, 3, v{V_LANE}
        v_mul_u32_u24 v136, 3584, v136
        v_and_b32 v137, 7, v{V_LANE}
        v_lshlrev_b32 v137, 4, v137
        v_add_u32 v136, v136, v137
        s_mul_i32 s57, s44, {16 * 3584}
        s_lshl_b32 s54, s51, 7
        s_add_u32 s57, s57, s54
        """)
        for mtx, srd in ((0, 's[64:67]'), (1, 's[68:71]')):
            E.e('s_mov_b32 s59, s57')
            for q in range(4):
                E.e(f's_add_u32 m0, s58, {mtx * 4096 + q * 1024}')
                E.e('s_nop 0')
                E.e(f'buffer_load_dwordx4 v136, {srd}, s59 offen lds')
                if q < 3: E.e(f's_add_u32 s59, s59, {8 * 3584}')
        E.e('L_p_none:')
    def prep_finish(self):
        E = self.E
        W = 164
        X = list(range(140, 156))
        accs = [ACC[0], ACC[1], ACC[2], 140]
        E.e(f"""
        v_lshrrev_b32 v139, 5, v{V_LANE}
        v_lshlrev_b32 v139, 2, v139
        v_and_b32 v137, 15, v{V_LANE}
        v_lshrrev_b32 v137, 2, v137
        v_add_u32 v139, v139, v137           ; 4*hf + r
        v_lshrrev_b32 v137, 4, v{V_LANE}
        v_and_b32 v137, 1, v137
        v_and_b32 v135, 3, v{V_LANE}
        v_lshlrev_b32 v135, 3, v135          ; c*8
        v_lshlrev_b32 v138, 6, v139
        v_lshlrev_b32 v134, 5, v137
        v_add_u32 v138, v138, v134
        v_add_u32 v138, v138, v135
        v_add_u32 v138, s58, v138
        v_lshlrev_b32 v139, 7, v139
        v_lshlrev_b32 v134, 12, v137
        v_add_u32 v139, v139, v134
        v_add_u32 v139, v139, v135
        v_add_u32 v139, s58, v139            ; w1 / w3 image
        s_lshl_b32 s40, s{S_C}, 2
        s_add_u32 s40, s40, s{S_SBW}
        s_lshl_b32 s50, s40, 12
        s_lshl_b32 s40, s40, 15
        s_lshl_b32 s51, s{S_CB}, 2
        s_lshl_b32 s52, s{S_KH}, 1
        s_add_u32 s51, s51, s52
        s_lshl_b32 s51, s51, 10
        s_add_u32 s40, s40, s51
        s_add_u32 s40, s40, {XF0}
        s_lshr_b32 s51, s{S_CB}, 1
        s_lshl_b32 s51, s51, 10
        s_add_u32 s50, s50, s51
        s_and_b32 s51, s{S_CB}, 1
        s_lshl_b32 s51, s51, 9
        s_add_u32 s50, s50, s51
        s_lshl_b32 s51, s{S_KH}, 3
        s_add_u32 s50, s50, s51
        s_add_u32 s50, s50, {ST0}
        v_lshlrev_b32 v156, 1, v{V_S8}
        v_lshlrev_b32 v157, 2, v{V_LANE}
        """)
        xfirst = self.opt.get('xfirst', True)
        def xpart():
            E.e(f'v_readfirstlane_b32 s{S_E}, v{T + 71}')
            E.e(f'buffer_store_dwordx4 v[{RES}:{RES + 3}], v{V_L16}, s[4:7], s40 offen sc1')
            E.e(f'buffer_store_dwordx4 v[{RES + 4}:{RES + 7}], v{V_L16}, s[4:7], s40 offen offset:1024 sc1')
            XX = list(range(140, 156))
            for i in range(8):
                E.e(f'v_lshlrev_b32 v{XX[2*i]}, 16, v{RES+i}')
                E.e(f'v_and_b32 v{XX[2*i+1]}, 0xffff0000, v{RES+i}')
            stats32(E, XX, (196, 197, 198, 199), 200, 201)
            E.e('buffer_store_dwordx2 v[200:201], v156, s[4:7], s50 offen sc1')
        if xfirst:
            Lw = E.label('xw'); Lw2 = E.label('xw2')
            ncode = 1 if self.opt.get('codepf', False) else 0
            E.e(f's_cmp_eq_u32 s45, 0'); E.e(f's_cbranch_scc1 {Lw}')
            E.e(f's_waitcnt vmcnt({8 + ncode})'); E.e(f's_branch {Lw2}')
            E.place(Lw); E.e(f's_waitcnt vmcnt({ncode})'); E.place(Lw2)
            xpart()
            E.e('s_waitcnt vmcnt(3)')
            self.pstamp(2)
        else:
            E.e('s_waitcnt vmcnt(0)')
            self.pstamp(2)
            xpart()
        E.e(f"""
        s_cmp_eq_u32 s45, 0
        s_cbranch_scc1 L_p_now
        s_cmp_eq_u32 s45, 2
        s_cbranch_scc1 L_p_fB
        """)
        E.vm = []
        def body(vaddr, frs, nacc):
            for f, (o1, o2, t, k) in enumerate(frs):
                E.e(f'ds_read_b64_tr_b16 v[{W+4*f}:{W+4*f+1}], v{vaddr} offset:{o1}')
                E.e(f'ds_read_b64_tr_b16 v[{W+4*f+2}:{W+4*f+3}], v{vaddr} offset:{o2}')
                if f == 6: E.e('s_waitcnt lgkmcnt(6)')
            E.e('s_waitcnt lgkmcnt(0)')
            seen = set()
            for f, (o1, o2, t, k) in enumerate(frs):
                E.e(f's_mul_i32 s51, s47, {t}'); E.e(f's_mul_i32 s52, s48, {k}')
                E.e('s_add_u32 s51, s51, s52'); E.e('s_add_u32 s51, s51, s46')
                E.e(f'buffer_store_dwordx4 v[{W+4*f}:{W+4*f+3}], v{V_L16}, s[4:7], s51 offen sc1')
                a = accs[t]
                E.e(f'v_mfma_f32_32x32x16_bf16 v[{a}:{a+15}], v[{ONES}:{ONES+3}], v[{W+4*f}:{W+4*f+3}], ' + ('0' if t not in seen else f'v[{a}:{a+15}]'))
                seen.add(t)
            E.e('s_nop 15')
            E.e(f's_lshl_b32 s59, s{S_W}, 8')
            E.e('v_add_u32 v158, s59, v157')
            E.e(f'v_add_u32 v158, {L_XCH}, v158')
            for t in range(nacc): E.e(f'ds_write_b32 v158, v{accs[t]} offset:{t * 1024}')
            E.e('s_waitcnt lgkmcnt(0)')
        body(138, [(k * 2048 + t * 512, k * 2048 + t * 512 + 1024, t, k) for t in range(2) for k in range(4)], 2)
        E.e('s_branch L_p_now')
        E.e('L_p_fB:')
        body(139, [(k * 2048 + t * 32, k * 2048 + t * 32 + 1024, t, k) for t in range(4) for k in range(2)], 4)
        E.e(f"""
        L_p_now:
        s_barrier
        s_cmp_eq_u32 s49, 0
        s_cbranch_scc1 L_p_noaug
        s_cmp_eq_u32 s45, 2
        s_cbranch_scc1 L_p_augB
        s_cmp_ge_u32 s{S_W}, 2
        s_cbranch_scc1 L_p_noaug
        s_lshl_b32 s59, s{S_W}, 10
        s_mul_i32 s51, s{S_W}, {3 * 512}
        s_add_u32 s49, s49, s51
        s_branch L_p_augC
        L_p_augB:
        s_lshl_b32 s59, s{S_W}, 10
        L_p_augC:
        v_add_u32 v158, s59, v157
        v_add_u32 v158, {L_XCH}, v158
        ds_read_b32 v159, v158
        ds_read_b32 v160, v158 offset:256
        ds_read_b32 v161, v158 offset:512
        ds_read_b32 v162, v158 offset:768
        s_waitcnt lgkmcnt(0)
        v_add_f32 v159, v159, v160
        v_add_f32 v161, v161, v162
        v_add_f32 v160, v159, v161
        v_mov_b32 v161, 0
        s_cmp_eq_u32 s45, 2
        s_cbranch_scc1 L_p_augD
        buffer_store_dwordx2 v[160:161], v156, s[4:7], s49 offen sc1
        s_branch L_p_noaug
        L_p_augD:
        buffer_store_dword v160, v156, s[4:7], s49 offen sc1
        L_p_noaug:
        """)
        E.e(f's_add_u32 s{S_E}, s{S_E}, 1')
        E.e(f's_mul_i32 s{S_B}, s{S_E}, 0x9e3779b1')
        E.e(f's_and_b32 s{S_B}, s{S_B}, 0xfffffff0')
    def prep_publish(self):
        E = self.E; L = E.label('pp'); Lp = E.label('ppl'); Lt = E.label('ppt'); Lx = E.label('ppx')
        self.pstamp(3)
        E.e('s_waitcnt vmcnt(0)'); E.vm = []
        self.pstamp(4)
        E.e('s_barrier')
        E.e(f'''
        s_cmp_lg_u32 s{S_W}, 0
        s_cbranch_scc1 {L}
        s_lshl_b32 s45, s{S_C}, 7
        s_lshl_b32 s46, s{S_M}, 2
        s_add_u32 s45, s45, s46
        s_add_u32 s45, s45, {REG}
        s_lshl_b32 s46, s2, 6
        s_add_u32 s46, s46, {PF2}
        v_mov_b32 v10, s{S_MODE + 3}
        v_mov_b32 v11, 0
        s_add_u32 s47, s{S_B}, 1
        v_mov_b32 v12, s47
        s_mov_b64 exec, 1
        buffer_store_dword v10, v11, s[4:7], s45 offen sc1
        buffer_store_dword v12, v11, s[4:7], s46 offen sc1
        s_mov_b64 exec, -1
        ; per-lane flag address: 0..15 cluster members, 16..21 q/k/v jobs, 22..23 wo, 24..35 w1/w3, 36..42 w2
        s_lshl_b32 s45, s{S_C}, 7
        s_add_u32 s45, s45, {REG}
        v_lshlrev_b32 v13, 2, v{V_LANE}
        v_add_u32 v13, s45, v13
        v_subrev_u32 v15, 16, v{V_LANE}
        v_lshrrev_b32 v14, 1, v15
        v_lshlrev_b32 v14, 4, v14
        v_and_b32 v15, 1, v15
        v_add_u32 v14, v14, v15
        s_lshr_b32 s45, s{S_M}, 1
        s_lshl_b32 s45, s45, 1
        v_add_u32 v14, s45, v14
        s_lshl_b32 s45, s{S_CB}, 1
        s_add_u32 s45, s45, 160-22
        v_add_u32 v15, s45, v{V_LANE}
        v_cmp_le_u32 vcc, 22, v{V_LANE}
        s_nop 1
        v_cndmask_b32 v14, v14, v15, vcc
        s_mul_i32 s45, s{S_M}, 7
        s_lshr_b32 s45, s45, 2
        s_lshl_b32 s45, s45, 2
        s_add_u32 s45, s45, 48-24
        v_add_u32 v15, s45, v{V_LANE}
        v_min_u32 v15, 159, v15
        v_cmp_le_u32 vcc, 24, v{V_LANE}
        s_nop 1
        v_cndmask_b32 v14, v14, v15, vcc
        s_mul_i32 s45, s{S_CB}, 7
        s_add_u32 s45, s45, 176-36
        v_add_u32 v15, s45, v{V_LANE}
        v_cmp_le_u32 vcc, 36, v{V_LANE}
        s_nop 1
        v_cndmask_b32 v14, v14, v15, vcc
        v_lshlrev_b32 v14, 6, v14
        v_add_u32 v14, {PF2}, v14
        v_cmp_le_u32 vcc, 16, v{V_LANE}
        s_nop 1
        v_cndmask_b32 v13, v13, v14, vcc
        s_mov_b32 s62, -1
        s_mov_b32 s63, 0x7ff
        s_mov_b64 exec, s[62:63]
        s_mov_b32 s46, 0
        {Lp}:
        s_add_u32 s46, s46, 1
        s_cmp_gt_u32 s46, {self.spin}
        s_cbranch_scc1 {Lt}
        buffer_load_dword v{V_T0}, v13, s[4:7], 0 offen sc1
        s_waitcnt vmcnt(0)
        v_subrev_u32 v10, s47, v{V_T0}
        v_cmp_le_u32 vcc, 8, v10
        s_cbranch_vccz {Lx}
        {'s_sleep %d' % self.opt['psleep'] if self.opt.get('psleep') else ''}
        s_branch {Lp}
        {Lt}:
        s_mov_b32 s{S_MODE + 2}, 4
        {Lx}:
        s_mov_b32 s62, 0xffff
        s_mov_b32 s63, 0
        s_mov_b64 exec, s[62:63]
        v_cmp_ne_u32 vcc, s{S_MODE + 3}, v{V_T0}
        s_mov_b64 exec, -1
        s_cmp_lg_u64 vcc, 0
        s_cselect_b32 s47, 1, 0
        v_mov_b32 v10, s47
        v_mov_b32 v11, {L_KVF + 2240}
        ds_write_b32 v11, v10
        s_waitcnt lgkmcnt(0)
        {L}:
        s_barrier
        v_mov_b32 v11, {L_KVF + 2240}
        ds_read_b32 v10, v11
        s_waitcnt lgkmcnt(0)
        v_readfirstlane_b32 s{S_MODE}, v10
        ''')
        self.pstamp(5)
    def kouter(self, v0, v1, acc0, acc1, transposed, F, tail_units, aug, fine=None, pre_wait=None):
        E = self.E; D = self.opt.get('D', 10)
        xq = self.frag_units(32, 0, 'x', base=lambda: (E.e(f's_lshl_b32 s44, s{S_W}, 15'), E.e(f's_add_u32 s44, s44, s{S_XF}')))
        sq = self.stats_units()
        order = xq[:4] + sq + xq[4:]
        npro = min(len(order), D + 4)
        def rd(i):
            kb, j = divmod(i, 2)
            E.ds(f'ds_read_b128 v[{self.wfrag(i)}:{self.wfrag(i) + 3}], v{v0 if j == 0 else v1} offset:{kb * 1024}', f'w{i}')
        if pre_wait:
            for u in order[:npro]: u()
            if self.opt.get('single', True): self.aug_finish()
            for tag in pre_wait:
                if tag in E.vm: E.wait_vm(tag)
            E.e('s_barrier')
            for i in range(4): rd(i)
        else:
            for u in order[:2]: u()
            for i in range(4): rd(i)
            for u in order[2:npro]: u()
        q = order[npro:] + list(tail_units)
        ntail = len(tail_units)
        for kb in range(33):
            if kb + 2 < 32: rd(2 * kb + 4); rd(2 * kb + 5)
            if kb == 30:
                for j in range(2):
                    E.e(f'v_mov_b32 v{AQ[j]}, v{aug[j]}'); E.e(f'v_mov_b32 v{AQ[j] + 1}, v{aug[j]}')
            if q:
                n = 1 if len(q) > ntail else self.opt.get('tailrate', 2)
                for _ in range(min(n, len(q))): q.pop(0)()
            if kb < 32: E.wait_vm(f'x{kb}')
            if fine and kb in (0, 8, 16, 24): self.stamp(12 + kb // 8)
            if kb == 32: F.flush(); E.e('s_nop 1')
            if kb < 32: E.wait_lg(f'w{2 * kb + 1}')
            X = f'a[{4 * kb}:{4 * kb + 3}]' if kb < 32 else f'v[{MF}:{MF + 3}]'
            for j, acc in ((0, acc0), (1, acc1)):
                w = self.wfrag(2 * kb + j) if kb < 32 else AQ[j]; W = f'v[{w}:{w + 3}]'
                C = '0' if kb == 0 else f'v[{acc}:{acc + 15}]'
                A, B = (W, X) if transposed else (X, W)
                E.e(f'v_mfma_f32_32x32x16_bf16 v[{acc}:{acc + 15}], {A}, {B}, {C}')
                if kb >= 3: F.pump(2)
        for u in q: u()
    def wfrag(self, idx, ring=6): return (WF if ring == 6 else WF8) + 4 * (idx % ring)
    def phase_qkv(self):
        E = self.E; F = Fill(E)
        E.c('==== QKV ====')
        for (p, pn, reg) in self.pinv():
            for it in self.copy_out_items(p, reg): F.add(it, lambda: None)
        F.add(*self.stats_items(+1))
        R, RL = T + 8, T + 24
        F.add(lambda: E.ds(f'ds_write_b32 v{A_RSW}, v{V_R}', 'rs'), lambda: None,
              lambda: E.ds(f'ds_write_b32 v{A_RSW}, v{V_C1} offset:128', 'rs'), lambda: None)
        for i in range(4):
            F.add(lambda i=i: E.ds(f'ds_read_b128 v[{R + 4 * i}:{R + 4 * i + 3}], v{A_RSR} offset:{32 * i}', 'r'), lambda: None)
            F.add(lambda i=i: E.ds(f'ds_read_b128 v[{RL + 4 * i}:{RL + 4 * i + 3}], v{A_RSR} offset:{128 + 32 * i}', 'r'), lambda: None)
        F.add(f'v_mov_b32 v{T + 2}, {EPS_PHI:#x}', f'v_and_b32 v{T + 4}, 16, v{V_LANE}')
        a_k, a_v, a_q = ACC
        vK, vV, vQ = V_SLOT + 0, V_SLOT + 1, V_SLOT + 2
        qw = self.dma_units(2, S_WQ, 2 * SLAB33, 33) + self.dma_units(3, S_WO, 0, 32) + self.pf_site('qkvtail')
        self.kouter(vK, vV, a_k, a_v, False, F, qw, (AUG, AUG + 1), fine=self.opt.get('fine_q'), pre_wait=['slab0', 'slab1'])
        if self.opt.get('fine_q'): self.stamp(1)
        PK, PV = WF, WF + 8
        X1, X2 = ST, ST + 8
        D = a_q
        D2 = 240 - 0 if False else WF + 24
        E.e(f'v_cmp_eq_u32 vcc, 0, v{T + 4}')
        E.wait_lg_all()
        E.nop(11)
        sT = self.staged('T')
        t1s, t2s, t3s = self.opt.get('t1s', 'gat'), self.opt.get('t2s', 'wo'), self.opt.get('t3s', 'wo')
        def stg(site):
            us = []
            if sT:
                for nm, where, areg in ((1, t1s, 128), (2, t2s, 160), (3, t3s, 192)):
                    if where == site: us += self.stage_units(S_W13, nm * SLAB33, areg)
            return us
        self._stg = stg
        E.inject(stg('kvepi'), 10)
        for h in range(2):
            rr = range(8 * h, 8 * h + 8)
            for r in rr: E.e(f'v_mul_f32 v{X2 + r % 8}, v{a_k + r}, v{RL + r}')
            for r in rr: E.e(f'v_fma_f32 v{X1 + r % 8}, v{a_k + r}, v{R + r}, v{T + 2}')
            for r in rr: E.e(f'v_exp_f32 v{X2 + r % 8}, v{X2 + r % 8} clamp')
            for r in rr: E.e(f'v_max_f32 v{X1 + r % 8}, v{X1 + r % 8}, v{T + 2}')
            for r in rr: E.e(f'v_add_f32 v{X1 + r % 8}, v{X1 + r % 8}, v{X2 + r % 8}')
            for r in rr: E.e(f'v_mul_f32 v{X2 + r % 8}, v{a_v + r}, v{R + r}')
            for r in range(0, 8, 2): E.e(f'v_cvt_pk_bf16_f32 v{PK + 4 * h + r // 2}, v{X1 + r}, v{X1 + r + 1}')
            for r in range(0, 8, 2): E.e(f'v_cvt_pk_bf16_f32 v{PV + 4 * h + r // 2}, v{X2 + r}, v{X2 + r + 1}')
            E.nop(2)
            C1 = '0' if h == 0 else f'v[{D}:{D + 15}]'; C2 = '0' if h == 0 else f'v[{D2}:{D2 + 15}]'
            E.e(f'v_mfma_f32_32x32x16_bf16 v[{D}:{D + 15}], v[{PK + 4 * h}:{PK + 4 * h + 3}], v[{PV + 4 * h}:{PV + 4 * h + 3}], {C1}')
            E.e(f'v_mfma_f32_32x32x16_bf16 v[{D2}:{D2 + 15}], v[{PK + 4 * h}:{PK + 4 * h + 3}], v[{ONES}:{ONES + 3}], {C2}')
        E.inject_off()
        E.e(f"""
        s_cmp_eq_u32 s{S_W}, 2
        s_cselect_b32 s60, 0xff, -1
        s_cselect_b32 s61, 0, -1
        s_mov_b32 s62, 1
        s_mov_b32 s63, 1
        v_add_u32 v{T + 1}, {L_KVS}, v{A_RED}
        s_add_u32 s49, s{S_B}, 8
        v_mov_b32 v{V_T0 + 1}, s49
        v_mov_b32 v{V_T0 + 2}, 0
        """)
        E.nop(4)
        for r in range(8): E.e(f'v_cndmask_b32 v{X1 + r}, v{D + 8 + r}, v{D + r}, vcc')
        E.ds(f'ds_write_b128 v{A_KVW}, v[{X1}:{X1 + 3}]', 'kv')
        E.ds(f'ds_write_b128 v{A_KVW}, v[{X1 + 4}:{X1 + 7}] offset:16', 'kv')
        E.e('s_mov_b64 exec, s[62:63]')
        for q in range(4):
            E.ds(f'ds_write_b128 v{A_ZW}, v[{D2 + 4 * q}:{D2 + 4 * q + 3}] offset:{2048 + (q // 2) * 64 + (q % 2) * 16}', 'kv')
        E.e('s_mov_b64 exec, -1')
        E.wait_vm_all()
        E.wait_lg_all()
        if self.opt.get('fine_q'): self.stamp(24)
        E.barrier()
        Lskip = E.label('kvp')
        E.e(f"""
        s_cmp_ge_u32 s{S_W}, 3
        s_cbranch_scc1 {Lskip}
        s_mov_b64 exec, s[60:61]
        ds_read_b128 v[{X1}:{X1 + 3}], v{T + 1}
        ds_read_b128 v[{X1 + 4}:{X1 + 7}], v{T + 1} offset:2304
        ds_read_b128 v[{X2}:{X2 + 3}], v{T + 1} offset:4608
        ds_read_b128 v[{X2 + 4}:{X2 + 7}], v{T + 1} offset:6912
        s_waitcnt lgkmcnt(2)
        """)
        for j in range(4): E.e(f'v_add_f32 v{X1 + j}, v{X1 + j}, v{X1 + 4 + j}')
        E.e('s_waitcnt lgkmcnt(0)')
        for j in range(4): E.e(f'v_add_f32 v{X2 + j}, v{X2 + j}, v{X2 + 4 + j}')
        for j in range(4): E.e(f'v_add_f32 v{X1 + j}, v{X1 + j}, v{X2 + j}')
        E.e(f'buffer_store_dwordx4 v[{X1}:{X1 + 3}], v{A_RED}, s[4:7], s{S_KP} offen sc1')
        E.e('s_mov_b64 exec, -1')
        E.place(Lskip)
        def rq(kb): E.ds(f'ds_read_b128 v[{self.wfrag(kb)}:{self.wfrag(kb) + 3}], v{vQ} offset:{kb * 1024}', f'w{kb}')
        for kb in range(4): rq(kb)
        Lf = E.label('fa')
        E.e(f"""
        s_cmp_ge_u32 s{S_W}, 3
        s_cbranch_scc1 {Lf}
        s_waitcnt vmcnt(0)
        s_mov_b64 exec, 1
        buffer_store_dword v{V_T0 + 1}, v{V_T0 + 2}, s[4:7], s{S_FAW} offen sc1
        s_mov_b64 exec, -1
        {Lf}:
        """)
        if self.opt.get('fine_q'): self.stamp(25)
        self.stamp(2)
        if self.ts:
            for kb in range(4): rq(kb)
        dq = self.dma_units(4, S_WO, 32 * 1024, 32) + self.dma_units(5, S_W13, 0, 33) + self.pf_site('qwin')
        late = self.opt.get('wt0', 'q') == 'gat'
        dq2 = []
        if late: dq2, dq = dq, []
        dq += stg('q'); dq2 += stg('gat')
        t1gat = self.opt.get('t1site', 'wo') == 'gat' and not sT
        if t1gat: dq2 += self.dma_units(6, S_W13, SLAB33, 33)
        for kb in range(33):
            if kb + 4 < 32: rq(kb + 4)
            if kb == 28: E.e(f'v_mov_b32 v{AQ[0]}, v{AUG + 2}'); E.e(f'v_mov_b32 v{AQ[0] + 1}, v{AUG + 2}')
            if kb % 2 == 0 and kb < 32: E.wait_lg(f'w{kb + 1}')
            B = f'a[{4 * kb}:{4 * kb + 3}]' if kb < 32 else f'v[{MF}:{MF + 3}]'
            w = self.wfrag(kb) if kb < 32 else AQ[0]; C = '0' if kb == 0 else f'v[{a_q}:{a_q + 15}]'
            E.e(f'v_mfma_f32_32x32x16_bf16 v[{a_q}:{a_q + 15}], v[{w}:{w + 3}], {B}, {C}')
            if dq and kb % 2 == 0: dq.pop(0)()
        for u in dq: u()
        if t1gat:
            E.wait_lg_all(); E.e('s_barrier')
        self.stamp(3)
        GQ = [T + 8 + 4 * i for i in range(8)] + [WF + 4 * i for i in range(8)]
        Lg = E.label('gat'); Lr = E.label('regchk')
        E.e(f"""
        s_mov_b32 s62, 0x77777777
        s_mov_b32 s63, 0x77777777
        s_cmp_ge_u32 s{S_W}, 3
        s_cbranch_scc1 {Lg}
        s_cmp_lg_u32 s{S_W}, 0
        s_cbranch_scc1 {Lr}
        s_cmp_lg_u32 s{S_L}, {99 if self.opt.get('single', True) else 0}
        s_cbranch_scc1 {Lr}
        s_lshl_b32 s45, s{S_C}, 7
        s_add_u32 s45, s45, {REG}
        s_add_u32 s47, s{S_B}, 1
        """)
        self.poll(45, 47, 2)
        E.e(f"""
        v_cmp_ne_u32 vcc, s{S_MODE + 3}, v{V_T0}
        s_cmp_lg_u64 vcc, 0
        s_cselect_b32 s47, 1, 0
        v_mov_b32 v{V_T0 + 1}, s47
        v_mov_b32 v{V_T0 + 2}, {L_KVF + 2240}
        ds_write_b32 v{V_T0 + 2}, v{V_T0 + 1}
        s_waitcnt lgkmcnt(0)
        {Lr}:
        """)
        Lp = E.label('gp'); Lx = E.label('gpx'); Lt = E.label('gpt')
        E.e(f"""
        s_mov_b32 s46, 0
        {Lp}:
        s_add_u32 s46, s46, 1
        s_cmp_gt_u32 s46, {self.spin}
        s_cbranch_scc1 {Lt}
        buffer_load_dword v{V_T0}, v{A_FA}, s[4:7], s{S_FAR} offen sc1
        s_waitcnt vmcnt(0)
        v_cmp_ne_u32 vcc, s49, v{V_T0}
        s_nop 1
        s_and_b64 vcc, vcc, s[62:63]
        s_cbranch_scc1 {Lp}
        s_branch {Lx}
        {Lt}:
        s_mov_b32 s{S_MODE + 2}, 3
        {Lx}:
        s_mov_b64 exec, s[60:61]
        s_mov_b32 s45, s{S_KG}
        """)
        for c in range(16):
            E.e(f'buffer_load_dwordx4 v[{GQ[c]}:{GQ[c] + 3}], v{A_RED}, s[4:7], s45 offen sc1')
            if c < 15: E.e(f's_add_u32 s45, s45, {KVP_STRIDE}')
        E.e('s_mov_b64 exec, -1')
        E.place(Lg)
        E.vm = []
        self.stamp(4)
        Y1, Y2, EP = ST, ST + 8, V_T0 + 3
        E.e(f'v_mov_b32 v{EP}, {EPS_PHI:#x}')
        E.nop(4)
        n2 = len(dq2)
        E.inject(dq2, 5)
        for h in range(2):
            rr = range(8 * h, 8 * h + 8)
            for r in rr: E.e(f'v_mul_f32 v{Y2 + r % 8}, v{a_q + r}, v{V_C1}')
            for r in rr: E.e(f'v_fma_f32 v{Y1 + r % 8}, v{a_q + r}, v{V_R}, v{EP}')
            for r in rr: E.e(f'v_exp_f32 v{Y2 + r % 8}, v{Y2 + r % 8} clamp')
            for r in rr: E.e(f'v_max_f32 v{Y1 + r % 8}, v{Y1 + r % 8}, v{EP}')
            for r in rr: E.e(f'v_add_f32 v{Y1 + r % 8}, v{Y1 + r % 8}, v{Y2 + r % 8}')
            for r in range(0, 8, 2): E.e(f'v_cvt_pk_bf16_f32 v{PQ + 4 * h + r // 2}, v{Y1 + r}, v{Y1 + r + 1}')
        E.inject_off()
        self._vm_after_gat = list(E.vm)
        Lg2 = E.label('gat2')
        E.e(f"""
        s_cmp_ge_u32 s{S_W}, 3
        s_cbranch_scc1 {Lg2}
        s_mov_b64 exec, s[60:61]
        v_add_u32 v{T + 1}, {L_KVF}, v{A_RED}
        """)
        for half in range(2):
            E.e(f's_waitcnt vmcnt({n2 + (8 if half == 0 else 0)})')
            for lv, (x, y) in enumerate(((0, 1), (2, 3), (4, 5), (6, 7), (0, 2), (4, 6), (0, 4))):
                for j in range(4): E.e(f'v_add_f32 v{GQ[8 * half + x] + j}, v{GQ[8 * half + x] + j}, v{GQ[8 * half + y] + j}')
        for j in range(4): E.e(f'v_add_f32 v{GQ[0] + j}, v{GQ[0] + j}, v{GQ[8] + j}')
        E.e(f'ds_write_b128 v{T + 1}, v[{GQ[0]}:{GQ[0] + 3}]')
        E.e('s_mov_b64 exec, -1')
        E.place(Lg2)
        E.e('s_waitcnt lgkmcnt(0)' if (late or n2) else 's_waitcnt vmcnt(0) lgkmcnt(0)')
        if n2: E.vm = list(self._vm_after_gat)
        for u in self.pf_site('gat'): u()
        E.barrier()
        for h, ad in ((0, A_KZ0), (1, A_KZ1)):
            E.ds(f'ds_read_b128 v[{X1 + 8 * h}:{X1 + 8 * h + 3}], v{ad}', 'kz')
            E.ds(f'ds_read_b128 v[{X1 + 8 * h + 4}:{X1 + 8 * h + 7}], v{ad} offset:16', 'kz')
        Lm = E.label('mode')
        E.e(f"""
        s_cmp_lg_u32 s{S_L}, {99 if self.opt.get('single', True) else 0}
        s_cbranch_scc1 {Lm}
        v_mov_b32 v{V_T0 + 2}, {L_KVF + 2240}
        ds_read_b32 v{V_T0 + 1}, v{V_T0 + 2}
        s_waitcnt lgkmcnt(0)
        v_readfirstlane_b32 s{S_MODE}, v{V_T0 + 1}
        {Lm}:
        """)
        KZ = PK
        E.wait_lg('kz') if False else None
        E.e('s_waitcnt lgkmcnt(2)')
        for r in range(4): E.e(f'v_cvt_pk_bf16_f32 v{KZ + r}, v{X1 + 2 * r}, v{X1 + 2 * r + 1}')
        E.e('s_waitcnt lgkmcnt(0)'); E.lg = []
        for r in range(4): E.e(f'v_cvt_pk_bf16_f32 v{KZ + 4 + r}, v{X1 + 8 + 2 * r}, v{X1 + 8 + 2 * r + 1}')
        E.nop(1)
        for h, acc in ((0, a_k), (1, a_v)):
            E.e(f'v_mfma_f32_32x32x16_bf16 v[{acc}:{acc + 15}], v[{KZ + 4 * h}:{KZ + 4 * h + 3}], v[{PQ + 4 * h}:{PQ + 4 * h + 3}], 0')
        E.nop(11)
        OFR = PV
        for h, acc in ((0, a_k), (1, a_v)):
            E.e(f'v_add_f32 v{T + h}, v{acc + 8}, v{EP}')
        for h in range(2): E.e(f'v_rcp_f32 v{T + h}, v{T + h}')
        E.e('s_nop 0')
        for h, acc in ((0, a_k), (1, a_v)):
            for r in range(8): E.e(f'v_mul_f32 v{X1 + 8 * h + r}, v{acc + r}, v{T + h}')
            for r in range(4): E.e(f'v_cvt_pk_bf16_f32 v{OFR + 4 * h + r}, v{X1 + 8 * h + 2 * r}, v{X1 + 8 * h + 2 * r + 1}')
            self.store_act([f'buffer_store_dwordx4 v[{OFR + 4 * h}:{OFR + 4 * h + 3}], v{V_L16}, s[4:7], s{S_OD} offen offset:{1024 * h}'], 'o')
        for u in self.pf_site('ostore'): u()
        if sT:
            for it in self.unstage_items(6, 128, T + 8): it()
    def phase_proj(self, name, nsteps, act_base_imm, act_stride_sb, p0, src_sreg, dma_plan, out_x, out_st, last_check):
        E = self.E; F = Fill(E)
        E.c(f'==== {name} ====')
        accM, accO = ACC[0], ACC[1]
        E.e(f'''
        s_lshl_b32 s44, s{S_C}, 2
        s_add_u32 s44, s44, s{S_SBW}
        s_mul_i32 s44, s44, {act_stride_sb}
        s_mul_i32 s45, s{S_KH}, {nsteps * 1024}
        s_add_u32 s44, s44, s45
        s_add_u32 s44, s44, {LB(0) + act_base_imm}
        ''')
        D = self.opt.get('D2', 10)
        aq = self.frag_units(nsteps, 0, 'h')
        pairs = [(T, T + 1), (T + 2, T + 3)]
        def setpair(sl):
            a, b = pairs[sl % 2]; p = p0 + sl
            return [f'v_add_u32 v{a}, s53, v{V_SLOT + p % 4}', f'v_add_u32 v{b}, s54, v{V_SLOT + p % 4}']
        for x in setpair(0): E.e(x)
        nsl = nsteps // 8
        def rd(i):
            sl, ii = divmod(i, 8); a, b = pairs[sl % 2]
            E.ds(f'ds_read_b128 v[{self.wfrag(2 * i)}:{self.wfrag(2 * i) + 3}], v{a} offset:{ii * 4096}', f'w{2 * i}')
            E.ds(f'ds_read_b128 v[{self.wfrag(2 * i + 1)}:{self.wfrag(2 * i + 1) + 3}], v{b} offset:{ii * 4096}', f'w{2 * i + 1}')
        for u in aq[:2]: u()
        rd(0); rd(1)
        for u in aq[2:D]: u()
        aq = aq[D:]
        dq = []
        for (pp, sreg, imm, nfr) in dma_plan.get('start', []): dq += self.dma_units(pp, sreg, imm, nfr)
        dq += self.pf_site(name + 'start')
        if dma_plan.get('staged_T'): dq += self._stg('wo')
        usq = []
        if dma_plan.get('staged_W'): usq += self.unstage_items(15, 128, T + 4)
        for i in range(nsteps):
            sl, ii = divmod(i, 8)
            if ii == 0 and sl + 1 < nsl:
                for x in setpair(sl + 1): E.e(x)
            if ii == 6 and sl + 1 < nsl:
                need = f'slab{p0 + sl + 1}'
                assert not any(need == u.tag for u in dq), need
                if need in E.vm: E.wait_vm(need)
                if dma_plan.get('staged_W') and p0 + sl + 1 in (15, 16, 17, 18):
                    assert f'us{p0 + sl + 1}' in E.lg or not usq or True
                    E.wait_lg(f'us{p0 + sl + 1}')
                E.e('s_barrier')
                if dma_plan.get('staged_W') and sl in (1, 2, 3):
                    assert not usq, (sl, len(usq))
                    usq += self.unstage_items(15 + sl, 128 + 32 * sl, T + 4)
                for (pp, sreg, imm, nfr) in dma_plan.get(sl, []): dq += self.dma_units(pp, sreg, imm, nfr)
                dq += self.pf_site(f'{name}{sl}')
            if ii == 6 and sl + 1 == nsl and nsteps == 16 and dma_plan.get('loopend'):
                E.e('s_barrier')
            if i + 2 < nsteps: rd(i + 2)
            if aq: aq.pop(0)()
            rate = self.opt.get('dmarate2', 1) if aq else 2
            for _ in range(min(rate, len(dq))): dq.pop(0)()
            for _ in range(min(len(usq), 2 if len(usq) == 9 else 1 if ii % 8 < 7 else 2)): usq.pop(0)()
            E.wait_vm(f'h{i}')
            if self.opt.get('fine_w2') and nsteps == 56 and i % 8 == 0: self.stamp(12 + i // 8 if i < 32 else 24 + (i - 32) // 8)
            E.wait_lg(f'w{2 * i + 1}')
            for j, acc in ((0, accM), (1, accO)):
                w = self.wfrag(2 * i + j); C = '0' if i == 0 else f'v[{acc}:{acc + 15}]'
                ai = 4 * (i % 32)
                E.e(f'v_mfma_f32_32x32x16_bf16 v[{acc}:{acc + 15}], v[{w}:{w + 3}], a[{ai}:{ai + 3}], {C}')
        assert not usq
        eq = []
        for (pp, sreg, imm, nfr) in dma_plan.get('loopend', []): eq += self.dma_units(pp, sreg, imm, nfr)
        eq += self.pf_site(name + 'end')
        for u in dq: u()
        if self.opt.get('fine_w2') and nsteps == 56: self.stamp(27)
        for _ in range(min(len(eq), self.opt.get('pre_x', 4))): eq.pop(0)()
        U = T + 8
        for i in range(6):
            E.e(f'v_lshlrev_b32 v{U + 2 * i}, 16, v{RES + i}')
            E.e(f'v_and_b32 v{U + 2 * i + 1}, 0xffff0000, v{RES + i}')
        for q in range(4): E.ds(f'ds_write_b128 v{A_XW}, v[{accO + 4 * q}:{accO + 4 * q + 3}] offset:{1024 * q}', 'x')
        for i in range(6, 8):
            E.e(f'v_lshlrev_b32 v{U + 2 * i}, 16, v{RES + i}')
            E.e(f'v_and_b32 v{U + 2 * i + 1}, 0xffff0000, v{RES + i}')
        for r in range(16): E.e(f'v_add_f32 v{U + r}, v{U + r}, v{accM + r}')
        E.wait_lg_all()
        E.barrier()
        X = ACC[2]
        for q in range(4): E.ds(f'ds_read_b128 v[{X + 4 * q}:{X + 4 * q + 3}], v{A_XR} offset:{1024 * q}', f'x{q}')
        for (pp, sreg, imm, nfr) in dma_plan.get('end', []): eq += self.dma_units(pp, sreg, imm, nfr)
        E.inject(eq, self.opt.get('pevery', 4))
        for q in range(4):
            E.wait_lg(f'x{q}')
            for r in range(4 * q, 4 * q + 4): E.e(f'v_add_f32 v{U + r}, v{U + r}, v{X + r}')
            for i in range(2 * q, 2 * q + 2): E.e(f'v_cvt_pk_bf16_f32 v{RES + i}, v{U + 2 * i}, v{U + 2 * i + 1}')
        E.inject_off()
        Lfin = E.label('fin'); Ldone = E.label('pdone')
        if last_check:
            E.e(f's_cmp_eq_u32 s{S_L}, 1'); E.e(f's_cbranch_scc1 {Lfin}')
        self.store_act([f'buffer_store_dwordx4 v[{RES}:{RES + 3}], v{V_L16}, s[4:7], s{S_XD} offen',
                        f'buffer_store_dwordx4 v[{RES + 4}:{RES + 7}], v{V_L16}, s[4:7], s{S_XD} offen offset:1024'])
        stats32(E, [U + r for r in range(16)], (T + 2, T + 3, T + 4, T + 5), T + 6, T + 7)
        self.store_act([f'buffer_store_dwordx2 v[{T + 6}:{T + 7}], v{V_S8}, s[4:7], s{S_SD} offen'])
        for (pn, reg) in dma_plan.get('copy_in', []): self.copy_in(pn, reg)
        if dma_plan.get('staged_T'):
            for it in self.unstage_items(7, 160, T + 8) + self.unstage_items(8, 192, T + 9): it()
        for (pp, sreg, imm, nfr) in dma_plan.get('post', []): self.dma(pp, sreg, imm, nfr)
        if last_check:
            E.e(f's_branch {Ldone}')
            E.place(Lfin)
            E.e(f'''
            v_permlane32_swap_b32 v{RES}, v{RES + 2}
            v_permlane32_swap_b32 v{RES + 1}, v{RES + 3}
            v_permlane32_swap_b32 v{RES + 4}, v{RES + 6}
            v_permlane32_swap_b32 v{RES + 5}, v{RES + 7}
            ''')
            if self.opt.get('outlds', False):
                E.e(f'''
                s_lshl_b32 s44, s{S_RH}, 12
                s_lshl_b32 s45, s{S_KH}, 6
                s_add_u32 s44, s44, s45
                v_and_b32 v{T}, 31, v{V_LANE}
                v_lshlrev_b32 v{T}, 7, v{T}
                v_lshrrev_b32 v{T + 1}, 5, v{V_LANE}
                v_lshlrev_b32 v{T + 1}, 4, v{T + 1}
                v_add_u32 v{T}, v{T}, v{T + 1}
                v_add_u32 v{T}, s44, v{T}
                ds_write_b128 v{T}, v[{RES}:{RES + 3}]
                ds_write_b128 v{T}, v[{RES + 4}:{RES + 7}] offset:32
                s_lshl_b32 s45, s{S_W}, 11
                v_add_u32 v{T + 1}, s45, v{V_L16}
                v_lshrrev_b32 v{T + 2}, 3, v{V_LANE}
                v_lshlrev_b32 v{T + 2}, 10, v{T + 2}
                v_and_b32 v{T + 3}, 7, v{V_LANE}
                v_lshlrev_b32 v{T + 3}, 4, v{T + 3}
                v_add_u32 v{T + 2}, v{T + 2}, v{T + 3}
                s_lshl_b32 s44, s{S_C}, 1
                s_add_u32 s44, s44, s{S_R64}
                s_lshl_b32 s44, s44, 16
                s_lshl_b32 s45, s{S_W}, 14
                s_add_u32 s44, s44, s45
                s_lshl_b32 s45, s{S_CB}, 7
                s_add_u32 s44, s44, s45
                s_add_u32 s45, s44, 8192
                s_waitcnt lgkmcnt(0)
                s_barrier
                ds_read_b128 v[{T + 8}:{T + 11}], v{T + 1}
                ds_read_b128 v[{T + 12}:{T + 15}], v{T + 1} offset:1024
                s_waitcnt lgkmcnt(1)
                buffer_store_dwordx4 v[{T + 8}:{T + 11}], v{T + 2}, s[8:11], s44 offen {self.opt.get('outfl', 'sc1')}
                s_waitcnt lgkmcnt(0)
                buffer_store_dwordx4 v[{T + 12}:{T + 15}], v{T + 2}, s[8:11], s45 offen {self.opt.get('outfl', 'sc1')}
                ''')
            else:
                E.e(f'''
                s_mov_b32 s44, s{S_OUT}
                v_and_b32 v{T}, 31, v{V_LANE}
                v_lshlrev_b32 v{T}, 10, v{T}
                v_lshrrev_b32 v{T + 1}, 5, v{V_LANE}
                v_lshlrev_b32 v{T + 1}, 4, v{T + 1}
                v_add_u32 v{T}, v{T}, v{T + 1}
                buffer_store_dwordx4 v[{RES}:{RES + 3}], v{T}, s[8:11], s44 offen
                buffer_store_dwordx4 v[{RES + 4}:{RES + 7}], v{T}, s[8:11], s44 offen offset:32
                ''')
            if self.opt.get('single', True):
                Le = E.label('ep')
                E.e(f'''
                s_cmp_lg_u32 s2, 0
                s_cbranch_scc1 {Le}
                s_cmp_lg_u32 s{S_W}, 0
                s_cbranch_scc1 {Le}
                v_mov_b32 v9, s{S_E}
                v_mov_b32 v10, {EPOCH}
                s_mov_b64 exec, 1
                buffer_store_dword v9, v10, s[4:7], 0 offen sc1
                s_mov_b64 exec, -1
                {Le}:
                ''')
            if self.opt.get('dbgclk'):
                Lq = E.label('dbg')
                E.e(f'''
                s_memrealtime s[80:81]
                s_memtime s[66:67]
                s_waitcnt lgkmcnt(0)
                s_cmp_lg_u32 s{S_W}, 0
                s_cbranch_scc1 {Lq}
                s_cmp_ge_u32 s2, 4
                s_cbranch_scc1 {Lq}
                s_sub_u32 s80, s80, s96
                s_sub_u32 s66, s66, s98
                s_lshl_b32 s45, s2, 4
                v_mov_b32 v9, s45
                s_mul_i32 s46, s2, 85*8
                s_add_u32 s46, s46, 0x3100000
                v_mov_b32 v10, 0
                buffer_load_dwordx2 v[12:13], v10, s[4:7], s46 offen sc1
                v_mov_b32 v14, s96
                v_mov_b32 v15, s80
                s_waitcnt vmcnt(0)
                s_mov_b64 exec, 1
                global_store_dwordx4 v9, v[12:15], s[72:73]
                s_mov_b64 exec, -1
                {Lq}:
                ''')
            sv = self._prev; self.stamp(11); self.stamp_flush(); self._prev = sv
            E.e('s_branch L_k1_end')
            E.place(Ldone)
    def h_epilogue_items(self, acc, t):
        E = self.E; P, X = T + 8, T + 16; H = T + 24
        it = []
        for r in range(8): it.append(f'v_mul_f32 v{X + r}, v{acc + r}, v{V_C1}')
        for r in range(8): it.append(f'v_mul_f32 v{P + r}, v{acc + r}, v{acc + 8 + r}')
        for r in range(8): it.append(f'v_exp_f32 v{X + r}, v{X + r}')
        for r in range(8): it.append(f'v_fma_f32 v{X + r}, v{X + r}, v{V_C2}, v{V_C2}')
        for r in range(8): it.append(f'v_rcp_f32 v{X + r}, v{X + r}')
        it.append(f's_add_u32 s51, s{S_HD}, {t * 1024}')
        for r in range(8): it.append(f'v_mul_f32 v{P + r}, v{P + r}, v{X + r}')
        for r in range(4): it.append(f'v_cvt_pk_bf16_f32 v{H + r}, v{P + 2 * r}, v{P + 2 * r + 1}')
        def st():
            self.store_act([f'buffer_store_dwordx4 v[{H}:{H + 3}], v{V_L16}, s[4:7], s51 offen'], 'h')
        it.append(st)
        return it
    def phase_ffn1(self):
        E = self.E; F = Fill(E)
        E.c('==== gate/up ====')
        F.add(*self.stats_items(-1))
        tail = []
        if not self.staged('T'):
            if self.opt.get('t2site', 'loopend') == 't01': tail += self.dma_units(7, S_W13, 2 * SLAB33, 33)
            if self.opt.get('t3site', 't01') == 't01': tail += self.dma_units(8, S_W13, 3 * SLAB33, 33)
        wsites = self.opt.get('wsites', ('t01', 'tile3', 'tile4', 'tile5'))
        def wstg(site):
            us = []
            if self.staged('W'):
                for j in range(4):
                    if wsites[j] == site: us += self.stage_units(S_W2, (3 + j) * 32768, 128 + 32 * j)
            return us
        tail += wstg('t01')
        tail += self.pf_site('t01tail')
        self.kouter(V_SLOT + 5 % 4, V_SLOT + 6 % 4, ACC[0], ACC[1], True, F, tail, (AUG + 3, AUG + 4), fine=self.opt.get('fine_ts'))
        if self.tiles_ts: self.stamp(18)
        NT = 5
        WE = self.opt.get('we', 4); RING = 10 if WE == 4 else 6; PD = self.opt.get('pd', 7) if WE == 4 else 4
        def step(g): return 2 + g // 33, g % 33
        def rq(g):
            t, kb = step(g); p = 5 + t
            if kb == 32: return
            E.ds(f'ds_read_b128 v[{self.wfrag(g, RING)}:{self.wfrag(g, RING) + 3}], v{V_SLOT + p % 4} offset:{kb * 1024}', f'g{g}')
        if 'slab7' in E.vm: E.wait_vm('slab7')
        E.wait_lg_all()
        E.e('s_barrier')
        for g in range(PD): rq(g)
        ep = []
        for j in range(6):
            first = 4 if j < 2 else (j - 1) * 33 + 3
            for it in self.h_epilogue_items(ACC[j % 3], j): ep.append((first, j, it))
        total = len(ep); done = 0
        dq = self.dma_units(9, S_W13, 4 * SLAB33, 33) + self.pf_site('tile2') + self.dma_units(10, S_W13, 5 * SLAB33, 33) + wstg('tile2')
        G = NT * 33
        for g in range(G):
            t, kb = step(g)
            if kb == 1 and t > 2:
                E.e('s_barrier')
                if t == 3: dq += self.dma_units(11, S_W13, 6 * SLAB33, 33)
                else: dq += self.dma_units(12 + (t - 4), S_W2, (t - 4) * 32 * 1024, 32)
                dq += self.pf_site(f'tile{t}') + wstg(f'tile{t}')
            if kb == 32 - PD and t < 6:
                need = f'slab{5 + t + 1}'
                assert not any(need == u.tag for u in dq), need
                if need in E.vm: E.wait_vm(need)
                E.e('s_barrier')
            if g + PD < G: rq(g + PD)
            if g % WE == 0:
                last = max(gg for gg in range(g, min(g + WE, G)) if gg % 33 != 32 or gg == g)
                E.wait_lg(f'g{last}')
            if kb == 28: E.e(f'v_mov_b32 v{AQ[t % 2]}, v{AUG + 3 + t}'); E.e(f'v_mov_b32 v{AQ[t % 2] + 1}, v{AUG + 3 + t}')
            acc = ACC[t % 3]
            B = f'a[{4 * kb}:{4 * kb + 3}]' if kb < 32 else f'v[{MF}:{MF + 3}]'
            w = self.wfrag(g, RING) if kb < 32 else AQ[t % 2]; C = '0' if kb == 0 else f'v[{acc}:{acc + 15}]'
            E.e(f'v_mfma_f32_32x32x16_bf16 v[{acc}:{acc + 15}], v[{w}:{w + 3}], {B}, {C}')
            if dq and g % self.opt.get('dstep', 2) == 0: dq.pop(0)()
            want = (total * (g + 1) + G - 3) // (G - 2)
            while done < min(want, total) and ep[0][0] <= g:
                _, j, it = ep.pop(0)
                assert g < (j + 3 - 2) * 33 or j + 3 > 6, (g, j)
                if isinstance(it, str): E.e(it)
                else: it()
                done += 1
            if self.tiles_ts and kb == 32: self.stamp(16 + t + 1)
        assert not ep, len(ep)
        for u in dq: u()
        E.wait_lg_all()
        E.nop(12)
        F.add(*self.h_epilogue_items(ACC[6 % 3], 6)); F.flush()
    def wo_plan(self):
        t2 = self.opt.get('t2site', 'loopend'); t3 = self.opt.get('t3site', 't01')
        if self.staged('T'): return dict(staged_T=True)
        plan = dict(start=[(6, S_W13, SLAB33, 33)] if self.opt.get('t1site', 'wo') == 'wo' else [])
        if t2 in ('post', 'loopend'): plan.setdefault(t2, []).append((7, S_W13, 2 * SLAB33, 33))
        if t3 in ('post', 'end'): plan.setdefault(t3, []).append((8, S_W13, 3 * SLAB33, 33))
        return plan
    def gen(self):
        E = self.E
        self.init()
        if self.ts: E.e('v_mov_b32 v255, 0'); E.e('v_mov_b32 v254, 0'); E.e('s_mov_b32 s66, 0')
        E.place('L_k1_layer')
        self._prev = 30
        self.stamp(0)
        self.phase_qkv()
        self.stamp(5)
        if self.stop == 'qkv': E.wait_vm_all(force=True); E.e('s_branch L_k1_end')
        self.hop_local()
        self.stamp(6)
        self.phase_proj('wo', 16, OF_, 32 * 1024, 3, S_WO,
                        self.wo_plan(), X1F_, ST1_, False)
        self.stamp(7)
        if self.stop == 'wo': E.wait_vm_all(force=True); E.e('s_branch L_k1_end')
        self.hop_local()
        self.stamp(8)
        self.phase_ffn1()
        self.stamp(9)
        if self.stop == 'ffn1': E.wait_vm_all(force=True); E.e('s_branch L_k1_end')
        self.hop_local()
        self.stamp(10)
        nx = [(19, S_WQ, 0, 33), (20, S_WQ, SLAB33, 33), (21, S_WQ, 2 * SLAB33, 33), (22, S_WO, 0, 32)]
        plan = {'start': [(15, S_W2, 3 * 32768, 32)], 0: [], 1: [(16, S_W2, 4 * 32768, 32)], 2: [(17, S_W2, 5 * 32768, 32)], 3: [(18, S_W2, 6 * 32768, 32)],
                }
        if self.staged('W'): plan = {'staged_W': True}
        kv = self.opt.get('kvsite', 'post')
        pinned = [pn for (_, pn, _) in self.pinv()]
        rest = [x for x in nx[:2] if x[0] not in pinned]
        if kv == 'loop': plan[4] = [nx[0]]; plan[5] = [nx[1]]
        else: plan[kv] = rest
        plan['copy_in'] = [(pn, reg) for (_, pn, reg) in self.pinv()]
        self.phase_proj('w2', 56, HF_, 112 * 1024, 12, S_W2, plan, X2F_, ST2_, True)
        self.stamp(11)
        if self.stop == 'w2': E.wait_vm_all(force=True); E.e('s_branch L_k1_end')
        self.hop_local()
        E.e(f's_add_u32 s{S_KG}, s{S_KG}, {LB(1) - LB(0)}'); E.e(f's_add_u32 s{S_KP}, s{S_KP}, {LB(1) - LB(0)}')
        E.e(f's_add_u32 s{S_FAR}, s{S_FAR}, 4096'); E.e(f's_add_u32 s{S_FAW}, s{S_FAW}, 4096')
        E.e(f's_add_u32 s{S_L}, s{S_L}, 1')
        E.e('s_mov_b32 s94, 0'); E.e('s_mov_b32 s95, 0')
        if self.ts:
            E.e('s_waitcnt lgkmcnt(0)'); E.e(f'v_writelane_b32 v255, s66, {self._prev}'); E.e('v_mov_b32 v254, v255'); E.e('v_mov_b32 v255, 0')
        E.e(f's_mov_b32 s40, s{S_SLOT + 3}')
        for i in (3, 2, 1): E.e(f's_mov_b32 s{S_SLOT + i}, s{S_SLOT + i - 1}')
        E.e(f's_mov_b32 s{S_SLOT}, s40')
        for i in range(4): E.e(f'v_add_u32 v{V_SLOT + i}, s{S_SLOT + i}, v{V_L16}')
        E.e('s_branch L_k1_layer')
        E.place('L_k1_end')
        E.place('L_k1_last')
        E.e('s_endpgm')
        return E

def gen_k1(name='main_kernel', **kw):
    return K1(name, **kw).gen()
```

```python
import sys
sys.path.insert(0, 'gen')
from build import build_file
from k0 import gen_k0
from k1 import gen_k1, LDS_BYTES
def make(path, pre_empty=0, post_empty=0, **kw):
    if kw.get('single', True):
        from asmlib import KNAME
        s = build_file([gen_k1(name=KNAME, **kw)], [(KNAME, (256,1,1), (256,1,1), LDS_BYTES)], merge=kw.get('merge', True))
        open(path, 'w').write(s)
        return path
    ks = [gen_k0(codepf=kw.get('codepf', True), tlb=kw.get('tlb', 0), dbgclk=kw.get('dbgclk', False)), gen_k1(**kw)]
    ls = [('prep_kernel', (256,1,1), (256,1,1), 34816), ('main_kernel', (256,1,1), (256,1,1), LDS_BYTES)]
    if pre_empty or post_empty:
        from emit import Em
        e = Em('empty_kernel', vgpr=32, agpr=0, sgpr=16); e.e('s_endpgm'); ks.append(e)
        ls = [('empty_kernel', (256,1,1), (64,1,1), 0)] * pre_empty + ls + [('empty_kernel', (256,1,1), (64,1,1), 0)] * post_empty
    s = build_file(ks, ls)
    open(path, 'w').write(s)
    return path
if __name__ == '__main__':
    make(sys.argv[1] if len(sys.argv) > 1 else 'interleave_layers__linear_attn_block__glu_gated_swiglu__prompt.s')
```

```python
from emit import *
from layout import *
from k0 import stats32

SLOT = SLAB33
MISC = 4 * SLOT
L_RS = MISC
L_KVS = MISC + 1024
L_KVF = MISC + 10240
L_XCH = MISC + 1024
LDS_BYTES = 163840
TS_OFF = 0x3000000

S_W, S_C, S_M, S_L, S_MODE, S_STEP = 12, 13, 14, 15, 16, 17
S_SLOT = 20
S_W8K = 24
S_WQ, S_WO, S_W13, S_W2 = 25, 26, 27, 28
S_XF, S_ST, S_LB = 29, 30, 31
S_RH, S_KH, S_R64, S_CB, S_SBW = 32, 33, 34, 35, 36
S_FLOFF = 37
S_B, S_E = 38, 39
S_T = 40
S_TSN = 64
V_LANE, V_L16 = 0, 1
V_SLOT = 2
V_L8 = 6
V_S8 = 7
V_FLAG = 8
V_T0 = 9
ACC = [16, 32, 48]
WF = 208
A_RSW, A_RSR, A_KVW, A_ZW, A_RED, A_KZ0, A_KZ1, A_XW, A_XR, A_FA = range(64, 74)
AUG = 74
AQ = (84, 204)
S_XD, S_SD, S_OD, S_HD, S_KP, S_KG, S_FAW, S_FAR, S_OUT = range(82, 91)
RES = 88
WF8 = 208
PQ = 96
V_R, V_C1, V_C2 = 104, 105, 106
MF = 108
ONES = 112
ST = 116
T = 132
V_PF = 250
V_DUM = 12
V_RAW2 = 250
V_RAW, V_TR = 249, 252
LOG2E = 0x3fb8aa3b
NLOG2E = 0xbfb8aa3b
EPS_PHI = 0x358637bd
EPS_LN = 0x3727c5ac

DEFAULT_PF = {}

class Fill:
    def __init__(self, E): self.E = E; self.q = []
    def add(self, *items):
        for it in items:
            if isinstance(it, str):
                for l in it.strip('\n').split('\n'):
                    l = l.strip()
                    if l: self.q.append(l)
            else: self.q.append(it)
    def pump(self, n):
        while n > 0 and self.q:
            it = self.q.pop(0)
            if isinstance(it, str): self.E.e(it)
            else: it()
            n -= 1
    def flush(self): self.pump(10 ** 9)

class K1:
    def __init__(self, name, stop=None, ts=False, spin=1 << 22, nodma=False, noact=False, tiles_ts=False, ts_wave=0, **opt):
        self.E = Em(name, vgpr=256, agpr=256, sgpr=100)
        self.stop = stop; self.ts = ts; self.spin = spin; self.nodma = nodma; self.noact = noact; self.tiles_ts = tiles_ts; self._prev = None; self._last_idx = None; self.ts_wave = ts_wave; self.opt = opt
    def stamp(self, idx):
        if not self.ts: return
        E = self.E
        E.e('s_waitcnt lgkmcnt(0)'); E.lg = []
        E.e(f'v_writelane_b32 v255, s92, {self._prev}')
        E.e('s_memtime s[92:93]')
        self._prev = idx
    def stamp_flush(self):
        if not self.ts: return
        E = self.E; L = E.label('tsf')
        E.e('s_memrealtime s[80:81]')
        E.e('s_waitcnt lgkmcnt(0)')
        E.e(f'v_writelane_b32 v255, s92, {self._prev}')
        E.e('v_writelane_b32 v255, s96, 40'); E.e('v_writelane_b32 v255, s80, 41'); E.e('v_writelane_b32 v255, s98, 42')
        E.e(f's_cmp_lg_u32 s{S_W}, {self.ts_wave}'); E.e(f's_cbranch_scc1 {L}')
        E.e(f's_lshl_b32 s91, s2, 9'); E.e(f's_add_u32 s91, s91, {TS_OFF}')
        E.e(f'v_lshlrev_b32 v{V_T0}, 2, v{V_LANE}')
        E.e(f'buffer_store_dword v254, v{V_T0}, s[4:7], s91 offen')
        E.e(f'buffer_store_dword v255, v{V_T0}, s[4:7], s91 offen offset:256')
        E.e(f's_lshl_b32 s91, s2, 8'); E.e(f's_add_u32 s91, s91, {TS_OFF + 0x40000}')
        E.e(f'buffer_store_dword v253, v{V_T0}, s[4:7], s91 offen')
        E.place(L)
    def dma(self, p, src_sreg, src_imm, nfr):
        E = self.E; n = 8
        if self.nodma: return
        a, b = S_T, S_T + 1
        E.e(f's_add_u32 s{a}, s{S_SLOT + p % 4}, s{S_W8K}')
        E.e(f's_add_u32 s{b}, s{src_sreg}, s{S_W8K}')
        if src_imm: E.e(f's_add_u32 s{b}, s{b}, {src_imm}')
        for g in range(0, n, 4):
            if g == 0: E.e(f's_mov_b32 m0, s{a}')
            else:
                E.e(f's_add_u32 m0, s{a}, {g * 1024}')
                E.e(f's_add_u32 s{b}, s{b}, 4096')
            if g == 0: E.e('s_nop 0')
            for k in range(min(4, n - g)):
                E.vmem(f'buffer_load_dwordx4 v{V_L16}, s[4:7], s{b} offen offset:{k * 1024} lds', f'slab{p}')
    def dma_items(self, p, src_sreg, src_imm, nfr):
        E = self.E; n = 8
        if self.nodma: return []
        a, b = S_T + 2, S_T + 3
        it = [f's_add_u32 s{a}, s{S_SLOT + p % 4}, s{S_W8K}', f's_add_u32 s{b}, s{src_sreg}, s{S_W8K}']
        if src_imm: it.append(f's_add_u32 s{b}, s{b}, {src_imm}')
        for g in range(0, n, 4):
            if g == 0: it.append(f's_mov_b32 m0, s{a}'); it.append('s_nop 0')
            else:
                it.append(f's_add_u32 m0, s{a}, {g * 1024}'); it.append(f's_add_u32 s{b}, s{b}, 4096')
            for k in range(min(4, n - g)):
                it.append((lambda k=k: E.vmem(f'buffer_load_dwordx4 v{V_L16}, s[4:7], s{b} offen offset:{k * 1024} lds', f'slab{p}')))
        return it
    def dma_units(self, p, src_sreg, src_imm, nfr):
        E = self.E; n = 8
        if self.nodma: return []
        a, b = S_T + 2, S_T + 3
        us = []
        if self.rawp() and src_sreg in (S_WO, S_W2):
            for k in range(8):
                def u(k=k):
                    srd, off = self.rawp_unit_off(src_sreg, src_imm, k)
                    if k == 0: E.e(f's_add_u32 s{a}, s{S_SLOT + p % 4}, s{S_W8K}')
                    E.e(f's_add_u32 m0, s{a}, {k * 1024}')
                    E.e(f's_add_u32 s{b}, s3, {off}')
                    E.vmem(f'buffer_load_dwordx4 v{V_RAW2}, {srd}, s{b} offen lds', f'slab{p}')
                u.tag = f'slab{p}'
                us.append(u)
            return us
        for k in range(n):
            def u(k=k):
                if k == 0:
                    E.e(f's_add_u32 s{a}, s{S_SLOT + p % 4}, s{S_W8K}'); E.e(f's_add_u32 s{b}, s{src_sreg}, s{S_W8K}')
                    if src_imm: E.e(f's_add_u32 s{b}, s{b}, {src_imm}')
                    E.e(f's_mov_b32 m0, s{a}'); E.e('s_nop 0')
                elif k % 4 == 0:
                    E.e(f's_add_u32 m0, s{a}, {k * 1024}'); E.e(f's_add_u32 s{b}, s{b}, 4096')
                masked = self.pint() == p
                if masked: E.e('s_mov_b64 exec, s[94:95]')
                E.vmem(f'buffer_load_dwordx4 v{V_L16}, s[4:7], s{b} offen offset:{(k % 4) * 1024} lds', f'slab{p}')
                if masked: E.e('s_mov_b64 exec, -1')
            u.tag = f'slab{p}'
            us.append(u)
        return us
    def pf_units(self, src_sreg, src_imm, nbytes, parts):
        E = self.E
        if self.nodma or not self.opt.get('pf', True): return []
        piece = nbytes // parts; per_wave = piece // 4; lines = -(-per_wave // 128)
        assert lines <= 64
        def u():
            idx = 55 if parts == 2 else 56
            E.e(f's_mul_i32 s58, s{idx}, {piece}')
            E.e(f's_mul_i32 s59, s{S_W}, {per_wave}')
            E.e(f's_add_u32 s58, s58, s59')
            E.e(f's_add_u32 s58, s58, s{src_sreg}')
            if src_imm: E.e(f's_add_u32 s58, s58, {src_imm}')
            E.e(f'v_min_u32 v{V_PF}, {lines - 1}, v{V_LANE}')
            E.e(f'v_lshlrev_b32 v{V_PF}, 7, v{V_PF}')
            E.vmem(f'buffer_load_dword v{V_PF + 1}, v{V_PF}, s[4:7], s58 offen', 'pf')
        u.tag = 'pf'
        return [u]
    def raw(self): return self.opt.get('rawqkv', False)
    def rawp(self): return self.opt.get('rawproj', False)
    def rawp_unit_off(self, src_sreg, src_imm, k):
        KH = 16 if src_sreg == S_WO else 56
        sl = src_imm // 32768
        off = sl * 8 * 16 * 1024 + ((KH * ((k >> 1) & 1) + (k >> 2)) * 16 + 8 * (k & 1)) * 1024
        return ('s[64:67]' if src_sreg == S_WO else 's[68:71]'), off
    def proj_srds(self):
        self.E.e(f"""
        s_load_dwordx2 s[64:65], s[0:1], 16
        s_load_dwordx2 s[68:69], s[0:1], 48
        s_waitcnt lgkmcnt(0)
        s_and_b32 s65, s65, 0xffff
        s_mov_b32 s66, {512*512*2}
        s_mov_b32 s67, 0x20000
        s_and_b32 s69, s69, 0xffff
        s_mov_b32 s70, {1792*512*2}
        s_mov_b32 s71, 0x20000
        """)
    def qkv_units(self, p, part):
        if not self.raw(): return self.dma_units(p, S_WQ, part * SLAB33, 33)
        E = self.E
        if self.nodma: return []
        a, b = S_T + 2, S_T + 3
        col = (1024, 2048, 0)[part]
        us = []
        for k in range(8):
            def u(k=k):
                if k == 0:
                    E.e(f's_add_u32 s{a}, s{S_SLOT + p % 4}, s{S_W8K}')
                    E.e(f's_mul_i32 s{b}, s{S_W}, {8 * 16 * 3072}')
                    E.e(f's_lshl_b32 s59, s{S_M}, 6')
                    E.e(f's_add_u32 s{b}, s{b}, s59')
                    if col: E.e(f's_add_u32 s{b}, s{b}, {col}')
                    E.e(f's_mov_b32 m0, s{a}')
                    E.e('s_nop 0')
                else:
                    E.e(f's_add_u32 m0, s{a}, {k * 1024}')
                    E.e(f's_add_u32 s{b}, s{b}, {16 * 3072}')
                E.vmem(f'buffer_load_dwordx4 v{V_RAW}, s[72:75], s{b} offen lds', f'slab{p}')
            u.tag = f'slab{p}'
            us.append(u)
        return us
    def rd_tr(self, reg, vaddr, kb, tag):
        self.E.ds(f'ds_read_b64_tr_b16 v[{reg}:{reg + 1}], v{vaddr} offset:{kb * 1024}', tag)
        self.E.ds(f'ds_read_b64_tr_b16 v[{reg + 2}:{reg + 3}], v{vaddr} offset:{kb * 1024 + 512}', tag)
    def aug_local(self, items):
        E = self.E; W = T + 8
        for n, (p, ai) in enumerate(items):
            acc = ACC[n]
            E.e(f'v_add_u32 v{T + 4}, s{S_SLOT + p % 4}, v{V_TR}')
            E.e(f'v_add_u32 v{T + 4}, s{S_W8K}, v{T + 4}')
            for f in range(8):
                E.e(f'ds_read_b64_tr_b16 v[{W + 4 * f}:{W + 4 * f + 1}], v{T + 4} offset:{f * 1024}')
                E.e(f'ds_read_b64_tr_b16 v[{W + 4 * f + 2}:{W + 4 * f + 3}], v{T + 4} offset:{f * 1024 + 512}')
                if f == 6: E.e('s_waitcnt lgkmcnt(6)')
            E.e('s_waitcnt lgkmcnt(0)')
            for f in range(8):
                E.e(f'v_mfma_f32_32x32x16_bf16 v[{acc}:{acc + 15}], v[{ONES}:{ONES + 3}], v[{W + 4 * f}:{W + 4 * f + 3}], ' + ('0' if f == 0 else f'v[{acc}:{acc + 15}]'))
        E.e('s_nop 15')
        E.e(f's_lshl_b32 s59, s{S_W}, 8')
        E.e(f'v_lshlrev_b32 v{T + 3}, 2, v{V_LANE}')
        E.e(f'v_add_u32 v{T + 2}, s59, v{T + 3}')
        E.e(f'v_add_u32 v{T + 2}, {L_XCH}, v{T + 2}')
        for n, (p, ai) in enumerate(items): E.e(f'ds_write_b32 v{T + 2}, v{ACC[n]} offset:{n * 1024}')
        E.e('s_waitcnt lgkmcnt(0)')
        E.e('s_barrier')
        E.e(f'v_add_u32 v{T + 3}, {L_XCH}, v{T + 3}')
        E.e(f'v_cmp_gt_u32 vcc, 32, v{V_LANE}')
        for n, (p, ai) in enumerate(items):
            for w in range(4): E.e(f'ds_read_b32 v{W + w}, v{T + 3} offset:{n * 1024 + w * 256}')
            E.e('s_waitcnt lgkmcnt(0)')
            E.e(f'v_add_f32 v{W}, v{W}, v{W + 1}'); E.e(f'v_add_f32 v{W + 2}, v{W + 2}, v{W + 3}')
            E.e('s_nop 0')
            E.e(f'v_add_f32 v{W}, v{W}, v{W + 2}')
            E.e('s_nop 0')
            E.e(f'v_cvt_pk_bf16_f32 v{W + 1}, v{W}, v{W}')
            E.e('s_nop 0')
            E.e(f'v_lshlrev_b32 v{W + 1}, 16, v{W + 1}')
            E.e('s_nop 0')
            E.e(f'v_sub_f32 v{W + 1}, v{W}, v{W + 1}')
            E.e('s_nop 0')
            E.e(f'v_cvt_pk_bf16_f32 v{W}, v{W}, v{W + 1}')
            E.e('s_nop 0')
            E.e(f'v_cndmask_b32 v{AUG + ai}, 0, v{W}, vcc')
        E.e('s_barrier')
    def preread_units(self, sreg, offs):
        E = self.E; us = []
        for o in offs:
            def u(o=o):
                E.e(f's_add_u32 s58, s{sreg}, {o}')
                E.vmem(f'buffer_load_dwordx4 a[{0}:{3}], v{V_L16}, s[4:7], s58 offen' if False else
                       f'buffer_load_dwordx4 v[{V_DUM}:{V_DUM + 3}], v{V_L16}, s[4:7], s58 offen', 'pre')
            u.tag = 'pre'
            us.append(u)
        return us
    def stage_units(self, src_sreg, src_imm, areg):
        E = self.E
        if self.nodma: return []
        us = []
        if self.rawp() and src_sreg in (S_WO, S_W2):
            for k in range(8):
                def u(k=k):
                    srd, off = self.rawp_unit_off(src_sreg, src_imm, k)
                    E.e(f's_add_u32 s57, s3, {off}')
                    pin = self.opt.get('pin', True)
                    if pin: E.e('s_mov_b64 exec, s[94:95]')
                    E.vmem(f'buffer_load_dwordx4 a[{areg + 4 * k}:{areg + 4 * k + 3}], v{V_RAW2}, {srd}, s57 offen', f'stg{areg}')
                    if pin: E.e('s_mov_b64 exec, -1')
                u.tag = f'stg{areg}'
                us.append(u)
            return us
        for k in range(8):
            def u(k=k):
                if k == 0:
                    E.e(f's_add_u32 s57, s{src_sreg}, s{S_W8K}')
                    if src_imm: E.e(f's_add_u32 s57, s57, {src_imm}')
                elif k % 4 == 0: E.e('s_add_u32 s57, s57, 4096')
                pin = self.opt.get('pin', True)
                if pin: E.e('s_mov_b64 exec, s[94:95]')
                E.vmem(f'buffer_load_dwordx4 a[{areg + 4 * k}:{areg + 4 * k + 3}], v{V_L16}, s[4:7], s57 offen offset:{(k % 4) * 1024}', f'stg{areg}')
                if pin: E.e('s_mov_b64 exec, -1')
            u.tag = f'stg{areg}'
            us.append(u)
        return us
    def unstage_items(self, p, areg, vtmp):
        E = self.E
        if self.nodma: return []
        def first():
            E.wait_vm(f'stg{areg}')
            E.e(f'v_add_u32 v{vtmp}, s{S_W8K}, v{V_SLOT + p % 4}')
        its = [first]
        def wr(k):
            if len(E.lg) >= 14:
                E.e('s_waitcnt lgkmcnt(7)'); E.lg = E.lg[-7:]
            E.ds(f'ds_write_b128 v{vtmp}, a[{areg + 4 * k}:{areg + 4 * k + 3}] offset:{k * 1024}', f'us{p}')
        for k in range(8): its.append(lambda k=k: wr(k))
        return its
    def pinv(self):
        sel = self.opt.get('pinv', 'V')
        return [(0, 19, 172)] if sel == 'K' else [(1, 20, 172)] if sel == 'V' else []
    def pint(self):
        sel = self.opt.get('pinv', 'V')
        return {'T1': 6, 'T2': 7}.get(sel)
    def pint_copy_in(self, p):
        E = self.E
        if self.pint() != p: return
        L = E.label('pci')
        E.wait_lg_all()
        E.e(f's_cmp_eq_u32 s{S_L}, 0'); E.e(f's_cbranch_scc1 {L}')
        E.e(f'v_add_u32 v248, s{S_W8K}, v{V_SLOT + p % 4}')
        for k in range(8): E.e(f'ds_write_b128 v248, v[{172 + 4 * k}:{172 + 4 * k + 3}] offset:{k * 1024}')
        E.e('s_waitcnt lgkmcnt(0)')
        E.place(L)
    def copy_out_items(self, p, reg):
        E = self.E
        its = [lambda: E.e(f'v_add_u32 v248, s{S_W8K}, v{V_SLOT + p % 4}')]
        for k in range(8):
            its.append(lambda k=k: E.ds(f'ds_read_b128 v[{reg + 4 * k}:{reg + 4 * k + 3}], v248 offset:{k * 1024}', f'co{p}'))
        return its
    def copy_in(self, p, reg):
        E = self.E
        E.e(f'v_add_u32 v248, s{S_W8K}, v{V_SLOT + p % 4}')
        for k in range(8):
            if len(E.lg) >= 14: E.e('s_waitcnt lgkmcnt(7)'); E.lg = E.lg[-7:]
            E.ds(f'ds_write_b128 v248, v[{reg + 4 * k}:{reg + 4 * k + 3}] offset:{k * 1024}', f'us{p}')
    def staged(self, what): return what in self.opt.get('stage', 'W')
    def pf_site(self, site):
        plan = self.opt.get('pfplan', DEFAULT_PF)
        us = []
        for nm in plan.get(site, []):
            k, i = nm[0], int(nm[1:]) if len(nm) > 1 else 0
            if k == 'T': us += self.pf_units(S_W13, i * SLAB33, SLAB33, 2)
            elif k == 'W': us += self.pf_units(S_W2, i * 32768, 32768, 4)
            elif k == 'O': us += self.pf_units(S_WO, i * 32768, 32768, 4)
            elif k == 'A': us += self.pf_units(S_WQ, i * SLAB33, SLAB33, 2)
        return us
    def frag_units(self, n, areg0, tag, first=0, sreg=44, base=None):
        E = self.E
        if self.noact: return []
        us = []
        for i in range(n):
            def u(i=i):
                if i == 0 and base: base()
                if i and i % 4 == 0: E.e(f's_add_u32 s{sreg}, s{sreg}, 4096')
                ar = areg0 + 4 * (i % 32)
                E.vmem(f'buffer_load_dwordx4 a[{ar}:{ar + 3}], v{V_L16}, s[4:7], s{sreg} offen offset:{(i % 4) * 1024} sc1', f'{tag}{first + i}')
            us.append(u)
        return us
    def stats_units(self):
        E = self.E; us = []
        for i in range(4):
            def u(i=i):
                if i == 0: E.e(f's_lshl_b32 s52, s{S_W}, 12'); E.e(f's_add_u32 s52, s52, s{S_ST}')
                E.vmem(f'buffer_load_dwordx4 v[{ST + 4 * i}:{ST + 4 * i + 3}], v{V_L16}, s[4:7], s52 offen offset:{1024 * i} sc1', 'stats')
            us.append(u)
        return us
    def load_frags(self, n, areg0, soff_setup, tag, first=0):
        E = self.E
        if self.noact: return
        for i in range(n):
            if i and i % 4 == 0: E.e('s_add_u32 s44, s44, 4096')
            E.vmem(f'buffer_load_dwordx4 a[{areg0 + 4 * i}:{areg0 + 4 * i + 3}], v{V_L16}, s[4:7], s44 offen offset:{(i % 4) * 1024} sc1', f'{tag}{first + i}')
    def store_act(self, items, kind='x', tag='st'):
        E = self.E
        if kind not in self.opt.get('plain', 'x'):
            for s in items: E.vmem(s + ' sc1', tag)
            return
        Ls = E.label('st'); Ld = E.label('sd')
        E.e(f's_cmp_lg_u32 s{S_MODE}, 0'); E.e(f's_cbranch_scc1 {Ls}')
        for s in items: E.e(s)
        E.e(f's_branch {Ld}'); E.place(Ls)
        for s in items: E.e(s + ' sc1')
        E.place(Ld)
        for s in items: E.vm.append(tag)
    def poll(self, off_sreg, val_sreg, code):
        E = self.E; Lp = E.label('poll'); Lx = E.label('pollx'); Lt = E.label('pollt')
        E.e(f'''
        s_mov_b32 s46, 0
        {Lp}:
        s_add_u32 s46, s46, 1
        s_cmp_gt_u32 s46, {self.spin}
        s_cbranch_scc1 {Lt}
        buffer_load_dword v{V_T0}, v{V_FLAG}, s[4:7], s{off_sreg} offen sc1
        s_waitcnt vmcnt(0)
        v_subrev_u32 v{V_T0 + 1}, s{val_sreg}, v{V_T0}
        v_cmp_le_u32 vcc, 8, v{V_T0 + 1}
        s_cbranch_vccz {Lx}
        {'s_sleep %d' % self.opt['hsleep'] if self.opt.get('hsleep') else ''}
        s_branch {Lp}
        {Lt}:
        s_mov_b32 s{S_MODE + 2}, {code}
        {Lx}:
        ''')
    def flag_store(self):
        E = self.E; L = E.label('fl'); Ls = E.label('fs'); Ld = E.label('fd')
        E.e(f"""
        s_add_u32 s{S_STEP}, s{S_STEP}, 1
        s_cmp_lg_u32 s{S_W}, 0
        s_cbranch_scc1 {L}
        s_lshl_b32 s45, s{S_M}, 2
        s_add_u32 s45, s45, s{S_FLOFF}
        v_mov_b32 v{V_T0 + 1}, s{S_STEP}
        v_mov_b32 v{V_T0 + 2}, 0
        s_mov_b64 exec, 1
        s_cmp_lg_u32 s{S_MODE}, 0
        s_cbranch_scc1 {Ls}
        buffer_store_dword v{V_T0 + 1}, v{V_T0 + 2}, s[4:7], s45 offen
        s_branch {Ld}
        {Ls}:
        buffer_store_dword v{V_T0 + 1}, v{V_T0 + 2}, s[4:7], s45 offen sc1
        {Ld}:
        s_mov_b64 exec, -1
        {L}:
        """)
    def hop_local(self):
        E = self.E; L = E.label('hop'); Ls = E.label('fs'); Ld = E.label('fd')
        if 'st' in E.vm: E.wait_vm('st')
        else: E.wait_vm_all(force=True)
        self._left = list(E.vm)
        E.wait_lg_all()
        E.barrier()
        E.e(f'''
        s_add_u32 s{S_STEP}, s{S_STEP}, 1
        s_cmp_lg_u32 s{S_W}, 0
        s_cbranch_scc1 {L}
        s_lshl_b32 s45, s{S_M}, 2
        s_add_u32 s45, s45, s{S_FLOFF}
        v_mov_b32 v{V_T0 + 1}, s{S_STEP}
        v_mov_b32 v{V_T0 + 2}, 0
        s_mov_b64 exec, 1
        s_cmp_lg_u32 s{S_MODE}, 0
        s_cbranch_scc1 {Ls}
        buffer_store_dword v{V_T0 + 1}, v{V_T0 + 2}, s[4:7], s45 offen
        s_branch {Ld}
        {Ls}:
        buffer_store_dword v{V_T0 + 1}, v{V_T0 + 2}, s[4:7], s45 offen sc1
        {Ld}:
        s_mov_b64 exec, -1
        ''')
        if self.opt.get('allpoll'):
            E.place(L)
            self.poll(S_FLOFF, S_STEP, 1)
        else:
            self.poll(S_FLOFF, S_STEP, 1)
            E.place(L)
            E.barrier()
    def stats_loads(self):
        E = self.E
        E.e(f's_lshl_b32 s44, s{S_W}, 12')
        E.e(f's_add_u32 s44, s44, s{S_ST}')
        for i in range(8):
            E.vmem(f'buffer_load_dwordx2 v[{ST + 2 * i}:{ST + 2 * i + 1}], v{V_L8}, s[4:7], s44 offen offset:{512 * i} sc1', 'stats')
    def stats_items(self, c1_sign):
        E = self.E; a, b, c, d = T, T + 1, T + 2, T + 3
        it = [lambda: E.wait_vm('stats')]
        it += [f'v_add_f32 v{a}, v{ST}, v{ST + 2}', f'v_add_f32 v{b}, v{ST + 4}, v{ST + 6}',
               f'v_add_f32 v{c}, v{ST + 1}, v{ST + 3}', f'v_add_f32 v{d}, v{ST + 5}, v{ST + 7}']
        for i in (4, 6):
            it += [f'v_add_f32 v{a}, v{a}, v{ST + 2 * i}', f'v_add_f32 v{b}, v{b}, v{ST + 2 * i + 2}',
                   f'v_add_f32 v{c}, v{c}, v{ST + 2 * i + 1}', f'v_add_f32 v{d}, v{d}, v{ST + 2 * i + 3}']
        it += [f'v_add_f32 v{a}, v{a}, v{b}', f'v_add_f32 v{c}, v{c}, v{d}', f'v_mov_b32 v{b}, v{a}', 's_nop 1',
               f'v_permlane32_swap_b32 v{a}, v{b}', f'v_add_f32 v{a}, v{a}, v{b}',
               f'v_mul_f32 v{a}, 0x3b000000, v{a}']
        it += [f'v_mov_b32 v{T + 4}, 0x3d000000']
        for i in range(8):
            it += [f'v_fma_f32 v{ST + 2 * i}, v{ST + 2 * i}, v{T + 4}, -v{a}']
        it += [f'v_mul_f32 v{b}, v{ST}, v{ST}', f'v_mul_f32 v{d}, v{ST + 2}, v{ST + 2}']
        for i in range(2, 8, 2):
            it += [f'v_fmac_f32 v{b}, v{ST + 2 * i}, v{ST + 2 * i}', f'v_fmac_f32 v{d}, v{ST + 2 * i + 2}, v{ST + 2 * i + 2}']
        it += [f'v_add_f32 v{b}, v{b}, v{d}', f'v_mov_b32 v{T + 4}, 0x42000000',
               f'v_fmac_f32 v{c}, v{T + 4}, v{b}',
               f'v_mov_b32 v{b}, v{c}', 's_nop 1' if False else f'v_sub_f32 v{a}, 0, v{a}', 's_nop 0',
               f'v_permlane32_swap_b32 v{c}, v{b}', f'v_add_f32 v{c}, v{c}, v{b}',
               f'v_mov_b32 v{d}, {EPS_LN:#x}',
               f'v_fmac_f32 v{d}, 0x3b000000, v{c}',
               f'v_cvt_pk_bf16_f32 v{MF}, v{a}, v{a}',
               f'v_rsq_f32 v{V_R}, v{d}',
               f'v_lshlrev_b32 v{b}, 16, v{MF}',
               f'v_sub_f32 v{b}, v{a}, v{b}',
               f'v_mul_f32 v{V_C1}, {(LOG2E if c1_sign > 0 else NLOG2E):#x}, v{V_R}',
               f'v_mov_b32 v{V_C2}, v{d}',
               f'v_cvt_pk_bf16_f32 v{MF + 1}, v{b}, v{b}']
        return it
    def init(self):
        E = self.E; single = self.opt.get('single', True)
        dbg = self.ts or self.opt.get('dbgclk')
        E.e(f'''
        s_cmp_ge_u32 s2, 256
        s_cbranch_scc1 L_k1_end
        {'s_memrealtime s[96:97]' if dbg else ''}
        {'s_memtime s[98:99]' if dbg else ''}
        s_load_dwordx2 s[4:5], s[0:1], 72
        s_load_dwordx2 s[8:9], s[0:1], 56
        {'s_load_dwordx4 s[76:79], s[0:1], 0' if single else 's_load_dwordx2 s[72:73], s[0:1], 64'}
        {'s_load_dwordx2 s[80:81], s[0:1], 16' if single else ''}
        {'s_load_dwordx4 s[84:87], s[0:1], 32' if single else ''}
        {'s_load_dwordx2 s[88:89], s[0:1], 48' if single else ''}
        v_lshrrev_b32 v9, 6, v0
        v_and_b32 v{V_LANE}, 63, v0
        v_readfirstlane_b32 s{S_W}, v9
        s_getreg_b32 s{S_MODE + 3}, hwreg(HW_REG_XCC_ID)
        s_and_b32 s{S_MODE + 3}, s{S_MODE + 3}, 7
        v_lshlrev_b32 v{V_L16}, 4, v{V_LANE}
        v_lshlrev_b32 v{V_L8}, 3, v{V_LANE}
        v_and_b32 v9, 31, v{V_LANE}
        v_lshlrev_b32 v{V_S8}, 3, v9
        v_and_b32 v9, 15, v{V_LANE}
        v_lshlrev_b32 v{V_FLAG}, 2, v9
        s_and_b32 s40, s2, 7
        s_lshr_b32 s41, s2, 3
        s_lshl_b32 s{S_C}, s40, 1
        s_lshr_b32 s42, s41, 4
        s_add_u32 s{S_C}, s{S_C}, s42
        s_and_b32 s{S_M}, s41, 15
        s_mov_b32 s{S_L}, 0
        s_mov_b32 s{S_MODE}, 0
        s_mov_b32 s{S_MODE + 2}, 0
        s_mov_b32 s{S_SLOT}, 0
        s_mov_b32 s{S_SLOT + 1}, {SLOT}
        s_mov_b32 s{S_SLOT + 2}, {2 * SLOT}
        s_mov_b32 s{S_SLOT + 3}, {3 * SLOT}
        s_lshl_b32 s{S_W8K}, s{S_W}, 13
        s_lshr_b32 s{S_R64}, s{S_M}, 3
        s_and_b32 s{S_CB}, s{S_M}, 7
        s_and_b32 s{S_RH}, s{S_W}, 1
        s_lshr_b32 s{S_KH}, s{S_W}, 1
        s_lshl_b32 s{S_SBW}, s{S_R64}, 1
        s_add_u32 s{S_SBW}, s{S_SBW}, s{S_RH}
        s_mul_i32 s{S_WQ}, s{S_M}, {3 * SLAB33}
        s_add_u32 s{S_WQ}, s{S_WQ}, {WQKV}
        s_lshl_b32 s{S_WO}, s{S_CB}, 16
        s_add_u32 s{S_WO}, s{S_WO}, {WO}
        s_mul_i32 s{S_W13}, s{S_M}, {7 * SLAB33}
        s_add_u32 s{S_W13}, s{S_W13}, {W13}
        s_mul_i32 s{S_W2}, s{S_CB}, {224 * 1024}
        s_add_u32 s{S_W2}, s{S_W2}, {W2}
        s_lshl_b32 s{S_XF}, s{S_C}, 17
        s_add_u32 s{S_XF}, s{S_XF}, {XF0}
        s_lshl_b32 s{S_ST}, s{S_C}, 14
        s_add_u32 s{S_ST}, s{S_ST}, {ST0}
        s_lshl_b32 s{S_FLOFF}, s{S_C}, 7
        s_add_u32 s{S_FLOFF}, s{S_FLOFF}, {FL}
        v_mov_b32 v{MF + 2}, 0
        v_mov_b32 v{MF + 3}, 0
        v_mov_b32 v{ONES}, 0x3f803f80
        v_mov_b32 v{ONES + 1}, 0x3f803f80
        v_mov_b32 v{ONES + 2}, 0x3f803f80
        v_mov_b32 v{ONES + 3}, 0x3f803f80
        s_waitcnt lgkmcnt(0)
        s_and_b32 s5, s5, 0xffff
        s_mov_b32 s6, {WS_BYTES}
        s_mov_b32 s7, 0x20000
        ''')
        if single:
            E.e(f'v_mov_b32 v9, {EPOCH}')
            E.vmem(f'buffer_load_dword v{T + 71}, v9, s[4:7], 0 offen sc1', 'epoch')
            if self.opt.get('tlbw'):
                E.e(f'v_min_u32 v10, 6, v{V_LANE}'); E.e('v_lshlrev_b32 v10, 21, v10')
                E.vmem(f'buffer_load_dword v{T + 70}, v10, s[4:7], 0 offen', 'tlb')
        E.e(f'''
        s_and_b32 s9, s9, 0xffff
        s_mov_b32 s10, {2048 * 512 * 2}
        s_mov_b32 s11, 0x20000
        ''')
        if self.ts: E.e('v_mov_b32 v253, 0')
        self.pstamp(0)
        if single: self.prep_issue()
        self.pstamp(1)
        if self.opt.get('codepf', False):
            E.e('s_getpc_b64 s[92:93]')
            E.place('L_k1_pc')
            E.e(f's_lshl_b32 s40, s{S_W}, 6')
            E.e(f'v_add_u32 v9, s40, v{V_LANE}')
            E.e(f'v_lshlrev_b32 v9, 7, v9')
            E.e('s_mov_b32 s40, L_k1_last-L_k1_pc')
            E.e('v_min_u32 v9, s40, v9')
            E.e(f'global_load_dword v{V_PF + 1}, v9, s[92:93]')
            E.vm.append('code')
        def persist():
            E.e(f'''
            s_and_b32 s55, s{S_C}, 1
            s_lshl_b32 s56, s55, 1
            s_add_u32 s56, s56, s{S_R64}
            s_mov_b32 s94, -1
            s_mov_b32 s95, -1
            s_mul_i32 s53, s{S_KH}, 3072
            s_lshl_b32 s54, s{S_KH}, 10
            s_add_u32 s54, s54, 1024
            ''')
            for i in range(4): E.e(f'v_add_u32 v{V_SLOT + i}, s{S_SLOT + i}, v{V_L16}')
            E.e(f'''
            s_lshl_b32 s45, s{S_W}, 8
            s_add_u32 s45, s45, {L_RS}
            v_lshrrev_b32 v9, 1, v{V_S8}
            v_add_u32 v{A_RSW}, s45, v9
            v_lshrrev_b32 v10, 5, v{V_LANE}
            v_lshlrev_b32 v9, 4, v10
            v_add_u32 v{A_RSR}, s45, v9
            s_mul_i32 s45, s{S_W}, 2304
            s_add_u32 s45, s45, {L_KVS}
            v_and_b32 v9, 15, v{V_LANE}
            v_lshlrev_b32 v11, 4, v10
            v_add_u32 v9, v9, v11
            v_lshlrev_b32 v9, 5, v9
            v_and_b32 v11, 16, v{V_LANE}
            v_lshlrev_b32 v12, 6, v11
            v_add_u32 v12, v9, v12
            v_add_u32 v{A_KVW}, s45, v12
            v_lshlrev_b32 v12, 5, v10
            v_add_u32 v{A_ZW}, s45, v12
            v_add_u32 v12, 2048, v12
            v_cmp_eq_u32 vcc, 0, v11
            v_add_u32 v13, 1024, v9
            v_add_u32 v14, 64, v12
            v_cndmask_b32 v9, v12, v9, vcc
            v_cndmask_b32 v13, v14, v13, vcc
            v_add_u32 v{A_KZ0}, {L_KVF}, v9
            v_add_u32 v{A_KZ1}, {L_KVF}, v13
            s_lshl_b32 s45, s{S_W}, 10
            v_add_u32 v{A_RED}, s45, v{V_L16}
            s_lshl_b32 s45, s{S_W}, 12
            s_add_u32 s45, s45, {L_XCH}
            v_add_u32 v{A_XW}, s45, v{V_L16}
            s_xor_b32 s46, s{S_W}, 2
            s_lshl_b32 s46, s46, 12
            s_add_u32 s46, s46, {L_XCH}
            v_add_u32 v{A_XR}, s46, v{V_L16}
            v_lshlrev_b32 v{A_FA}, 2, v{V_LANE}
            v_lshlrev_b32 v{V_S8}, 1, v{V_S8}
            s_lshl_b32 s44, s{S_C}, 2
            s_add_u32 s44, s44, s{S_SBW}
            s_lshl_b32 s47, s44, 12
            s_lshl_b32 s44, s44, 15
            s_lshl_b32 s45, s{S_CB}, 2
            s_lshl_b32 s46, s{S_KH}, 1
            s_add_u32 s45, s45, s46
            s_lshl_b32 s45, s45, 10
            s_add_u32 s{S_XD}, s44, s45
            s_add_u32 s{S_XD}, s{S_XD}, {XF0}
            s_lshr_b32 s45, s{S_CB}, 1
            s_lshl_b32 s45, s45, 10
            s_add_u32 s47, s47, s45
            s_and_b32 s45, s{S_CB}, 1
            s_lshl_b32 s45, s45, 9
            s_add_u32 s47, s47, s45
            s_lshl_b32 s45, s{S_KH}, 3
            s_add_u32 s{S_SD}, s47, s45
            s_add_u32 s{S_SD}, s{S_SD}, {ST0}
            s_lshl_b32 s45, s{S_CB}, 7
            s_add_u32 s{S_OUT}, s44, s45
            s_lshl_b32 s45, s{S_KH}, 6
            s_add_u32 s{S_OUT}, s{S_OUT}, s45
            s_lshl_b32 s44, s{S_C}, 17
            s_lshl_b32 s45, s{S_W}, 15
            s_add_u32 s44, s44, s45
            s_lshl_b32 s45, s{S_M}, 11
            s_add_u32 s44, s44, s45
            s_add_u32 s{S_OD}, s44, {LB(0) + OF_}
            s_lshl_b32 s44, s{S_C}, 2
            s_add_u32 s44, s44, s{S_W}
            s_mul_i32 s44, s44, {112 * 1024}
            s_mul_i32 s45, s{S_M}, {7 * 1024}
            s_add_u32 s44, s44, s45
            s_add_u32 s{S_HD}, s44, {LB(0) + HF_}
            s_mul_i32 s{S_KG}, s{S_M}, {16 * KVP_STRIDE}
            s_add_u32 s{S_KG}, s{S_KG}, {LB(0) + KVP_}
            s_mul_i32 s45, s{S_C}, {KVP_STRIDE}
            s_add_u32 s{S_KP}, s{S_KG}, s45
            s_lshl_b32 s{S_FAR}, s{S_M}, 8
            s_add_u32 s{S_FAR}, s{S_FAR}, {FA}
            s_lshl_b32 s45, s{S_C}, 2
            s_add_u32 s45, s45, s{S_W}
            s_lshl_b32 s45, s45, 2
            s_add_u32 s{S_FAW}, s{S_FAR}, s45
            ''')
            if self.rawp():
                E.e(f'''
                v_lshrrev_b32 v9, 2, v{V_LANE}
                v_and_b32 v9, 7, v9
                v_lshlrev_b32 v9, 10, v9
                v_lshrrev_b32 v10, 5, v{V_LANE}
                v_lshlrev_b32 v10, 6, v10
                v_add_u32 v9, v9, v10
                v_and_b32 v10, 3, v{V_LANE}
                v_lshlrev_b32 v10, 4, v10
                v_add_u32 v{V_RAW2}, v9, v10
                s_lshl_b32 s3, s{S_W}, 15
                s_lshl_b32 s45, s{S_CB}, 7
                s_add_u32 s3, s3, s45
                s_mul_i32 s53, s{S_KH}, 2560
                s_mul_i32 s54, s{S_KH}, 1536
                s_add_u32 s54, s54, 512
                ''')
                if not self.raw(): self.proj_srds()
            if self.raw() or self.rawp():
                E.e(f'''
                v_lshrrev_b32 v9, 2, v{V_LANE}
                v_mul_u32_u24 v9, 3072, v9
                v_and_b32 v10, 3, v{V_LANE}
                v_lshlrev_b32 v11, 4, v10
                v_add_u32 v{V_RAW}, v9, v11
                v_lshrrev_b32 v9, 5, v{V_LANE}
                v_lshlrev_b32 v9, 2, v9
                v_and_b32 v11, 15, v{V_LANE}
                v_lshrrev_b32 v11, 2, v11
                v_add_u32 v9, v9, v11
                v_lshlrev_b32 v9, 6, v9
                v_lshrrev_b32 v11, 4, v{V_LANE}
                v_and_b32 v11, 1, v11
                v_lshlrev_b32 v11, 5, v11
                v_add_u32 v9, v9, v11
                v_lshlrev_b32 v10, 3, v10
                v_add_u32 v{V_TR}, v9, v10
                ''')
        if self.raw():
            self.prologue_raw(persist, self.prep_issue_job)
        else:
            if single: self.prep_finish()
            persist()
            if not single:
                E.e(f's_mov_b32 s{S_B}, 0')
            E.e(f's_mov_b32 s{S_STEP}, s{S_B}')
            E.e(f's_add_u32 s{S_MODE + 3}, s{S_MODE + 3}, s{S_B}'); E.e(f's_add_u32 s{S_MODE + 3}, s{S_MODE + 3}, 1')
            if single and self.opt.get('warm'):
                for q in range(4): E.e(f'v_mov_b32 v{140 + q}, 0')
                if 'o' in self.opt['warm']:
                    for k in range(2): E.e(f'buffer_store_dwordx4 v[140:143], v{V_L16}, s[4:7], s{S_OD} offen offset:{1024 * k} sc1')
                if 'h' in self.opt['warm']:
                    E.e(f's_mov_b32 s44, s{S_HD}')
                    for k in range(7):
                        if k == 4: E.e('s_add_u32 s44, s44, 4096')
                        E.e(f'buffer_store_dwordx4 v[140:143], v{V_L16}, s[4:7], s44 offen offset:{1024 * (k % 4)} sc1')
            if single: self.prep_publish()
            else:
                L = E.label('reg')
                E.e(f'''
                s_cmp_lg_u32 s{S_W}, 0
                s_cbranch_scc1 {L}
                s_lshl_b32 s45, s{S_C}, 7
                s_lshl_b32 s46, s{S_M}, 2
                s_add_u32 s45, s45, s46
                s_add_u32 s45, s45, {REG}
                v_mov_b32 v10, s{S_MODE + 3}
                v_mov_b32 v11, 0
                s_mov_b64 exec, 1
                buffer_store_dword v10, v11, s[4:7], s45 offen sc1
                s_mov_b64 exec, -1
                {L}:
                ''')
        if not self.raw():
            if single:
                AP = T + 0
                E.e(f'v_and_b32 v9, 31, v{V_LANE}'); E.e('v_lshlrev_b32 v9, 4, v9')
                E.e(f's_mul_i32 s44, s{S_M}, {3 * 512}'); E.e(f's_add_u32 s44, s44, {AUGP}')
                for i in range(10):
                    if i == 3:
                        E.e(f's_mul_i32 s44, s{S_M}, {7 * 512}'); E.e(f's_add_u32 s44, s44, {AUGP + 48 * 512}')
                    k = i if i < 3 else i - 3
                    E.vmem(f'buffer_load_dwordx4 v[{AP + 4 * i}:{AP + 4 * i + 3}], v9, s[4:7], s44 offen offset:{k * 512}', 'augp')
            self.dma(0, S_WQ, 0, 33); self.dma(1, S_WQ, SLAB33, 33)
            if not single:
                for i in range(10):
                    base, k = (S_WQ, i) if i < 3 else (S_W13, i - 3)
                    E.e(f's_add_u32 s44, s{base}, {k * SLAB33 + 32 * 1024}')
                    E.vmem(f'buffer_load_dword v{AUG + i}, v{V_L16}, s[4:7], s44 offen', 'aug')
        for q in AQ: E.e(f'v_mov_b32 v{q + 2}, 0'); E.e(f'v_mov_b32 v{q + 3}, 0')
        if not single:
            E.vmem(f'buffer_load_dwordx4 v[{RES}:{RES + 3}], v{V_L16}, s[4:7], s{S_XD} offen', 'res')
            E.vmem(f'buffer_load_dwordx4 v[{RES + 4}:{RES + 7}], v{V_L16}, s[4:7], s{S_XD} offen offset:1024', 'res')
    def pstamp(self, i):
        if not self.ts: return
        E = self.E
        E.e('s_memtime s[92:93]'); E.e('s_waitcnt lgkmcnt(0)'); E.e(f'v_writelane_b32 v253, s92, {i}')
    def aug_words(self, AP, idx):
        E = self.E; n = len(idx)
        for i in range(n):
            b = AP + 4 * i
            E.e(f'v_add_f32 v{b}, v{b}, v{b + 1}'); E.e(f'v_add_f32 v{b + 2}, v{b + 2}, v{b + 3}')
        for i in range(n): E.e(f'v_add_f32 v{AP + 4 * i}, v{AP + 4 * i}, v{AP + 4 * i + 2}')
        for i in range(n): E.e(f'v_cvt_pk_bf16_f32 v{AP + 4 * i + 1}, v{AP + 4 * i}, v{AP + 4 * i}')
        for i in range(n): E.e(f'v_lshlrev_b32 v{AP + 4 * i + 1}, 16, v{AP + 4 * i + 1}')
        for i in range(n): E.e(f'v_sub_f32 v{AP + 4 * i + 1}, v{AP + 4 * i}, v{AP + 4 * i + 1}')
        E.e(f'v_cmp_gt_u32 vcc, 32, v{V_LANE}')
        for i in range(n): E.e(f'v_cvt_pk_bf16_f32 v{AP + 4 * i}, v{AP + 4 * i}, v{AP + 4 * i + 1}')
        for i in range(n): E.e(f'v_cndmask_b32 v{AUG + idx[i]}, 0, v{AP + 4 * i}, vcc')
    def layer0_block(self):
        E = self.E; L = E.label('l0'); Lw = E.label('l0w'); Lp = E.label('l0p'); Lt = E.label('l0t'); Lx = E.label('l0x')
        E.e(f"""
        s_cmp_lg_u32 s{S_L}, 0
        s_cbranch_scc1 {L}
        s_waitcnt lgkmcnt(0)
        s_barrier
        """)
        self.job_process()
        E.e(f"""
        s_waitcnt vmcnt(0)
        s_barrier
        s_cmp_lg_u32 s{S_W}, 0
        s_cbranch_scc1 {Lw}
        s_lshl_b32 s46, s2, 6
        s_add_u32 s46, s46, {PF2}
        s_add_u32 s47, s{S_B}, 1
        v_mov_b32 v14, s47
        v_mov_b32 v15, 0
        s_mov_b64 exec, 1
        buffer_store_dword v14, v15, s[4:7], s46 offen sc1
        s_mov_b64 exec, -1
        ; lanes 0..1 wo jobs, 2..13 w1/w3 jobs, 14..20 w2 jobs
        s_lshl_b32 s45, s{S_CB}, 1
        s_add_u32 s45, s45, 160
        v_add_u32 v14, s45, v{V_LANE}
        s_mul_i32 s45, s{S_M}, 7
        s_lshr_b32 s45, s45, 2
        s_lshl_b32 s45, s45, 2
        s_add_u32 s45, s45, 48-2
        v_add_u32 v15, s45, v{V_LANE}
        v_min_u32 v15, 159, v15
        v_cmp_le_u32 vcc, 2, v{V_LANE}
        s_nop 1
        v_cndmask_b32 v14, v14, v15, vcc
        s_mul_i32 s45, s{S_CB}, 7
        s_add_u32 s45, s45, 176-14
        v_add_u32 v15, s45, v{V_LANE}
        v_cmp_le_u32 vcc, 14, v{V_LANE}
        s_nop 1
        v_cndmask_b32 v14, v14, v15, vcc
        v_lshlrev_b32 v14, 6, v14
        v_add_u32 v14, {PF2}, v14
        s_add_u32 s47, s{S_B}, 1
        s_mov_b32 s58, 0x1fffff
        s_mov_b32 s59, 0
        s_mov_b64 exec, s[58:59]
        s_mov_b32 s46, 0
        {Lp}:
        s_add_u32 s46, s46, 1
        s_cmp_gt_u32 s46, {self.spin}
        s_cbranch_scc1 {Lt}
        buffer_load_dword v{V_T0}, v14, s[4:7], 0 offen sc1
        s_waitcnt vmcnt(0)
        v_subrev_u32 v15, s47, v{V_T0}
        v_cmp_le_u32 vcc, 8, v15
        s_cbranch_vccnz {Lp}
        s_branch {Lx}
        {Lt}:
        s_mov_b32 s{S_MODE + 2}, 5
        {Lx}:
        s_mov_b64 exec, -1
        {Lw}:
        s_barrier
        v_and_b32 v9, 31, v{V_LANE}
        v_lshlrev_b32 v9, 4, v9
        s_mul_i32 s44, s{S_M}, {7 * 512}
        s_add_u32 s44, s44, {AUGP + 48 * 512}
        """)
        for k in range(7): E.e(f'buffer_load_dwordx4 v[{WF + 4 * k}:{WF + 4 * k + 3}], v9, s[4:7], s44 offen offset:{k * 512} sc1')
        self.aug_local([(2, 2)])
        E.e('s_waitcnt vmcnt(0)')
        self.aug_words(WF, [3 + k for k in range(7)])
        E.place(L)
    def aug_finish(self):
        E = self.E; AP = T + 0; L = E.label('aug')
        n = len(E.vm) - 1 - max(i for i, t in enumerate(E.vm) if t == 'augp')
        E.e(f's_cmp_lg_u32 s{S_L}, 0'); E.e(f's_cbranch_scc1 {L}')
        E.e(f's_waitcnt vmcnt({n})')
        for i in range(10):
            b = AP + 4 * i
            E.e(f'v_add_f32 v{b}, v{b}, v{b + 1}'); E.e(f'v_add_f32 v{b + 2}, v{b + 2}, v{b + 3}')
        for i in range(10): E.e(f'v_add_f32 v{AP + 4 * i}, v{AP + 4 * i}, v{AP + 4 * i + 2}')
        for i in range(10): E.e(f'v_cvt_pk_bf16_f32 v{AP + 4 * i + 1}, v{AP + 4 * i}, v{AP + 4 * i}')
        for i in range(10): E.e(f'v_lshlrev_b32 v{AP + 4 * i + 1}, 16, v{AP + 4 * i + 1}')
        for i in range(10): E.e(f'v_sub_f32 v{AP + 4 * i + 1}, v{AP + 4 * i}, v{AP + 4 * i + 1}')
        E.e(f'v_cmp_gt_u32 vcc, 32, v{V_LANE}')
        for i in range(10): E.e(f'v_cvt_pk_bf16_f32 v{AP + 4 * i}, v{AP + 4 * i}, v{AP + 4 * i + 1}')
        for i in range(10): E.e(f'v_cndmask_b32 v{AUG + i}, 0, v{AP + 4 * i}, vcc')
        E.place(L)
    def prep_issue(self):
        E = self.E
        if self.opt.get('jobfirst') and not self.raw(): self.prep_issue_job()
        E.e(f"""
        s_mov_b32 s72, s76
        s_and_b32 s73, s77, 0xffff
        s_mov_b32 s74, {2048*512*2}
        s_mov_b32 s75, 0x20000
        s_lshl_b32 s40, s{S_C}, 2
        s_add_u32 s40, s40, s{S_SBW}
        s_lshl_b32 s40, s40, 15
        s_lshl_b32 s41, s{S_CB}, 7
        s_add_u32 s40, s40, s41
        s_lshl_b32 s41, s{S_KH}, 6
        s_add_u32 s40, s40, s41
        v_and_b32 v134, 31, v{V_LANE}
        v_lshlrev_b32 v134, 10, v134
        v_lshrrev_b32 v135, 5, v{V_LANE}
        v_lshlrev_b32 v135, 3, v135
        v_add_u32 v134, v134, v135
        """)
        for i in range(4):
            E.vmem(f'buffer_load_dwordx2 v[{RES+2*i}:{RES+2*i+1}], v134, s[72:75], s40 offen offset:{16*i}', 'x')
        if not self.raw() and not self.opt.get('jobfirst'): self.prep_issue_job()
    def prep_issue_job(self):
        E = self.E
        E.e(f"""
        s_mov_b32 s67, 0x20000
        s_mov_b32 s71, 0x20000
        s_lshl_b32 s58, s{S_W}, 13
        s_add_u32 s58, s58, {(3 if self.raw() else 2) * SLOT}
        s_mov_b32 s45, 0
        s_mov_b32 s49, 0
        s_cmp_ge_u32 s2, {160 if self.rawp() else 232}
        s_cbranch_scc1 L_p_none
        s_cmp_lt_u32 s2, {48 if self.raw() else 0}
        s_cbranch_scc1 L_p_none
        s_mov_b32 s45, 1
        s_cmp_ge_u32 s2, 176
        s_cbranch_scc1 L_p_j2
        s_cmp_ge_u32 s2, 160
        s_cbranch_scc1 L_p_jo
        s_cmp_ge_u32 s2, 48
        s_cbranch_scc1 L_p_j13
        s_lshr_b32 s50, s2, 4
        s_lshr_b32 s51, s2, 1
        s_and_b32 s51, s51, 7
        s_and_b32 s52, s2, 1
        s_mov_b32 s64, s78
        s_and_b32 s65, s79, 0xffff
        s_mov_b32 s66, {512*1536*2}
        s_mov_b32 s41, 3072
        s_add_u32 s53, s50, 1
        s_cmp_eq_u32 s50, 2
        s_cselect_b32 s53, 0, s53
        s_lshl_b32 s53, s53, 10
        s_lshl_b32 s42, s51, 7
        s_add_u32 s42, s42, s53
        s_lshl_b32 s44, s52, 4             ; first kb of the job
        s_lshl_b32 s53, s{S_W}, 2
        s_add_u32 s44, s44, s53            ; first kb of the wave
        s_mul_i32 s53, s51, 6
        s_add_u32 s53, s53, s50
        s_mul_i32 s46, s53, {SLAB33}
        s_add_u32 s46, s46, {WQKV}
        s_lshl_b32 s54, s44, 10
        s_add_u32 s46, s46, s54
        s_mov_b32 s47, {3 * SLAB33}
        s_mov_b32 s60, 0
        s_mov_b32 s61, 1024
        s_mov_b32 s62, 2048
        s_mov_b32 s63, 3072
        s_lshl_b32 s49, s53, 9
        s_lshl_b32 s54, s52, 3
        s_add_u32 s49, s49, s54
        s_add_u32 s49, s49, {AUGP}
        s_branch L_p_jobA
        L_p_jo:
        s_sub_u32 s50, s2, 160
        s_lshr_b32 s51, s50, 1             ; cb
        s_and_b32 s52, s50, 1              ; khalf
        {'s_load_dwordx2 s[64:65], s[0:1], 16' if self.raw() else 's_mov_b32 s64, s80'}
        {'s_waitcnt lgkmcnt(0)' if self.raw() else 's_mov_b32 s65, s81'}
        s_and_b32 s65, s65, 0xffff
        s_mov_b32 s66, {512*512*2}
        s_mov_b32 s41, 1024
        s_lshl_b32 s42, s51, 7
        s_lshl_b32 s44, s52, 4
        s_lshl_b32 s53, s{S_W}, 2
        s_add_u32 s44, s44, s53
        s_lshl_b32 s46, s51, 16
        s_add_u32 s46, s46, {WO}
        s_lshl_b32 s54, s{S_W}, 4          ; (4w)*4
        s_lshl_b32 s55, s52, 1
        s_add_u32 s54, s54, s55
        s_lshl_b32 s54, s54, 10
        s_add_u32 s46, s46, s54
        s_mov_b32 s47, 1024
        s_mov_b32 s60, 0
        s_mov_b32 s61, 4096
        s_mov_b32 s62, 8192
        s_mov_b32 s63, 12288
        s_branch L_p_jobA
        L_p_j2:
        s_sub_u32 s50, s2, 176
        s_mul_i32 s51, s50, 9363
        s_lshr_b32 s51, s51, 16
        s_mul_i32 s52, s51, 7
        s_sub_u32 s52, s50, s52            ; kp
        {'s_load_dwordx2 s[64:65], s[0:1], 48' if self.raw() else 's_mov_b32 s64, s88'}
        {'s_waitcnt lgkmcnt(0)' if self.raw() else 's_mov_b32 s65, s89'}
        s_and_b32 s65, s65, 0xffff
        s_mov_b32 s66, {1792*512*2}
        s_mov_b32 s41, 1024
        s_lshl_b32 s42, s51, 7
        s_lshl_b32 s44, s52, 4
        s_lshl_b32 s53, s{S_W}, 2
        s_add_u32 s44, s44, s53            ; kb0
        s_cmp_ge_u32 s44, 56
        s_cselect_b32 s54, 56, 0
        s_cselect_b32 s55, 2, 0
        s_sub_u32 s54, s44, s54
        s_lshl_b32 s55, s55, 10
        s_mul_i32 s46, s51, {224*1024}
        s_add_u32 s46, s46, s55
        s_add_u32 s46, s46, {W2}
        s_mov_b32 s47, 1024
        """)
        for k in range(4):
            if self.opt.get('earlyd', False):
                E.e(f"""
                s_add_u32 s50, s54, {k}
                s_mul_i32 s52, s50, 9363
                s_lshr_b32 s52, s52, 16
                s_mul_i32 s53, s52, 7
                s_sub_u32 s53, s50, s53
                s_mul_i32 s50, s52, 5
                s_add_u32 s50, s50, s53
                s_lshl_b32 s52, s52, 1
                s_add_u32 s52, s52, s53
                s_add_u32 s52, s52, 35
                s_cmp_ge_u32 s53, 5
                s_cselect_b32 s50, s52, s50
                s_lshl_b32 s{60 + k}, s50, 12
                """)
            else:
                E.e(f's_add_u32 s50, s54, {k}'); E.e(f's_lshl_b32 s{60 + k}, s50, 12')
        E.e(f"""
        L_p_jobA:
        v_lshrrev_b32 v136, 2, v{V_LANE}
        v_and_b32 v136, 7, v136
        v_mul_lo_u32 v136, v136, s41
        v_lshrrev_b32 v137, 5, v{V_LANE}
        v_lshlrev_b32 v137, 6, v137
        v_add_u32 v136, v136, v137
        v_and_b32 v137, 3, v{V_LANE}
        v_lshlrev_b32 v137, 4, v137
        v_add_u32 v136, v136, v137
        s_lshl_b32 s56, s41, 3             ; 8 rows
        s_mul_i32 s57, s44, s41
        s_lshl_b32 s57, s57, 4
        s_add_u32 s57, s57, s42
        """)
        for q in range(8):
            E.e(f's_add_u32 m0, s58, {q*1024}')
            E.e('s_nop 0')
            E.e('buffer_load_dwordx4 v136, s[64:67], s57 offen lds')
            if q < 7: E.e('s_add_u32 s57, s57, s56')
        E.e(f"""
        s_branch L_p_none
        L_p_j13:
        s_mov_b32 s45, 2
        s_sub_u32 s50, s2, 48
        s_lshr_b32 s51, s50, 2             ; g
        s_and_b32 s52, s50, 3              ; kq
        {'s_load_dwordx2 s[64:65], s[0:1], 32' if self.raw() else 's_mov_b32 s64, s84'}
        {'s_load_dwordx2 s[68:69], s[0:1], 40' if self.raw() else 's_mov_b32 s68, s86'}
        {'s_waitcnt lgkmcnt(0)' if self.raw() else 's_mov_b32 s65, s85'}
        {'' if self.raw() else 's_mov_b32 s69, s87'}
        s_and_b32 s65, s65, 0xffff
        s_mov_b32 s66, {512*1792*2}
        s_and_b32 s69, s69, 0xffff
        s_mov_b32 s70, {512*1792*2}
        s_lshl_b32 s44, s52, 3
        s_lshl_b32 s53, s{S_W}, 1
        s_add_u32 s44, s44, s53
        s_mul_i32 s46, s51, {4 * SLAB33}
        s_add_u32 s46, s46, {W13}
        s_lshl_b32 s54, s44, 10
        s_add_u32 s46, s46, s54
        s_mov_b32 s47, {SLAB33}
        s_mov_b32 s60, 0
        s_mov_b32 s61, 1024
        s_lshl_b32 s49, s51, 2
        s_add_u32 s49, s49, 48
        s_add_u32 s49, s49, s{S_W}
        s_lshl_b32 s49, s49, 9
        s_lshl_b32 s54, s52, 2
        s_add_u32 s49, s49, s54
        s_add_u32 s49, s49, {AUGP}
        v_lshrrev_b32 v136, 3, v{V_LANE}
        v_mul_u32_u24 v136, 3584, v136
        v_and_b32 v137, 7, v{V_LANE}
        v_lshlrev_b32 v137, 4, v137
        v_add_u32 v136, v136, v137
        s_mul_i32 s57, s44, {16 * 3584}
        s_lshl_b32 s54, s51, 7
        s_add_u32 s57, s57, s54
        """)
        for mtx, srd in ((0, 's[64:67]'), (1, 's[68:71]')):
            E.e('s_mov_b32 s59, s57')
            for q in range(4):
                E.e(f's_add_u32 m0, s58, {mtx * 4096 + q * 1024}')
                E.e('s_nop 0')
                E.e(f'buffer_load_dwordx4 v136, {srd}, s59 offen lds')
                if q < 3: E.e(f's_add_u32 s59, s59, {8 * 3584}')
        E.e('L_p_none:')
    def prep_finish(self):
        E = self.E
        W = 164
        X = list(range(140, 156))
        accs = [ACC[0], ACC[1], ACC[2], 140]
        E.e(f"""
        v_lshrrev_b32 v139, 5, v{V_LANE}
        v_lshlrev_b32 v139, 2, v139
        v_and_b32 v137, 15, v{V_LANE}
        v_lshrrev_b32 v137, 2, v137
        v_add_u32 v139, v139, v137           ; 4*hf + r
        v_lshrrev_b32 v137, 4, v{V_LANE}
        v_and_b32 v137, 1, v137
        v_and_b32 v135, 3, v{V_LANE}
        v_lshlrev_b32 v135, 3, v135          ; c*8
        v_lshlrev_b32 v138, 6, v139
        v_lshlrev_b32 v134, 5, v137
        v_add_u32 v138, v138, v134
        v_add_u32 v138, v138, v135
        v_add_u32 v138, s58, v138
        v_lshlrev_b32 v139, 7, v139
        v_lshlrev_b32 v134, 12, v137
        v_add_u32 v139, v139, v134
        v_add_u32 v139, v139, v135
        v_add_u32 v139, s58, v139            ; w1 / w3 image
        s_lshl_b32 s40, s{S_C}, 2
        s_add_u32 s40, s40, s{S_SBW}
        s_lshl_b32 s50, s40, 12
        s_lshl_b32 s40, s40, 15
        s_lshl_b32 s51, s{S_CB}, 2
        s_lshl_b32 s52, s{S_KH}, 1
        s_add_u32 s51, s51, s52
        s_lshl_b32 s51, s51, 10
        s_add_u32 s40, s40, s51
        s_add_u32 s40, s40, {XF0}
        s_lshr_b32 s51, s{S_CB}, 1
        s_lshl_b32 s51, s51, 10
        s_add_u32 s50, s50, s51
        s_and_b32 s51, s{S_CB}, 1
        s_lshl_b32 s51, s51, 9
        s_add_u32 s50, s50, s51
        s_lshl_b32 s51, s{S_KH}, 3
        s_add_u32 s50, s50, s51
        s_add_u32 s50, s50, {ST0}
        v_lshlrev_b32 v156, 1, v{V_S8}
        v_lshlrev_b32 v157, 2, v{V_LANE}
        """)
        xfirst = self.opt.get('xfirst', True) and not self.opt.get('jobfirst')
        def xpart():
            E.e(f'v_readfirstlane_b32 s{S_E}, v{T + 71}')
            E.e(f'buffer_store_dwordx4 v[{RES}:{RES + 3}], v{V_L16}, s[4:7], s40 offen sc1')
            E.e(f'buffer_store_dwordx4 v[{RES + 4}:{RES + 7}], v{V_L16}, s[4:7], s40 offen offset:1024 sc1')
            XX = list(range(140, 156))
            for i in range(8):
                E.e(f'v_lshlrev_b32 v{XX[2*i]}, 16, v{RES+i}')
                E.e(f'v_and_b32 v{XX[2*i+1]}, 0xffff0000, v{RES+i}')
            stats32(E, XX, (196, 197, 198, 199), 200, 201)
            E.e('buffer_store_dwordx2 v[200:201], v156, s[4:7], s50 offen sc1')
        if xfirst:
            Lw = E.label('xw'); Lw2 = E.label('xw2')
            ncode = 1 if self.opt.get('codepf', False) else 0
            E.e(f's_cmp_eq_u32 s45, 0'); E.e(f's_cbranch_scc1 {Lw}')
            E.e(f's_waitcnt vmcnt({8 + ncode})'); E.e(f's_branch {Lw2}')
            E.place(Lw); E.e(f's_waitcnt vmcnt({ncode})'); E.place(Lw2)
            xpart()
            E.e('s_waitcnt vmcnt(3)')
            self.pstamp(2)
        else:
            E.e('s_waitcnt vmcnt(0)')
            self.pstamp(2)
            xpart()
        E.e(f"""
        s_cmp_eq_u32 s45, 0
        s_cbranch_scc1 L_p_now
        s_cmp_eq_u32 s45, 2
        s_cbranch_scc1 L_p_fB
        """)
        E.vm = []
        def body(vaddr, frs, nacc):
            for f, (o1, o2, t, k) in enumerate(frs):
                E.e(f'ds_read_b64_tr_b16 v[{W+4*f}:{W+4*f+1}], v{vaddr} offset:{o1}')
                E.e(f'ds_read_b64_tr_b16 v[{W+4*f+2}:{W+4*f+3}], v{vaddr} offset:{o2}')
                if f == 6: E.e('s_waitcnt lgkmcnt(6)')
            E.e('s_waitcnt lgkmcnt(0)')
            seen = set()
            for f, (o1, o2, t, k) in enumerate(frs):
                E.e(f's_mul_i32 s51, s47, {t}')
                E.e(f's_add_u32 s51, s51, s{60 + k}'); E.e('s_add_u32 s51, s51, s46')
                E.e(f'buffer_store_dwordx4 v[{W+4*f}:{W+4*f+3}], v{V_L16}, s[4:7], s51 offen sc1')
                a = accs[t]
                E.e(f'v_mfma_f32_32x32x16_bf16 v[{a}:{a+15}], v[{ONES}:{ONES+3}], v[{W+4*f}:{W+4*f+3}], ' + ('0' if t not in seen else f'v[{a}:{a+15}]'))
                seen.add(t)
            E.e('s_nop 15')
            E.e(f's_lshl_b32 s59, s{S_W}, 8')
            E.e('v_add_u32 v158, s59, v157')
            E.e(f'v_add_u32 v158, {L_XCH}, v158')
            for t in range(nacc): E.e(f'ds_write_b32 v158, v{accs[t]} offset:{t * 1024}')
            E.e('s_waitcnt lgkmcnt(0)')
        body(138, [(k * 2048 + t * 512, k * 2048 + t * 512 + 1024, t, k) for t in range(2) for k in range(4)], 2)
        E.e('s_branch L_p_now')
        E.e('L_p_fB:')
        body(139, [(k * 2048 + t * 32, k * 2048 + t * 32 + 1024, t, k) for t in range(4) for k in range(2)], 4)
        E.e(f"""
        L_p_now:
        s_barrier
        s_cmp_eq_u32 s49, 0
        s_cbranch_scc1 L_p_noaug
        s_cmp_eq_u32 s45, 2
        s_cbranch_scc1 L_p_augB
        s_cmp_ge_u32 s{S_W}, 2
        s_cbranch_scc1 L_p_noaug
        s_lshl_b32 s59, s{S_W}, 10
        s_mul_i32 s51, s{S_W}, {3 * 512}
        s_add_u32 s49, s49, s51
        s_branch L_p_augC
        L_p_augB:
        s_lshl_b32 s59, s{S_W}, 10
        L_p_augC:
        v_add_u32 v158, s59, v157
        v_add_u32 v158, {L_XCH}, v158
        ds_read_b32 v159, v158
        ds_read_b32 v160, v158 offset:256
        ds_read_b32 v161, v158 offset:512
        ds_read_b32 v162, v158 offset:768
        s_waitcnt lgkmcnt(0)
        v_add_f32 v159, v159, v160
        v_add_f32 v161, v161, v162
        v_add_f32 v160, v159, v161
        v_mov_b32 v161, 0
        s_cmp_eq_u32 s45, 2
        s_cbranch_scc1 L_p_augD
        buffer_store_dwordx2 v[160:161], v156, s[4:7], s49 offen sc1
        s_branch L_p_noaug
        L_p_augD:
        buffer_store_dword v160, v156, s[4:7], s49 offen sc1
        L_p_noaug:
        """)
        E.e(f's_add_u32 s{S_E}, s{S_E}, 1')
        E.e(f's_mul_i32 s{S_B}, s{S_E}, 0x9e3779b1')
        E.e(f's_and_b32 s{S_B}, s{S_B}, 0xfffffff0')
    def job_issue_params(self):
        E = self.E
        E.e("""
        s_mov_b32 s76, s45
        s_mov_b32 s77, s46
        s_mov_b32 s78, s47
        s_mov_b32 s79, s48
        s_mov_b32 s80, s49
        s_mov_b32 s81, s58
        """)
    def job_process(self):
        E = self.E; W = WF; accs = [ACC[0], ACC[1], ACC[2], 140]
        a1, a2, t0, t1, t2 = 116, 117, 118, 119, 120
        E.e(f"""
        s_cmp_eq_u32 s76, 0
        s_cbranch_scc1 L_p_now
        v_lshrrev_b32 v{a2}, 5, v{V_LANE}
        v_lshlrev_b32 v{a2}, 2, v{a2}
        v_and_b32 v{t0}, 15, v{V_LANE}
        v_lshrrev_b32 v{t0}, 2, v{t0}
        v_add_u32 v{a2}, v{a2}, v{t0}
        v_lshrrev_b32 v{t0}, 4, v{V_LANE}
        v_and_b32 v{t0}, 1, v{t0}
        v_and_b32 v{t1}, 3, v{V_LANE}
        v_lshlrev_b32 v{t1}, 3, v{t1}
        v_lshlrev_b32 v{a1}, 6, v{a2}
        v_lshlrev_b32 v{t2}, 5, v{t0}
        v_add_u32 v{a1}, v{a1}, v{t2}
        v_add_u32 v{a1}, v{a1}, v{t1}
        v_add_u32 v{a1}, s81, v{a1}
        v_lshlrev_b32 v{a2}, 7, v{a2}
        v_lshlrev_b32 v{t2}, 12, v{t0}
        v_add_u32 v{a2}, v{a2}, v{t2}
        v_add_u32 v{a2}, v{a2}, v{t1}
        v_add_u32 v{a2}, s81, v{a2}
        s_cmp_eq_u32 s76, 2
        s_cbranch_scc1 L_p_fB
        """)
        def body(vaddr, frs, nacc):
            for f, (o1, o2, t, k) in enumerate(frs):
                E.e(f'ds_read_b64_tr_b16 v[{W+4*f}:{W+4*f+1}], v{vaddr} offset:{o1}')
                E.e(f'ds_read_b64_tr_b16 v[{W+4*f+2}:{W+4*f+3}], v{vaddr} offset:{o2}')
                if f == 6: E.e('s_waitcnt lgkmcnt(6)')
            E.e('s_waitcnt lgkmcnt(0)')
            seen = set()
            for f, (o1, o2, t, k) in enumerate(frs):
                E.e(f's_mul_i32 s51, s78, {t}'); E.e(f's_mul_i32 s52, s79, {k}')
                E.e('s_add_u32 s51, s51, s52'); E.e('s_add_u32 s51, s51, s77')
                E.e(f'buffer_store_dwordx4 v[{W+4*f}:{W+4*f+3}], v{V_L16}, s[4:7], s51 offen sc1')
                if nacc == 4:
                    a = accs[t]
                    E.e(f'v_mfma_f32_32x32x16_bf16 v[{a}:{a+15}], v[{ONES}:{ONES+3}], v[{W+4*f}:{W+4*f+3}], ' + ('0' if t not in seen else f'v[{a}:{a+15}]'))
                    seen.add(t)
            if nacc == 4:
                E.e('s_nop 15')
                E.e(f's_lshl_b32 s59, s{S_W}, 8')
                E.e(f'v_add_u32 v{t0}, s59, v{A_FA}')
                E.e(f'v_add_u32 v{t0}, {L_XCH}, v{t0}')
                for t in range(nacc): E.e(f'ds_write_b32 v{t0}, v{accs[t]} offset:{t * 1024}')
                E.e('s_waitcnt lgkmcnt(0)')
        body(a1, [(k * 2048 + t * 512, k * 2048 + t * 512 + 1024, t, k) for t in range(2) for k in range(4)], 2)
        E.e('s_branch L_p_now')
        E.e('L_p_fB:')
        body(a2, [(k * 2048 + t * 32, k * 2048 + t * 32 + 1024, t, k) for t in range(4) for k in range(2)], 4)
        E.e(f"""
        L_p_now:
        s_barrier
        s_cmp_lg_u32 s76, 2
        s_cbranch_scc1 L_p_noaug
        s_lshl_b32 s59, s{S_W}, 10
        v_add_u32 v{t0}, s59, v{A_FA}
        v_add_u32 v{t0}, {L_XCH}, v{t0}
        ds_read_b32 v121, v{t0}
        ds_read_b32 v122, v{t0} offset:256
        ds_read_b32 v123, v{t0} offset:512
        ds_read_b32 v124, v{t0} offset:768
        s_waitcnt lgkmcnt(0)
        v_add_f32 v121, v121, v122
        v_add_f32 v123, v123, v124
        s_nop 0
        v_add_f32 v122, v121, v123
        s_nop 0
        buffer_store_dword v122, v{V_S8}, s[4:7], s80 offen sc1
        L_p_noaug:
        """)
    def prologue_raw(self, persist, issue_job):
        E = self.E
        E.e(f"""
        s_mov_b32 s72, s78
        s_and_b32 s73, s79, 0xffff
        s_mov_b32 s74, {512*1536*2}
        s_mov_b32 s75, 0x20000
        """)
        persist()
        E.e('s_waitcnt vmcnt(0)')
        self.pstamp(1)
        E.e(f'v_readfirstlane_b32 s{S_E}, v{T + 71}')
        E.e(f'buffer_store_dwordx4 v[{RES}:{RES + 3}], v{V_L16}, s[4:7], s{S_XD} offen sc1')
        E.e(f'buffer_store_dwordx4 v[{RES + 4}:{RES + 7}], v{V_L16}, s[4:7], s{S_XD} offen offset:1024 sc1')
        XX = list(range(140, 156))
        for i in range(8):
            E.e(f'v_lshlrev_b32 v{XX[2*i]}, 16, v{RES+i}')
            E.e(f'v_and_b32 v{XX[2*i+1]}, 0xffff0000, v{RES+i}')
        stats32(E, XX, (196, 197, 198, 199), 200, 201)
        E.e(f'buffer_store_dwordx2 v[200:201], v{V_S8}, s[4:7], s{S_SD} offen sc1')
        E.e(f's_add_u32 s{S_E}, s{S_E}, 1')
        E.e(f's_mul_i32 s{S_B}, s{S_E}, 0x9e3779b1')
        E.e(f's_and_b32 s{S_B}, s{S_B}, 0xfffffff0')
        E.e(f's_mov_b32 s{S_STEP}, s{S_B}')
        E.e(f's_add_u32 s{S_MODE + 3}, s{S_MODE + 3}, s{S_B}'); E.e(f's_add_u32 s{S_MODE + 3}, s{S_MODE + 3}, 1')
        E.vm = []
        for u in self.qkv_units(0, 0) + self.qkv_units(1, 1): u()
        issue_job()
        self.job_issue_params()
        E.e(f"""
        s_and_b32 s55, s{S_C}, 1
        s_lshl_b32 s56, s55, 1
        s_add_u32 s56, s56, s{S_R64}
        s_mul_i32 s53, s{S_KH}, {2560 if self.rawp() else 3072}
        s_mul_i32 s54, s{S_KH}, {1536 if self.rawp() else 1024}
        s_add_u32 s54, s54, {512 if self.rawp() else 1024}
        """)
        if self.rawp(): self.proj_srds()
        La = E.label('xs'); Lb = E.label('xs2')
        E.e(f"""
        s_cmp_eq_u32 s76, 0
        s_cbranch_scc1 {La}
        s_waitcnt vmcnt(24)
        s_branch {Lb}
        {La}:
        s_waitcnt vmcnt(16)
        {Lb}:
        """)
        self.pstamp(2)
        E.e('s_barrier')
        L = E.label('reg')
        E.e(f"""
        s_cmp_lg_u32 s{S_W}, 0
        s_cbranch_scc1 {L}
        s_lshl_b32 s45, s{S_C}, 7
        s_lshl_b32 s46, s{S_M}, 2
        s_add_u32 s45, s45, s46
        s_add_u32 s45, s45, {REG}
        v_mov_b32 v10, s{S_MODE + 3}
        v_mov_b32 v11, 0
        s_mov_b64 exec, 1
        buffer_store_dword v10, v11, s[4:7], s45 offen sc1
        s_mov_b64 exec, -1
        {L}:
        """)
        La = E.label('kv8'); Lc = E.label('kvd')
        E.e(f"""
        s_cmp_lg_u32 s76, 0
        s_cbranch_scc1 {La}
        s_waitcnt vmcnt(0)
        s_branch {Lc}
        {La}:
        s_waitcnt vmcnt(8)
        {Lc}:
        s_barrier
        """)
        E.vm = []
        self.pstamp(3)
        self.aug_local([(0, 0), (1, 1)])
        self.pstamp(4)
        L = E.label('pp')
        E.e(f"""
        s_cmp_lg_u32 s{S_W}, 0
        s_cbranch_scc1 {L}
        s_lshl_b32 s45, s{S_C}, 7
        s_add_u32 s45, s45, {REG}
        s_add_u32 s47, s{S_B}, 1
        """)
        self.poll(45, 47, 4)
        E.e(f"""
        v_cmp_ne_u32 vcc, s{S_MODE + 3}, v{V_T0}
        s_cmp_lg_u64 vcc, 0
        s_cselect_b32 s47, 1, 0
        v_mov_b32 v10, s47
        v_mov_b32 v11, {L_KVF + 2240}
        ds_write_b32 v11, v10
        s_waitcnt lgkmcnt(0)
        {L}:
        s_barrier
        v_mov_b32 v11, {L_KVF + 2240}
        ds_read_b32 v10, v11
        s_waitcnt lgkmcnt(0)
        v_readfirstlane_b32 s{S_MODE}, v10
        """)
        self.pstamp(5)
    def prep_publish(self):
        E = self.E; L = E.label('pp'); Lp = E.label('ppl'); Lt = E.label('ppt'); Lx = E.label('ppx')
        self.pstamp(3)
        E.e('s_waitcnt vmcnt(0)'); E.vm = []
        self.pstamp(4)
        E.e('s_barrier')
        E.e(f'''
        s_cmp_lg_u32 s{S_W}, 0
        s_cbranch_scc1 {L}
        s_lshl_b32 s45, s{S_C}, 7
        s_lshl_b32 s46, s{S_M}, 2
        s_add_u32 s45, s45, s46
        s_add_u32 s45, s45, {REG}
        s_lshl_b32 s46, s2, 6
        s_add_u32 s46, s46, {PF2}
        v_mov_b32 v10, s{S_MODE + 3}
        v_mov_b32 v11, 0
        s_add_u32 s47, s{S_B}, 1
        v_mov_b32 v12, s47
        s_mov_b64 exec, 1
        buffer_store_dword v10, v11, s[4:7], s45 offen sc1
        buffer_store_dword v12, v11, s[4:7], s46 offen sc1
        s_mov_b64 exec, -1
        ; per-lane flag address: 0..15 cluster members, 16..21 q/k/v jobs, 22..23 wo, 24..35 w1/w3, 36..42 w2
        s_lshl_b32 s45, s{S_C}, 7
        s_add_u32 s45, s45, {REG}
        v_lshlrev_b32 v13, 2, v{V_LANE}
        v_add_u32 v13, s45, v13
        v_subrev_u32 v15, 16, v{V_LANE}
        v_lshrrev_b32 v14, 1, v15
        v_lshlrev_b32 v14, 4, v14
        v_and_b32 v15, 1, v15
        v_add_u32 v14, v14, v15
        s_lshr_b32 s45, s{S_M}, 1
        s_lshl_b32 s45, s45, 1
        v_add_u32 v14, s45, v14
        s_lshl_b32 s45, s{S_CB}, 1
        s_add_u32 s45, s45, 160-22
        v_add_u32 v15, s45, v{V_LANE}
        v_cmp_le_u32 vcc, 22, v{V_LANE}
        s_nop 1
        v_cndmask_b32 v14, v14, v15, vcc
        s_mul_i32 s45, s{S_M}, 7
        s_lshr_b32 s45, s45, 2
        s_lshl_b32 s45, s45, 2
        s_add_u32 s45, s45, 48-24
        v_add_u32 v15, s45, v{V_LANE}
        v_min_u32 v15, 159, v15
        v_cmp_le_u32 vcc, 24, v{V_LANE}
        s_nop 1
        v_cndmask_b32 v14, v14, v15, vcc
        s_mul_i32 s45, s{S_CB}, 7
        s_add_u32 s45, s45, 176-36
        v_add_u32 v15, s45, v{V_LANE}
        v_cmp_le_u32 vcc, 36, v{V_LANE}
        s_nop 1
        v_cndmask_b32 v14, v14, v15, vcc
        v_lshlrev_b32 v14, 6, v14
        v_add_u32 v14, {PF2}, v14
        v_cmp_le_u32 vcc, 16, v{V_LANE}
        s_nop 1
        v_cndmask_b32 v13, v13, v14, vcc
        s_mov_b32 s62, -1
        s_mov_b32 s63, 0x7ff
        s_mov_b64 exec, s[62:63]
        s_mov_b32 s46, 0
        {Lp}:
        s_add_u32 s46, s46, 1
        s_cmp_gt_u32 s46, {self.spin}
        s_cbranch_scc1 {Lt}
        buffer_load_dword v{V_T0}, v13, s[4:7], 0 offen sc1
        s_waitcnt vmcnt(0)
        v_subrev_u32 v10, s47, v{V_T0}
        v_cmp_le_u32 vcc, 8, v10
        s_cbranch_vccz {Lx}
        {'s_sleep %d' % self.opt['psleep'] if self.opt.get('psleep') else ''}
        s_branch {Lp}
        {Lt}:
        s_mov_b32 s{S_MODE + 2}, 4
        {Lx}:
        s_mov_b32 s62, 0xffff
        s_mov_b32 s63, 0
        s_mov_b64 exec, s[62:63]
        v_cmp_ne_u32 vcc, s{S_MODE + 3}, v{V_T0}
        s_mov_b64 exec, -1
        s_cmp_lg_u64 vcc, 0
        s_cselect_b32 s47, 1, 0
        v_mov_b32 v10, s47
        v_mov_b32 v11, {L_KVF + 2240}
        ds_write_b32 v11, v10
        s_waitcnt lgkmcnt(0)
        {L}:
        s_barrier
        v_mov_b32 v11, {L_KVF + 2240}
        ds_read_b32 v10, v11
        s_waitcnt lgkmcnt(0)
        v_readfirstlane_b32 s{S_MODE}, v10
        ''')
        self.pstamp(5)
    def kouter(self, v0, v1, acc0, acc1, transposed, F, tail_units, aug, fine=None, pre_wait=None, tr=False, pre_hook=None):
        E = self.E; D = self.opt.get('D', 10)
        xq = self.frag_units(32, 0, 'x', base=lambda: (E.e(f's_lshl_b32 s44, s{S_W}, 15'), E.e(f's_add_u32 s44, s44, s{S_XF}')))
        sq = self.stats_units()
        order = xq[:4] + sq + xq[4:]
        npro = min(len(order), D + 4)
        def rd(i):
            kb, j = divmod(i, 2)
            if tr: self.rd_tr(self.wfrag(i), v0 if j == 0 else v1, kb, f'w{i}')
            else: E.ds(f'ds_read_b128 v[{self.wfrag(i)}:{self.wfrag(i) + 3}], v{v0 if j == 0 else v1} offset:{kb * 1024}', f'w{i}')
        if pre_wait:
            for u in order[:npro]: u()
            if self.opt.get('single', True) and not self.raw(): self.aug_finish()
            if pre_hook: pre_hook(npro)
            for tag in pre_wait:
                if tag in E.vm: E.wait_vm(tag)
            E.e('s_barrier')
            if pre_hook: pre_hook(None)
            for i in range(4): rd(i)
        else:
            for u in order[:2]: u()
            for i in range(4): rd(i)
            for u in order[2:npro]: u()
        q = order[npro:] + list(tail_units)
        ntail = len(tail_units)
        for kb in range(33):
            if tr and kb < 32: E.wait_lg(f'w{2 * kb + 1}')
            if kb + 2 < 32: rd(2 * kb + 4); rd(2 * kb + 5)
            if kb == 30:
                for j in range(2):
                    E.e(f'v_mov_b32 v{AQ[j]}, v{aug[j]}'); E.e(f'v_mov_b32 v{AQ[j] + 1}, v{aug[j]}')
            if q:
                n = 1 if len(q) > ntail else self.opt.get('tailrate', 2)
                for _ in range(min(n, len(q))): q.pop(0)()
            if kb < 32: E.wait_vm(f'x{kb}')
            if fine and kb in (0, 8, 16, 24): self.stamp(12 + kb // 8)
            if kb == 32: F.flush(); E.e('s_nop 1')
            if kb < 32: E.wait_lg(f'w{2 * kb + 1}')
            X = f'a[{4 * kb}:{4 * kb + 3}]' if kb < 32 else f'v[{MF}:{MF + 3}]'
            for j, acc in ((0, acc0), (1, acc1)):
                w = self.wfrag(2 * kb + j) if kb < 32 else AQ[j]; W = f'v[{w}:{w + 3}]'
                C = '0' if kb == 0 else f'v[{acc}:{acc + 15}]'
                A, B = (W, X) if transposed else (X, W)
                E.e(f'v_mfma_f32_32x32x16_bf16 v[{acc}:{acc + 15}], {A}, {B}, {C}')
                if kb >= 3: F.pump(2)
        for u in q: u()
    def wfrag(self, idx, ring=6): return (WF if ring == 6 else WF8) + 4 * (idx % ring)
    def phase_qkv(self):
        E = self.E; F = Fill(E)
        E.c('==== QKV ====')
        for (p, pn, reg) in self.pinv():
            for it in self.copy_out_items(p, reg): F.add(it, lambda: None)
        F.add(*self.stats_items(+1))
        R, RL = T + 8, T + 24
        F.add(lambda: E.ds(f'ds_write_b32 v{A_RSW}, v{V_R}', 'rs'), lambda: None,
              lambda: E.ds(f'ds_write_b32 v{A_RSW}, v{V_C1} offset:128', 'rs'), lambda: None)
        for i in range(4):
            F.add(lambda i=i: E.ds(f'ds_read_b128 v[{R + 4 * i}:{R + 4 * i + 3}], v{A_RSR} offset:{32 * i}', 'r'), lambda: None)
            F.add(lambda i=i: E.ds(f'ds_read_b128 v[{RL + 4 * i}:{RL + 4 * i + 3}], v{A_RSR} offset:{128 + 32 * i}', 'r'), lambda: None)
        F.add(f'v_mov_b32 v{T + 2}, {EPS_PHI:#x}', f'v_and_b32 v{T + 4}, 16, v{V_LANE}')
        a_k, a_v, a_q = ACC
        vK, vV, vQ = V_SLOT + 0, V_SLOT + 1, V_SLOT + 2
        raw = self.raw()
        if raw:
            vK, vV, vQ = T + 5, T + 6, T + 7
            for i, r_ in enumerate((vK, vV, vQ)): E.e(f'v_add_u32 v{r_}, s{S_SLOT + i}, v{V_TR}')
            qw = self.qkv_units(2, 2) + self.pf_site('qkvtail')
            def hook(n):
                L = E.label('pf2')
                E.e(f's_cmp_lg_u32 s{S_L}, 0'); E.e(f's_cbranch_scc1 {L}')
                if n is not None: E.e(f's_waitcnt vmcnt({n})')
                else:
                    E.e(f"""
                    s_cmp_lg_u32 s{S_W}, 0
                    s_cbranch_scc1 {L}
                    s_lshl_b32 s46, s2, 6
                    s_add_u32 s46, s46, {PF2}
                    s_add_u32 s47, s{S_B}, 1
                    v_mov_b32 v{V_T0 + 1}, s47
                    v_mov_b32 v{V_T0 + 2}, 0
                    s_mov_b64 exec, 1
                    buffer_store_dword v{V_T0 + 1}, v{V_T0 + 2}, s[4:7], s46 offen sc1
                    s_mov_b64 exec, -1
                    """)
                E.place(L)
            self.kouter(vK, vV, a_k, a_v, False, F, qw, (AUG, AUG + 1), fine=self.opt.get('fine_q'), pre_wait=['slab0', 'slab1'], tr=True)
        else:
            qw = self.dma_units(2, S_WQ, 2 * SLAB33, 33) + self.dma_units(3, S_WO, 0, 32) + self.pf_site('qkvtail')
            if 'o' in self.opt.get('pre', ''): qw = self.preread_units(S_OD, (0, 1024)) + qw
            self.kouter(vK, vV, a_k, a_v, False, F, qw, (AUG, AUG + 1), fine=self.opt.get('fine_q'), pre_wait=['slab0', 'slab1'])
        if self.opt.get('fine_q'): self.stamp(1)
        PK, PV = WF, WF + 8
        X1, X2 = ST, ST + 8
        D = a_q
        D2 = 240 - 0 if False else WF + 24
        E.e(f'v_cmp_eq_u32 vcc, 0, v{T + 4}')
        E.wait_lg_all()
        E.nop(11)
        sT = self.staged('T')
        t1s, t2s, t3s = self.opt.get('t1s', 'gat'), self.opt.get('t2s', 'wo'), self.opt.get('t3s', 'wo')
        def stg(site):
            us = []
            if sT:
                for nm, where, areg in ((1, t1s, 128), (2, t2s, 160), (3, t3s, 192)):
                    if where == site: us += self.stage_units(S_W13, nm * SLAB33, areg)
            return us
        self._stg = stg
        E.inject(stg('kvepi'), 10)
        for h in range(2):
            rr = range(8 * h, 8 * h + 8)
            for r in rr: E.e(f'v_mul_f32 v{X2 + r % 8}, v{a_k + r}, v{RL + r}')
            for r in rr: E.e(f'v_fma_f32 v{X1 + r % 8}, v{a_k + r}, v{R + r}, v{T + 2}')
            for r in rr: E.e(f'v_exp_f32 v{X2 + r % 8}, v{X2 + r % 8} clamp')
            for r in rr: E.e(f'v_max_f32 v{X1 + r % 8}, v{X1 + r % 8}, v{T + 2}')
            for r in rr: E.e(f'v_add_f32 v{X1 + r % 8}, v{X1 + r % 8}, v{X2 + r % 8}')
            for r in rr: E.e(f'v_mul_f32 v{X2 + r % 8}, v{a_v + r}, v{R + r}')
            for r in range(0, 8, 2): E.e(f'v_cvt_pk_bf16_f32 v{PK + 4 * h + r // 2}, v{X1 + r}, v{X1 + r + 1}')
            for r in range(0, 8, 2): E.e(f'v_cvt_pk_bf16_f32 v{PV + 4 * h + r // 2}, v{X2 + r}, v{X2 + r + 1}')
            E.nop(2)
            C1 = '0' if h == 0 else f'v[{D}:{D + 15}]'; C2 = '0' if h == 0 else f'v[{D2}:{D2 + 15}]'
            E.e(f'v_mfma_f32_32x32x16_bf16 v[{D}:{D + 15}], v[{PK + 4 * h}:{PK + 4 * h + 3}], v[{PV + 4 * h}:{PV + 4 * h + 3}], {C1}')
            E.e(f'v_mfma_f32_32x32x16_bf16 v[{D2}:{D2 + 15}], v[{PK + 4 * h}:{PK + 4 * h + 3}], v[{ONES}:{ONES + 3}], {C2}')
        E.inject_off()
        E.e(f"""
        s_cmp_eq_u32 s{S_W}, 2
        s_cselect_b32 s60, 0xff, -1
        s_cselect_b32 s61, 0, -1
        s_mov_b32 s62, 1
        s_mov_b32 s63, 1
        v_add_u32 v{T + 1}, {L_KVS}, v{A_RED}
        s_add_u32 s49, s{S_B}, 8
        v_mov_b32 v{V_T0 + 1}, s49
        v_mov_b32 v{V_T0 + 2}, 0
        """)
        E.nop(4)
        for r in range(8): E.e(f'v_cndmask_b32 v{X1 + r}, v{D + 8 + r}, v{D + r}, vcc')
        E.ds(f'ds_write_b128 v{A_KVW}, v[{X1}:{X1 + 3}]', 'kv')
        E.ds(f'ds_write_b128 v{A_KVW}, v[{X1 + 4}:{X1 + 7}] offset:16', 'kv')
        E.e('s_mov_b64 exec, s[62:63]')
        for q in range(4):
            E.ds(f'ds_write_b128 v{A_ZW}, v[{D2 + 4 * q}:{D2 + 4 * q + 3}] offset:{2048 + (q // 2) * 64 + (q % 2) * 16}', 'kv')
        E.e('s_mov_b64 exec, -1')
        E.wait_vm_all()
        E.wait_lg_all()
        if self.opt.get('fine_q'): self.stamp(24)
        E.barrier()
        Lskip = E.label('kvp')
        E.e(f"""
        s_cmp_ge_u32 s{S_W}, 3
        s_cbranch_scc1 {Lskip}
        s_mov_b64 exec, s[60:61]
        ds_read_b128 v[{X1}:{X1 + 3}], v{T + 1}
        ds_read_b128 v[{X1 + 4}:{X1 + 7}], v{T + 1} offset:2304
        ds_read_b128 v[{X2}:{X2 + 3}], v{T + 1} offset:4608
        ds_read_b128 v[{X2 + 4}:{X2 + 7}], v{T + 1} offset:6912
        s_waitcnt lgkmcnt(2)
        """)
        for j in range(4): E.e(f'v_add_f32 v{X1 + j}, v{X1 + j}, v{X1 + 4 + j}')
        E.e('s_waitcnt lgkmcnt(0)')
        for j in range(4): E.e(f'v_add_f32 v{X2 + j}, v{X2 + j}, v{X2 + 4 + j}')
        for j in range(4): E.e(f'v_add_f32 v{X1 + j}, v{X1 + j}, v{X2 + j}')
        E.e(f'buffer_store_dwordx4 v[{X1}:{X1 + 3}], v{A_RED}, s[4:7], s{S_KP} offen sc1')
        E.e('s_mov_b64 exec, -1')
        E.place(Lskip)
        def rq(kb):
            if raw: self.rd_tr(self.wfrag(kb), vQ, kb, f'w{kb}')
            else: E.ds(f'ds_read_b128 v[{self.wfrag(kb)}:{self.wfrag(kb) + 3}], v{vQ} offset:{kb * 1024}', f'w{kb}')
        if not raw:
            for kb in range(4): rq(kb)
        Lf = E.label('fa')
        E.e(f"""
        s_cmp_ge_u32 s{S_W}, 3
        s_cbranch_scc1 {Lf}
        s_waitcnt vmcnt(0)
        s_mov_b64 exec, 1
        buffer_store_dword v{V_T0 + 1}, v{V_T0 + 2}, s[4:7], s{S_FAW} offen sc1
        s_mov_b64 exec, -1
        {Lf}:
        """)
        if self.opt.get('fine_q'): self.stamp(25)
        self.stamp(2)
        if raw: self.layer0_block()
        if self.ts or raw:
            for kb in range(4): rq(kb)
        dq = self.dma_units(4, S_WO, 32 * 1024, 32) + self.dma_units(5, S_W13, 0, 33) + self.pf_site('qwin')
        if raw: dq = self.dma_units(3, S_WO, 0, 32) + dq
        late = self.opt.get('wt0', 'q') == 'gat'
        dq2 = []
        if late: dq2, dq = dq, []
        if self.opt.get('wt0', 'q') == 'split':
            dq2 = [u for u in dq if u.tag == 'slab5']; dq = [u for u in dq if u.tag != 'slab5']
        dq += stg('q'); dq2 += stg('gat')
        t1gat = self.opt.get('t1site', 'wo') == 'gat' and not sT
        if t1gat: dq2 += self.dma_units(6, S_W13, SLAB33, 33)
        for kb in range(33):
            if kb + 4 < 32: rq(kb + 4)
            if kb == 28: E.e(f'v_mov_b32 v{AQ[0]}, v{AUG + 2}'); E.e(f'v_mov_b32 v{AQ[0] + 1}, v{AUG + 2}')
            if kb % 2 == 0 and kb < 32: E.wait_lg(f'w{kb + 1}')
            B = f'a[{4 * kb}:{4 * kb + 3}]' if kb < 32 else f'v[{MF}:{MF + 3}]'
            w = self.wfrag(kb) if kb < 32 else AQ[0]; C = '0' if kb == 0 else f'v[{a_q}:{a_q + 15}]'
            E.e(f'v_mfma_f32_32x32x16_bf16 v[{a_q}:{a_q + 15}], v[{w}:{w + 3}], {B}, {C}')
            if dq and kb % 2 == 0: dq.pop(0)()
        for u in dq: u()
        if t1gat:
            E.wait_lg_all(); E.e('s_barrier')
        self.stamp(3)
        GQ = [T + 8 + 4 * i for i in range(8)] + [WF + 4 * i for i in range(8)]
        Lg = E.label('gat'); Lr = E.label('regchk')
        E.e(f"""
        s_mov_b32 s62, 0x77777777
        s_mov_b32 s63, 0x77777777
        s_cmp_ge_u32 s{S_W}, 3
        s_cbranch_scc1 {Lg}
        s_cmp_lg_u32 s{S_W}, 0
        s_cbranch_scc1 {Lr}
        s_cmp_lg_u32 s{S_L}, {99 if self.opt.get('single', True) else 0}
        s_cbranch_scc1 {Lr}
        s_lshl_b32 s45, s{S_C}, 7
        s_add_u32 s45, s45, {REG}
        s_add_u32 s47, s{S_B}, 1
        """)
        self.poll(45, 47, 2)
        E.e(f"""
        v_cmp_ne_u32 vcc, s{S_MODE + 3}, v{V_T0}
        s_cmp_lg_u64 vcc, 0
        s_cselect_b32 s47, 1, 0
        v_mov_b32 v{V_T0 + 1}, s47
        v_mov_b32 v{V_T0 + 2}, {L_KVF + 2240}
        ds_write_b32 v{V_T0 + 2}, v{V_T0 + 1}
        s_waitcnt lgkmcnt(0)
        {Lr}:
        """)
        Lp = E.label('gp'); Lx = E.label('gpx'); Lt = E.label('gpt')
        E.e(f"""
        s_mov_b32 s46, 0
        {Lp}:
        s_add_u32 s46, s46, 1
        s_cmp_gt_u32 s46, {self.spin}
        s_cbranch_scc1 {Lt}
        buffer_load_dword v{V_T0}, v{A_FA}, s[4:7], s{S_FAR} offen sc1
        s_waitcnt vmcnt(0)
        v_cmp_ne_u32 vcc, s49, v{V_T0}
        s_nop 1
        s_and_b64 vcc, vcc, s[62:63]
        s_cbranch_scc1 {Lp}
        s_branch {Lx}
        {Lt}:
        s_mov_b32 s{S_MODE + 2}, 3
        {Lx}:
        s_mov_b64 exec, s[60:61]
        s_mov_b32 s45, s{S_KG}
        """)
        for c in range(16):
            E.e(f'buffer_load_dwordx4 v[{GQ[c]}:{GQ[c] + 3}], v{A_RED}, s[4:7], s45 offen sc1')
            if c < 15: E.e(f's_add_u32 s45, s45, {KVP_STRIDE}')
        E.e('s_mov_b64 exec, -1')
        E.place(Lg)
        E.vm = []
        self.stamp(4)
        Y1, Y2, EP = ST, ST + 8, V_T0 + 3
        E.e(f'v_mov_b32 v{EP}, {EPS_PHI:#x}')
        E.nop(4)
        n2 = len(dq2)
        E.inject(dq2, 5)
        for h in range(2):
            rr = range(8 * h, 8 * h + 8)
            for r in rr: E.e(f'v_mul_f32 v{Y2 + r % 8}, v{a_q + r}, v{V_C1}')
            for r in rr: E.e(f'v_fma_f32 v{Y1 + r % 8}, v{a_q + r}, v{V_R}, v{EP}')
            for r in rr: E.e(f'v_exp_f32 v{Y2 + r % 8}, v{Y2 + r % 8} clamp')
            for r in rr: E.e(f'v_max_f32 v{Y1 + r % 8}, v{Y1 + r % 8}, v{EP}')
            for r in rr: E.e(f'v_add_f32 v{Y1 + r % 8}, v{Y1 + r % 8}, v{Y2 + r % 8}')
            for r in range(0, 8, 2): E.e(f'v_cvt_pk_bf16_f32 v{PQ + 4 * h + r // 2}, v{Y1 + r}, v{Y1 + r + 1}')
        E.inject_off()
        self._vm_after_gat = list(E.vm)
        Lg2 = E.label('gat2')
        E.e(f"""
        s_cmp_ge_u32 s{S_W}, 3
        s_cbranch_scc1 {Lg2}
        s_mov_b64 exec, s[60:61]
        v_add_u32 v{T + 1}, {L_KVF}, v{A_RED}
        """)
        for half in range(2):
            E.e(f's_waitcnt vmcnt({n2 + (8 if half == 0 else 0)})')
            for lv, (x, y) in enumerate(((0, 1), (2, 3), (4, 5), (6, 7), (0, 2), (4, 6), (0, 4))):
                for j in range(4): E.e(f'v_add_f32 v{GQ[8 * half + x] + j}, v{GQ[8 * half + x] + j}, v{GQ[8 * half + y] + j}')
        for j in range(4): E.e(f'v_add_f32 v{GQ[0] + j}, v{GQ[0] + j}, v{GQ[8] + j}')
        E.e(f'ds_write_b128 v{T + 1}, v[{GQ[0]}:{GQ[0] + 3}]')
        E.e('s_mov_b64 exec, -1')
        E.place(Lg2)
        E.e('s_waitcnt lgkmcnt(0)' if (late or n2) else 's_waitcnt vmcnt(0) lgkmcnt(0)')
        if n2: E.vm = list(self._vm_after_gat)
        for u in self.pf_site('gat'): u()
        E.barrier()
        for h, ad in ((0, A_KZ0), (1, A_KZ1)):
            E.ds(f'ds_read_b128 v[{X1 + 8 * h}:{X1 + 8 * h + 3}], v{ad}', 'kz')
            E.ds(f'ds_read_b128 v[{X1 + 8 * h + 4}:{X1 + 8 * h + 7}], v{ad} offset:16', 'kz')
        Lm = E.label('mode')
        E.e(f"""
        s_cmp_lg_u32 s{S_L}, {99 if self.opt.get('single', True) else 0}
        s_cbranch_scc1 {Lm}
        v_mov_b32 v{V_T0 + 2}, {L_KVF + 2240}
        ds_read_b32 v{V_T0 + 1}, v{V_T0 + 2}
        s_waitcnt lgkmcnt(0)
        v_readfirstlane_b32 s{S_MODE}, v{V_T0 + 1}
        {Lm}:
        """)
        KZ = PK
        E.wait_lg('kz') if False else None
        E.e('s_waitcnt lgkmcnt(2)')
        for r in range(4): E.e(f'v_cvt_pk_bf16_f32 v{KZ + r}, v{X1 + 2 * r}, v{X1 + 2 * r + 1}')
        E.e('s_waitcnt lgkmcnt(0)'); E.lg = []
        for r in range(4): E.e(f'v_cvt_pk_bf16_f32 v{KZ + 4 + r}, v{X1 + 8 + 2 * r}, v{X1 + 8 + 2 * r + 1}')
        E.nop(1)
        for h, acc in ((0, a_k), (1, a_v)):
            E.e(f'v_mfma_f32_32x32x16_bf16 v[{acc}:{acc + 15}], v[{KZ + 4 * h}:{KZ + 4 * h + 3}], v[{PQ + 4 * h}:{PQ + 4 * h + 3}], 0')
        E.nop(11)
        OFR = PV
        for h, acc in ((0, a_k), (1, a_v)):
            E.e(f'v_add_f32 v{T + h}, v{acc + 8}, v{EP}')
        for h in range(2): E.e(f'v_rcp_f32 v{T + h}, v{T + h}')
        E.e('s_nop 0')
        for h, acc in ((0, a_k), (1, a_v)):
            for r in range(8): E.e(f'v_mul_f32 v{X1 + 8 * h + r}, v{acc + r}, v{T + h}')
            for r in range(4): E.e(f'v_cvt_pk_bf16_f32 v{OFR + 4 * h + r}, v{X1 + 8 * h + 2 * r}, v{X1 + 8 * h + 2 * r + 1}')
            self.store_act([f'buffer_store_dwordx4 v[{OFR + 4 * h}:{OFR + 4 * h + 3}], v{V_L16}, s[4:7], s{S_OD} offen offset:{1024 * h}'], 'o')
        for u in self.pf_site('ostore'): u()
        self.pint_copy_in(6)
        if sT:
            for it in self.unstage_items(6, 128, T + 8): it()
    def phase_proj(self, name, nsteps, act_base_imm, act_stride_sb, p0, src_sreg, dma_plan, out_x, out_st, last_check):
        E = self.E; F = Fill(E)
        E.c(f'==== {name} ====')
        accM, accO = ACC[0], ACC[1]
        E.e(f'''
        s_lshl_b32 s44, s{S_C}, 2
        s_add_u32 s44, s44, s{S_SBW}
        s_mul_i32 s44, s44, {act_stride_sb}
        s_mul_i32 s45, s{S_KH}, {nsteps * 1024}
        s_add_u32 s44, s44, s45
        s_add_u32 s44, s44, {LB(0) + act_base_imm}
        ''')
        D = self.opt.get('D2', 10) if nsteps != 16 else self.opt.get('Dwo', 10)
        early = self.opt.get('earlyd', False) and nsteps == 56
        if early:
            E.e('s_mov_b32 s50, s44')
            aq = []
            for j in range(56):
                q, t = (j // 5, j % 5) if j < 40 else ((j - 40) // 2, 5 + (j - 40) % 2)
                def u(j=j, i=7 * q + t):
                    ar = 4 * (j % 32)
                    E.e(f's_add_u32 s44, s50, {i * 1024}')
                    E.vmem(f'buffer_load_dwordx4 a[{ar}:{ar + 3}], v{V_L16}, s[4:7], s44 offen sc1', f'h{j}')
                aq.append(u)
            if self.noact: aq = []
        else: aq = self.frag_units(nsteps, 0, 'h')
        pairs = [(T, T + 1), (T + 2, T + 3)]
        def setpair(sl):
            a, b = pairs[sl % 2]; p = p0 + sl
            if self.rawp():
                return [f'v_add_u32 v{b}, s{S_SLOT + p % 4}, v{V_TR}', f'v_add_u32 v{a}, s53, v{b}', f'v_add_u32 v{b}, s54, v{b}']
            return [f'v_add_u32 v{a}, s53, v{V_SLOT + p % 4}', f'v_add_u32 v{b}, s54, v{V_SLOT + p % 4}']
        for x in setpair(0): E.e(x)
        nsl = nsteps // 8
        def rd(i):
            sl, ii = divmod(i, 8); a, b = pairs[sl % 2]
            if self.rawp():
                for j, ad in ((0, a), (1, b)):
                    r_ = self.wfrag(2 * i + j)
                    E.ds(f'ds_read_b64_tr_b16 v[{r_}:{r_ + 1}], v{ad} offset:{ii * 4096}', f'w{2 * i + j}')
                    E.ds(f'ds_read_b64_tr_b16 v[{r_ + 2}:{r_ + 3}], v{ad} offset:{ii * 4096 + 1024}', f'w{2 * i + j}')
                return
            E.ds(f'ds_read_b128 v[{self.wfrag(2 * i)}:{self.wfrag(2 * i) + 3}], v{a} offset:{ii * 4096}', f'w{2 * i}')
            E.ds(f'ds_read_b128 v[{self.wfrag(2 * i + 1)}:{self.wfrag(2 * i + 1) + 3}], v{b} offset:{ii * 4096}', f'w{2 * i + 1}')
        for u in aq[:2]: u()
        rd(0); rd(1)
        nfirst = self.opt.get('d2st', D) if early else D
        for u in aq[2:nfirst]: u()
        rest_pro = aq[nfirst:D]
        aq = aq[D:]
        if early:
            for t in (5, 6):
                H = T + 28 + 4 * (t - 5)
                E.e(f's_add_u32 s51, s{S_HD}, {t * 1024}')
                self.store_act([f'buffer_store_dwordx4 v[{H}:{H + 3}], v{V_L16}, s[4:7], s51 offen'], 'h', tag=f'sth{t}')
        for u in rest_pro: u()
        dq = []
        for (pp, sreg, imm, nfr) in dma_plan.get('start', []): dq += self.dma_units(pp, sreg, imm, nfr)
        dq += self.pf_site(name + 'start')
        if dma_plan.get('staged_T'): dq += self._stg('wo')
        usq = []
        if dma_plan.get('staged_W'): usq += self.unstage_items(15, 128, T + 4)
        for i in range(nsteps):
            sl, ii = divmod(i, 8)
            if ii == 0 and sl + 1 < nsl:
                for x in setpair(sl + 1): E.e(x)
            if ii == 6 and sl + 1 < nsl:
                need = f'slab{p0 + sl + 1}'
                assert not any(need == u.tag for u in dq), need
                if need in E.vm: E.wait_vm(need)
                if dma_plan.get('staged_W') and p0 + sl + 1 in (15, 16, 17, 18):
                    assert f'us{p0 + sl + 1}' in E.lg or not usq or True
                    E.wait_lg(f'us{p0 + sl + 1}')
                if early and sl == self.opt.get('d2pub', 1): E.wait_vm('sth6')
                E.e('s_barrier')
                if early and sl == self.opt.get('d2pub', 1): self.flag_store()
                if dma_plan.get('staged_W') and sl in (1, 2, 3):
                    assert not usq, (sl, len(usq))
                    usq += self.unstage_items(15 + sl, 128 + 32 * sl, T + 4)
                for (pp, sreg, imm, nfr) in dma_plan.get(sl, []): dq += self.dma_units(pp, sreg, imm, nfr)
                dq += self.pf_site(f'{name}{sl}')
            if ii == 6 and sl + 1 == nsl and nsteps == 16 and dma_plan.get('loopend'):
                E.e('s_barrier')
            if early and i == 24:
                E.vmem(f'buffer_load_dword v{V_T0}, v{V_FLAG}, s[4:7], s{S_FLOFF} offen sc1', 'd2')
            if early and i == 29:
                Lok = E.label('d2ok')
                E.wait_vm('d2')
                E.e(f'v_subrev_u32 v{V_T0 + 1}, s{S_STEP}, v{V_T0}')
                E.e(f'v_cmp_le_u32 vcc, 8, v{V_T0 + 1}')
                E.e(f's_cbranch_vccz {Lok}')
                self.poll(S_FLOFF, S_STEP, 6)
                E.place(Lok)
            if self.rawp(): E.wait_lg(f'w{2 * i + 1}')
            if i + 2 < nsteps: rd(i + 2)
            if aq: aq.pop(0)()
            rate = (self.opt.get('dmarate_wo', 0) if nsteps == 16 else self.opt.get('dmarate2', 1)) if aq else 2
            for _ in range(min(rate, len(dq))): dq.pop(0)()
            for _ in range(min(len(usq), 2 if len(usq) == 9 else 1 if ii % 8 < 7 else 2)): usq.pop(0)()
            E.wait_vm(f'h{i}')
            if self.opt.get('fine_w2') and nsteps == 56 and i % 8 == 0: self.stamp(12 + i // 8 if i < 32 else 24 + (i - 32) // 8)
            E.wait_lg(f'w{2 * i + 1}')
            for j, acc in ((0, accM), (1, accO)):
                w = self.wfrag(2 * i + j); C = '0' if i == 0 else f'v[{acc}:{acc + 15}]'
                ai = 4 * (i % 32)
                E.e(f'v_mfma_f32_32x32x16_bf16 v[{acc}:{acc + 15}], v[{w}:{w + 3}], a[{ai}:{ai + 3}], {C}')
        assert not usq
        eq = []
        for (pp, sreg, imm, nfr) in dma_plan.get('loopend', []): eq += self.dma_units(pp, sreg, imm, nfr)
        eq += self.pf_site(name + 'end')
        for u in dq: u()
        if self.opt.get('fine_w2') and nsteps == 56: self.stamp(27)
        for _ in range(min(len(eq), self.opt.get('pre_x', 4))): eq.pop(0)()
        U = T + 8
        for i in range(6):
            E.e(f'v_lshlrev_b32 v{U + 2 * i}, 16, v{RES + i}')
            E.e(f'v_and_b32 v{U + 2 * i + 1}, 0xffff0000, v{RES + i}')
        for q in range(4): E.ds(f'ds_write_b128 v{A_XW}, v[{accO + 4 * q}:{accO + 4 * q + 3}] offset:{1024 * q}', 'x')
        for i in range(6, 8):
            E.e(f'v_lshlrev_b32 v{U + 2 * i}, 16, v{RES + i}')
            E.e(f'v_and_b32 v{U + 2 * i + 1}, 0xffff0000, v{RES + i}')
        for r in range(16): E.e(f'v_add_f32 v{U + r}, v{U + r}, v{accM + r}')
        E.wait_lg_all()
        E.barrier()
        X = ACC[2]
        for q in range(4): E.ds(f'ds_read_b128 v[{X + 4 * q}:{X + 4 * q + 3}], v{A_XR} offset:{1024 * q}', f'x{q}')
        for (pp, sreg, imm, nfr) in dma_plan.get('end', []): eq += self.dma_units(pp, sreg, imm, nfr)
        E.inject(eq, self.opt.get('pevery', 4))
        for q in range(4):
            E.wait_lg(f'x{q}')
            for r in range(4 * q, 4 * q + 4): E.e(f'v_add_f32 v{U + r}, v{U + r}, v{X + r}')
            for i in range(2 * q, 2 * q + 2): E.e(f'v_cvt_pk_bf16_f32 v{RES + i}, v{U + 2 * i}, v{U + 2 * i + 1}')
        E.inject_off()
        Lfin = E.label('fin'); Ldone = E.label('pdone')
        if last_check:
            E.e(f's_cmp_eq_u32 s{S_L}, 1'); E.e(f's_cbranch_scc1 {Lfin}')
        self.store_act([f'buffer_store_dwordx4 v[{RES}:{RES + 3}], v{V_L16}, s[4:7], s{S_XD} offen',
                        f'buffer_store_dwordx4 v[{RES + 4}:{RES + 7}], v{V_L16}, s[4:7], s{S_XD} offen offset:1024'])
        stats32(E, [U + r for r in range(16)], (T + 2, T + 3, T + 4, T + 5), T + 6, T + 7)
        self.store_act([f'buffer_store_dwordx2 v[{T + 6}:{T + 7}], v{V_S8}, s[4:7], s{S_SD} offen'])
        if name == 'wo': self.pint_copy_in(7)
        for (pn, reg) in dma_plan.get('copy_in', []): self.copy_in(pn, reg)
        if dma_plan.get('staged_T'):
            for it in self.unstage_items(7, 160, T + 8) + self.unstage_items(8, 192, T + 9): it()
        for (pp, sreg, imm, nfr) in dma_plan.get('post', []):
            if self.raw() and sreg == S_WQ:
                for u in self.qkv_units(pp, imm // SLAB33): u()
            else: self.dma(pp, sreg, imm, nfr)
        if last_check:
            E.e(f's_branch {Ldone}')
            E.place(Lfin)
            E.e(f'''
            v_permlane32_swap_b32 v{RES}, v{RES + 2}
            v_permlane32_swap_b32 v{RES + 1}, v{RES + 3}
            v_permlane32_swap_b32 v{RES + 4}, v{RES + 6}
            v_permlane32_swap_b32 v{RES + 5}, v{RES + 7}
            ''')
            if self.opt.get('outlds', False):
                E.e(f'''
                s_lshl_b32 s44, s{S_RH}, 12
                s_lshl_b32 s45, s{S_KH}, 6
                s_add_u32 s44, s44, s45
                v_and_b32 v{T}, 31, v{V_LANE}
                v_lshlrev_b32 v{T}, 7, v{T}
                v_lshrrev_b32 v{T + 1}, 5, v{V_LANE}
                v_lshlrev_b32 v{T + 1}, 4, v{T + 1}
                v_add_u32 v{T}, v{T}, v{T + 1}
                v_add_u32 v{T}, s44, v{T}
                ds_write_b128 v{T}, v[{RES}:{RES + 3}]
                ds_write_b128 v{T}, v[{RES + 4}:{RES + 7}] offset:32
                s_lshl_b32 s45, s{S_W}, 11
                v_add_u32 v{T + 1}, s45, v{V_L16}
                v_lshrrev_b32 v{T + 2}, 3, v{V_LANE}
                v_lshlrev_b32 v{T + 2}, 10, v{T + 2}
                v_and_b32 v{T + 3}, 7, v{V_LANE}
                v_lshlrev_b32 v{T + 3}, 4, v{T + 3}
                v_add_u32 v{T + 2}, v{T + 2}, v{T + 3}
                s_lshl_b32 s44, s{S_C}, 1
                s_add_u32 s44, s44, s{S_R64}
                s_lshl_b32 s44, s44, 16
                s_lshl_b32 s45, s{S_W}, 14
                s_add_u32 s44, s44, s45
                s_lshl_b32 s45, s{S_CB}, 7
                s_add_u32 s44, s44, s45
                s_add_u32 s45, s44, 8192
                s_waitcnt lgkmcnt(0)
                s_barrier
                ds_read_b128 v[{T + 8}:{T + 11}], v{T + 1}
                ds_read_b128 v[{T + 12}:{T + 15}], v{T + 1} offset:1024
                s_waitcnt lgkmcnt(1)
                buffer_store_dwordx4 v[{T + 8}:{T + 11}], v{T + 2}, s[8:11], s44 offen {self.opt.get('outfl', 'sc1')}
                s_waitcnt lgkmcnt(0)
                buffer_store_dwordx4 v[{T + 12}:{T + 15}], v{T + 2}, s[8:11], s45 offen {self.opt.get('outfl', 'sc1')}
                ''')
            else:
                E.e(f'''
                s_mov_b32 s44, s{S_OUT}
                v_and_b32 v{T}, 31, v{V_LANE}
                v_lshlrev_b32 v{T}, 10, v{T}
                v_lshrrev_b32 v{T + 1}, 5, v{V_LANE}
                v_lshlrev_b32 v{T + 1}, 4, v{T + 1}
                v_add_u32 v{T}, v{T}, v{T + 1}
                buffer_store_dwordx4 v[{RES}:{RES + 3}], v{T}, s[8:11], s44 offen
                buffer_store_dwordx4 v[{RES + 4}:{RES + 7}], v{T}, s[8:11], s44 offen offset:32
                ''')
            if self.opt.get('single', True):
                Le = E.label('ep')
                E.e(f'''
                s_cmp_lg_u32 s2, 0
                s_cbranch_scc1 {Le}
                s_cmp_lg_u32 s{S_W}, 0
                s_cbranch_scc1 {Le}
                v_mov_b32 v9, s{S_E}
                v_mov_b32 v10, {EPOCH}
                s_mov_b64 exec, 1
                buffer_store_dword v9, v10, s[4:7], 0 offen sc1
                s_mov_b64 exec, -1
                {Le}:
                ''')
            if self.opt.get('dbgclk'):
                Lq = E.label('dbg')
                E.e(f'''
                s_memrealtime s[80:81]
                s_memtime s[66:67]
                s_waitcnt lgkmcnt(0)
                s_cmp_lg_u32 s{S_W}, 0
                s_cbranch_scc1 {Lq}
                s_cmp_ge_u32 s2, 4
                s_cbranch_scc1 {Lq}
                s_sub_u32 s80, s80, s96
                s_sub_u32 s66, s66, s98
                s_lshl_b32 s45, s2, 4
                v_mov_b32 v9, s45
                s_mul_i32 s46, s2, 85*8
                s_add_u32 s46, s46, 0x3100000
                v_mov_b32 v10, 0
                buffer_load_dwordx2 v[12:13], v10, s[4:7], s46 offen sc1
                v_mov_b32 v14, s96
                v_mov_b32 v15, s80
                s_waitcnt vmcnt(0)
                s_mov_b64 exec, 1
                global_store_dwordx4 v9, v[12:15], s[72:73]
                s_mov_b64 exec, -1
                {Lq}:
                ''')
            sv = self._prev; self.stamp(11); self.stamp_flush(); self._prev = sv
            E.e('s_branch L_k1_end')
            E.place(Ldone)
    def h_epilogue_items(self, acc, t):
        E = self.E; P, X = T + 8, T + 16; H = T + 24
        early = self.opt.get('earlyd', False)
        if early and t >= 5: H = T + 28 + 4 * (t - 5)
        it = []
        for r in range(8): it.append(f'v_mul_f32 v{X + r}, v{acc + r}, v{V_C1}')
        for r in range(8): it.append(f'v_mul_f32 v{P + r}, v{acc + r}, v{acc + 8 + r}')
        for r in range(8): it.append(f'v_exp_f32 v{X + r}, v{X + r}')
        for r in range(8): it.append(f'v_fma_f32 v{X + r}, v{X + r}, v{V_C2}, v{V_C2}')
        for r in range(8): it.append(f'v_rcp_f32 v{X + r}, v{X + r}')
        it.append(f's_add_u32 s51, s{S_HD}, {t * 1024}')
        for r in range(8): it.append(f'v_mul_f32 v{P + r}, v{P + r}, v{X + r}')
        for r in range(4): it.append(f'v_cvt_pk_bf16_f32 v{H + r}, v{P + 2 * r}, v{P + 2 * r + 1}')
        def st():
            self.store_act([f'buffer_store_dwordx4 v[{H}:{H + 3}], v{V_L16}, s[4:7], s51 offen'], 'l' if t == 6 else 'h', tag=(f'sth{t}' if early else 'st'))
        if not (early and t >= 5): it.append(st)
        return it
    def phase_ffn1(self):
        E = self.E; F = Fill(E)
        E.c('==== gate/up ====')
        if self.pint():
            for it in self.copy_out_items(self.pint(), 172): F.add(it, lambda: None)
        F.add(*self.stats_items(-1))
        tail = []
        if not self.staged('T'):
            if self.opt.get('t2site', 'loopend') == 't01': tail += self.dma_units(7, S_W13, 2 * SLAB33, 33)
            if self.opt.get('t3site', 't01') == 't01': tail += self.dma_units(8, S_W13, 3 * SLAB33, 33)
        wsites = self.opt.get('wsites', ('t01', 'tile3', 'tile4', 'tile5'))
        def wstg(site):
            us = []
            if self.staged('W'):
                for j in range(4):
                    if wsites[j] == site: us += self.stage_units(S_W2, (3 + j) * 32768, 128 + 32 * j)
            return us
        tail += wstg('t01')
        tail += self.pf_site('t01tail')
        self.kouter(V_SLOT + 5 % 4, V_SLOT + 6 % 4, ACC[0], ACC[1], True, F, tail, (AUG + 3, AUG + 4), fine=self.opt.get('fine_ts'))
        if self.tiles_ts: self.stamp(18)
        NT = 5
        WE = self.opt.get('we', 4); RING = 10 if WE == 4 else 6; PD = self.opt.get('pd', 7) if WE == 4 else 4
        def step(g): return 2 + g // 33, g % 33
        def rq(g):
            t, kb = step(g); p = 5 + t
            if kb == 32: return
            E.ds(f'ds_read_b128 v[{self.wfrag(g, RING)}:{self.wfrag(g, RING) + 3}], v{V_SLOT + p % 4} offset:{kb * 1024}', f'g{g}')
        if 'slab7' in E.vm: E.wait_vm('slab7')
        E.wait_lg_all()
        E.e('s_barrier')
        for g in range(PD): rq(g)
        ep = []
        for j in range(6):
            first = 4 if j < 2 else (j - 1) * 33 + 3
            for it in self.h_epilogue_items(ACC[j % 3], j): ep.append((first, j, it))
        total = len(ep); done = 0
        dq = self.dma_units(9, S_W13, 4 * SLAB33, 33) + self.pf_site('tile2') + self.dma_units(10, S_W13, 5 * SLAB33, 33) + wstg('tile2')
        G = NT * 33
        for g in range(G):
            t, kb = step(g)
            if kb == 1 and t > 2:
                E.e('s_barrier')
                if t == 3 and 'l' in self.opt.get('pre', ''): dq += self.preread_units(S_HD, (6 * 1024,))
                if t == 3: dq += self.dma_units(11, S_W13, 6 * SLAB33, 33)
                else: dq += self.dma_units(12 + (t - 4), S_W2, (t - 4) * 32 * 1024, 32)
                dq += self.pf_site(f'tile{t}') + wstg(f'tile{t}')
            if kb == 32 - PD and t < 6:
                need = f'slab{5 + t + 1}'
                assert not any(need == u.tag for u in dq), need
                if need in E.vm: E.wait_vm(need)
                E.e('s_barrier')
            if g + PD < G: rq(g + PD)
            if g % WE == 0:
                last = max(gg for gg in range(g, min(g + WE, G)) if gg % 33 != 32 or gg == g)
                E.wait_lg(f'g{last}')
            if kb == 28: E.e(f'v_mov_b32 v{AQ[t % 2]}, v{AUG + 3 + t}'); E.e(f'v_mov_b32 v{AQ[t % 2] + 1}, v{AUG + 3 + t}')
            acc = ACC[t % 3]
            B = f'a[{4 * kb}:{4 * kb + 3}]' if kb < 32 else f'v[{MF}:{MF + 3}]'
            w = self.wfrag(g, RING) if kb < 32 else AQ[t % 2]; C = '0' if kb == 0 else f'v[{acc}:{acc + 15}]'
            E.e(f'v_mfma_f32_32x32x16_bf16 v[{acc}:{acc + 15}], v[{w}:{w + 3}], {B}, {C}')
            fast = g < self.opt.get('fastg', 0)
            if dq and (fast or g % self.opt.get('dstep', 2) == 0): dq.pop(0)()
            want = (total * (g + 1) + G - 3) // (G - 2)
            while done < min(want, total) and ep[0][0] <= g:
                _, j, it = ep.pop(0)
                assert g < (j + 3 - 2) * 33 or j + 3 > 6, (g, j)
                if isinstance(it, str): E.e(it)
                else: it()
                done += 1
            if self.tiles_ts and kb == 32: self.stamp(16 + t + 1)
        assert not ep, len(ep)
        for u in dq: u()
        E.wait_lg_all()
        if self.opt.get('earlyd', False):
            E.wait_vm('sth4')
            E.barrier()
            self.flag_store()
            F.add(*self.h_epilogue_items(ACC[6 % 3], 6)); F.flush()
            L = E.label('d1')
            E.e(f's_cmp_lg_u32 s{S_W}, 0'); E.e(f's_cbranch_scc1 {L}')
            self.poll(S_FLOFF, S_STEP, 1)
            E.place(L)
            E.barrier()
            return
        E.nop(12)
        F.add(*self.h_epilogue_items(ACC[6 % 3], 6)); F.flush()
    def wo_plan(self):
        t2 = self.opt.get('t2site', 'loopend'); t3 = self.opt.get('t3site', 't01')
        if self.staged('T'): return dict(staged_T=True)
        plan = dict(start=[(6, S_W13, SLAB33, 33)] if self.opt.get('t1site', 'wo') == 'wo' else [])
        if t2 in ('post', 'loopend'): plan.setdefault(t2, []).append((7, S_W13, 2 * SLAB33, 33))
        if t3 in ('post', 'end'): plan.setdefault(t3, []).append((8, S_W13, 3 * SLAB33, 33))
        return plan
    def gen(self):
        E = self.E
        self.init()
        if self.ts: E.e('v_mov_b32 v255, 0'); E.e('v_mov_b32 v254, 0'); E.e('s_mov_b32 s92, 0')
        E.place('L_k1_layer')
        self._prev = 30
        self.stamp(0)
        self.phase_qkv()
        self.stamp(5)
        if self.stop == 'qkv': E.wait_vm_all(force=True); E.e('s_branch L_k1_end')
        self.hop_local()
        self.stamp(6)
        self.phase_proj('wo', 16, OF_, 32 * 1024, 3, S_WO,
                        self.wo_plan(), X1F_, ST1_, False)
        self.stamp(7)
        if self.stop == 'wo': E.wait_vm_all(force=True); E.e('s_branch L_k1_end')
        self.hop_local()
        self.stamp(8)
        self.phase_ffn1()
        self.stamp(9)
        if self.stop == 'ffn1': E.wait_vm_all(force=True); E.e('s_branch L_k1_end')
        if not self.opt.get('earlyd', False): self.hop_local()
        self.stamp(10)
        nx = [(19, S_WQ, 0, 33), (20, S_WQ, SLAB33, 33), (21, S_WQ, 2 * SLAB33, 33), (22, S_WO, 0, 32)]
        plan = {'start': [(15, S_W2, 3 * 32768, 32)], 0: [], 1: [(16, S_W2, 4 * 32768, 32)], 2: [(17, S_W2, 5 * 32768, 32)], 3: [(18, S_W2, 6 * 32768, 32)],
                }
        if self.staged('W'): plan = {'staged_W': True}
        kv = self.opt.get('kvsite', 'post')
        pinned = [pn for (_, pn, _) in self.pinv()]
        rest = [x for x in nx[:2] if x[0] not in pinned]
        if kv == 'loop':
            for x in rest: plan.setdefault(4 if x[0] == 19 else 5, []).append(x)
        else: plan[kv] = rest
        plan['copy_in'] = [(pn, reg) for (_, pn, reg) in self.pinv()]
        self.phase_proj('w2', 56, HF_, 112 * 1024, 12, S_W2, plan, X2F_, ST2_, True)
        self.stamp(11)
        if self.stop == 'w2': E.wait_vm_all(force=True); E.e('s_branch L_k1_end')
        self.hop_local()
        E.e(f's_add_u32 s{S_KG}, s{S_KG}, {LB(1) - LB(0)}'); E.e(f's_add_u32 s{S_KP}, s{S_KP}, {LB(1) - LB(0)}')
        E.e(f's_add_u32 s{S_FAR}, s{S_FAR}, 4096'); E.e(f's_add_u32 s{S_FAW}, s{S_FAW}, 4096')
        E.e(f's_add_u32 s{S_L}, s{S_L}, 1')
        E.e('s_mov_b32 s94, 0'); E.e('s_mov_b32 s95, 0')
        if self.ts:
            E.e('s_waitcnt lgkmcnt(0)'); E.e(f'v_writelane_b32 v255, s92, {self._prev}'); E.e('v_mov_b32 v254, v255'); E.e('v_mov_b32 v255, 0')
        E.e(f's_mov_b32 s40, s{S_SLOT + 3}')
        for i in (3, 2, 1): E.e(f's_mov_b32 s{S_SLOT + i}, s{S_SLOT + i - 1}')
        E.e(f's_mov_b32 s{S_SLOT}, s40')
        for i in range(4): E.e(f'v_add_u32 v{V_SLOT + i}, s{S_SLOT + i}, v{V_L16}')
        E.e('s_branch L_k1_layer')
        E.place('L_k1_end')
        E.place('L_k1_last')
        E.e('s_endpgm')
        return E

def gen_k1(name='main_kernel', **kw):
    return K1(name, **kw).gen()
```

```python
import re

class Em:
    def __init__(self, name, vgpr=256, agpr=256, sgpr=100):
        self.name = name; self.lines = []; self.vgpr = vgpr; self.agpr = agpr; self.sgpr = sgpr
        self.vm = []; self.lg = []; self._lab = 0; self._inj = None; self._every = 1; self._cnt = 0
    def e(self, s):
        for l in s.strip('\n').split('\n'):
            l = l.strip()
            if l:
                self.lines.append(l)
                if self._inj and l.startswith('v_') and not l.startswith(('v_cmp', 'v_readfirstlane', 'v_mfma')):
                    self._cnt += 1
                    if self._cnt >= self._every and self._inj:
                        self._cnt = 0
                        q = self._inj; self._inj = None
                        q.pop(0)()
                        self._inj = q
    def inject(self, queue, every):
        self._inj = queue; self._every = every; self._cnt = 0
    def inject_off(self, flush=True):
        q = self._inj; self._inj = None
        if flush and q:
            while q: q.pop(0)()
    def c(self, s): self.lines.append('; ' + s)
    def label(self, base='L'):
        self._lab += 1
        return '%s_%s_%d' % (base, self.name.replace('_kernel', '')[-8:], self._lab)
    def place(self, lab): self.lines.append(lab + ':')
    def vmem(self, s, tag):
        self.e(s); self.vm.append(tag)
        assert len(self.vm) <= 63, ('vmcnt overflow', len(self.vm))
    def vm_n(self, tag):
        idx = max(i for i, t in enumerate(self.vm) if t == tag)
        return len(self.vm) - 1 - idx, idx
    def wait_vm(self, tag, extra=''):
        if tag not in self.vm: return False
        n, idx = self.vm_n(tag)
        self.e('s_waitcnt vmcnt(%d)%s' % (n, extra))
        self.vm = self.vm[idx + 1:]
        return True
    def wait_vm_all(self, force=False):
        if self.vm or force: self.e('s_waitcnt vmcnt(0)')
        self.vm = []
    def ds(self, s, tag):
        self.e(s); self.lg.append(tag)
        assert len(self.lg) <= 15, ('lgkmcnt overflow', len(self.lg))
    def wait_lg(self, tag):
        if tag not in self.lg: return False
        idx = max(i for i, t in enumerate(self.lg) if t == tag)
        n = len(self.lg) - 1 - idx
        self.e('s_waitcnt lgkmcnt(%d)' % n)
        self.lg = self.lg[idx + 1:]
        return True
    def wait_lg_all(self, force=False):
        if self.lg or force: self.e('s_waitcnt lgkmcnt(0)')
        self.lg = []
    def barrier(self):
        assert not self.lg, 'barrier with LDS ops outstanding: %s' % self.lg
        self.e('s_barrier')
    def nop(self, n):
        while n > 0:
            k = min(n, 16); self.e('s_nop %d' % (k - 1)); n -= k
    def merge_waits(self):
        res = []
        for l in self.lines:
            if res and l.startswith('s_waitcnt ') and res[-1].startswith('s_waitcnt '):
                a, b = res[-1].split()[1:], l.split()[1:]
                ka = {x.split('(')[0]: int(x.split('(')[1][:-1]) for x in a}
                for x in b:
                    k, v = x.split('(')[0], int(x.split('(')[1][:-1])
                    ka[k] = min(v, ka.get(k, v))
                res[-1] = 's_waitcnt ' + ' '.join('%s(%d)' % (k, ka[k]) for k in ('vmcnt', 'lgkmcnt') if k in ka)
            else: res.append(l)
        self.lines = res
    def text(self):
        out = ['.globl %s' % self.name, '.p2align 8', '.type %s,@function' % self.name, '%s:' % self.name]
        for l in self.lines:
            if l.endswith(':') or l.startswith(';') or l.startswith('.'): out.append(l)
            else: out.append('  ' + l)
        return '\n'.join(out) + '\n'
    def desc(self):
        acc_off = (self.vgpr + 3) // 4 * 4
        nfv = acc_off + self.agpr if self.agpr else self.vgpr
        return '\n'.join(['.amdhsa_kernel %s' % self.name,
            '  .amdhsa_next_free_vgpr %d' % nfv, '  .amdhsa_next_free_sgpr %d' % self.sgpr,
            '  .amdhsa_accum_offset %d' % acc_off, '  .amdhsa_group_segment_fixed_size 0',
            '  .amdhsa_kernarg_size 80', '  .amdhsa_user_sgpr_count 2',
            '  .amdhsa_user_sgpr_kernarg_segment_ptr 1', '  .amdhsa_system_sgpr_workgroup_id_x 1',
            '  .amdhsa_float_denorm_mode_32 3', '.end_amdhsa_kernel']) + '\n'

_REG = re.compile(r'^(-|abs\()?([vas])(\d+)\)?$|^(-)?([vas])\[(\d+):(\d+)\]$')
def regs(tok):
    tok = tok.strip()
    if tok in ('vcc', 'vcc_lo', 'vcc_hi'): return {('s', 'vcc')}
    if tok == 'exec': return {('s', 'exec')}
    if tok == 'm0': return {('s', 'm0')}
    m = _REG.match(tok)
    if not m: return set()
    if m.group(2): return {(m.group(2), int(m.group(3)))}
    return {(m.group(5), i) for i in range(int(m.group(6)), int(m.group(7)) + 1)}

TRANS = ('v_exp_f32', 'v_log_f32', 'v_rcp_f32', 'v_rsq_f32', 'v_sqrt_f32', 'v_sin_f32', 'v_cos_f32', 'v_rcp_iflag_f32')
class I:
    def __init__(self, line):
        self.line = line
        body = line.split(';')[0].strip()
        p = body.split(None, 1)
        self.op = p[0]
        rest = p[1] if len(p) > 1 else ''
        ops = [o.strip() for o in rest.split(',')] if rest else []
        if ops:
            last = ops[-1].split()
            ops[-1] = last[0] if last else ''
            self.mods = last[1:]
        else: self.mods = []
        self.ops = ops
        op = self.op
        self.kind = 'other'; self.defs = set(); self.uses = set(); self.states = 1
        R = [regs(o) for o in ops]
        if op == 's_nop': self.states = int(ops[0]) + 1; self.kind = 'nop'
        elif op.startswith('v_mfma'):
            self.kind = 'mfma'; self.defs = R[0]; self.A = R[1]; self.B = R[2]; self.C = R[3]; self.uses = R[1] | R[2] | R[3]
        elif op.startswith('v_cmp'):
            self.kind = 'valu'; self.defs = R[0]; self.uses = set().union(*R[1:])
            if op.startswith('v_cmpx'): self.defs = self.defs | {('s', 'exec')}
        elif op in ('v_readfirstlane_b32', 'v_readlane_b32'):
            self.kind = 'valu'; self.defs = R[0]; self.uses = set().union(*R[1:]); self.readlane = True
        elif op.startswith('v_permlane'):
            self.kind = 'valu'; self.defs = R[0] | R[1]; self.uses = R[0] | R[1]; self.perm = True
        elif op.startswith('v_'):
            self.kind = 'valu'; self.defs = R[0]; self.uses = set().union(*R[1:]) if len(R) > 1 else set()
            if op.startswith(('v_fmac', 'v_dot2c', 'v_mac')): self.uses |= R[0]
            if op.startswith('v_cndmask') and len(R) == 3: self.uses |= {('s', 'vcc')}
            if op.startswith('v_cndmask') and op.endswith('_e32'): self.uses |= {('s', 'vcc')}
            if '_co_' in op: self.defs = R[0] | R[1]; self.uses = set().union(*R[2:])
            self.trans = op.replace('_e32', '').replace('_e64', '') in TRANS
        elif op.startswith(('buffer_', 'global_')):
            self.kind = 'vmem'
            if 'lds' in self.mods or '_lds_' in op:
                self.uses = set().union(*R) | {('s', 'm0')}; self.ldsdma = True
            elif '_load' in op: self.defs = R[0]; self.uses = set().union(*R[1:])
            elif '_atomic' in op and 'sc0' in self.mods: self.defs = R[0]; self.uses = set().union(*R[1:])
            else: self.uses = set().union(*R) if R else set(); self.store = True
        elif op.startswith('ds_'):
            self.kind = 'ds'
            if op.startswith('ds_read') or op.startswith('ds_bpermute') or op.startswith('ds_swizzle'):
                self.defs = R[0]; self.uses = set().union(*R[1:])
            else: self.uses = set().union(*R)
        elif op.startswith('s_'):
            self.kind = 'salu'
            if op.startswith(('s_cmp', 's_cbranch', 's_branch', 's_waitcnt', 's_barrier', 's_endpgm', 's_sleep', 's_setprio', 's_bitcmp')):
                self.uses = set().union(*R) if R else set()
            else:
                self.defs = R[0] if R else set(); self.uses = set().union(*R[1:]) if len(R) > 1 else set()
                if 'saveexec' in op: self.defs |= {('s', 'exec')}
    def wide_store(self):
        return getattr(self, 'store', False) and (self.op.endswith('x4') or self.op.endswith('x3'))

def check_hazards(lines, name=''):
    ins = []
    for l in lines:
        b = l.split(';')[0].strip()
        if not b or b.endswith(':') or b.startswith('.'): continue
        ins.append(I(b))
    errs = []
    W = 24
    for j, c in enumerate(ins):
        dist = 0
        for i in range(j - 1, max(-1, j - W - 1), -1):
            p = ins[i]
            def need(n, why):
                if dist < n: errs.append('%s: need %d states (have %d) [%s]\n    %s\n    %s' % (name, n, dist, why, p.line, c.line))
            vdefs = {r for r in p.defs if r[0] in 'va'}
            sdefs = {r for r in p.defs if r[0] == 's'}
            if p.kind == 'valu':
                if c.kind == 'mfma' and vdefs & c.uses: need(2, 'VALU->MFMA operand')
                if c.kind == 'mfma' and ('s', 'exec') in p.defs: need(4, 'VALU exec->MFMA')
                if c.kind == 'vmem' and sdefs & c.uses: need(5, 'VALU sgpr->VMEM')
                if c.kind == 'valu' and (sdefs & c.uses) and not getattr(c, 'readlane', False): need(2, 'VALU sgpr->VALU const')
                if c.kind == 'valu' and getattr(c, 'readlane', False) and vdefs & c.uses: need(1, 'VALU->readlane')
                if c.kind == 'valu' and getattr(c, 'readlane', False) and sdefs & c.uses: need(4, 'VALU sgpr->readlane sel')
                if c.kind == 'valu' and getattr(c, 'perm', False) and vdefs & c.uses: need(2, 'VALU->permlane')
                if getattr(p, 'trans', False) and c.kind == 'valu' and not getattr(c, 'trans', False) and vdefs & c.uses: need(1, 'trans->VALU')
                if getattr(p, 'trans', False) and c.kind in ('mfma',) and vdefs & c.uses: need(2, 'trans->mfma')
                if c.kind == 'valu' and any('dpp' in m or 'row_' in m for m in c.mods) and vdefs & c.uses: need(2, 'VALU->DPP')
            if p.kind == 'mfma':
                D = p.defs
                if c.kind == 'mfma':
                    if D & (c.A | c.B): need(12, 'MFMA D->A/B')
                    if D & c.C and c.C != D: need(10, 'MFMA D->partial C')
                    if D & c.defs and c.C != D and not (D & c.C): need(12, 'MFMA D->D WAW (conservative)')
                elif c.kind in ('valu',) and D & (c.uses | c.defs): need(12, 'MFMA D->VALU')
                elif c.kind in ('vmem', 'ds') and D & (c.uses | c.defs): need(12, 'MFMA D->VMEM/DS')
                if c.kind == 'valu' and p.C & c.defs and not (D & c.defs): need(7, 'MFMA C WAR')
            if p.kind == 'vmem' and p.wide_store():
                data = regs(p.ops[0]) if p.op.startswith('buffer_') else regs(p.ops[1])
                if c.kind == 'valu' and data & c.defs: need(2, 'store data WAR')
                elif c.kind in ('ds', 'vmem', 'mfma') and data & c.defs: need(1, 'store data WAR')
            if p.kind == 'salu' and ('s', 'm0') in p.defs and getattr(c, 'ldsdma', False): need(1, 'M0->LDS DMA')
            dist += p.states
            if dist >= 21: break
    return errs
```

```python
from emit import *
from layout import *
from k0 import stats32

SLOT = SLAB33
MISC = 4 * SLOT
L_RS = MISC
L_KVS = MISC + 1024
L_KVF = MISC + 10240
L_XCH = MISC + 1024
LDS_BYTES = 163840
TS_OFF = 0x3000000

S_W, S_C, S_M, S_L, S_MODE, S_STEP = 12, 13, 14, 15, 16, 17
S_SLOT = 20
S_W8K = 24
S_WQ, S_WO, S_W13, S_W2 = 25, 26, 27, 28
S_XF, S_ST, S_LB = 29, 30, 31
S_RH, S_KH, S_R64, S_CB, S_SBW = 32, 33, 34, 35, 36
S_FLOFF = 37
S_B, S_E = 38, 39
S_T = 40
S_TSN = 64
V_LANE, V_L16 = 0, 1
V_SLOT = 2
V_L8 = 6
V_S8 = 7
V_FLAG = 8
V_T0 = 9
ACC = [16, 32, 48]
WF = 208
A_RSW, A_RSR, A_KVW, A_ZW, A_RED, A_KZ0, A_KZ1, A_XW, A_XR, A_FA = range(64, 74)
AUG = 74
AQ = (84, 204)
S_XD, S_SD, S_OD, S_HD, S_KP, S_KG, S_FAW, S_FAR, S_OUT = range(82, 91)
RES = 88
WF8 = 208
PQ = 96
V_R, V_C1, V_C2 = 104, 105, 106
MF = 108
ONES = 112
ST = 116
T = 132
V_PF = 250
V_DUM = 12
V_RAW2 = 250
V_RAW, V_TR = 249, 252
LOG2E = 0x3fb8aa3b
NLOG2E = 0xbfb8aa3b
EPS_PHI = 0x358637bd
EPS_LN = 0x3727c5ac

DEFAULT_PF = {}

class Fill:
    def __init__(self, E): self.E = E; self.q = []
    def add(self, *items):
        for it in items:
            if isinstance(it, str):
                for l in it.strip('\n').split('\n'):
                    l = l.strip()
                    if l: self.q.append(l)
            else: self.q.append(it)
    def pump(self, n):
        while n > 0 and self.q:
            it = self.q.pop(0)
            if isinstance(it, str): self.E.e(it)
            else: it()
            n -= 1
    def flush(self): self.pump(10 ** 9)

class K1:
    def __init__(self, name, stop=None, ts=False, spin=1 << 22, nodma=False, noact=False, tiles_ts=False, ts_wave=0, **opt):
        self.E = Em(name, vgpr=256, agpr=256, sgpr=100)
        self.stop = stop; self.ts = ts; self.spin = spin; self.nodma = nodma; self.noact = noact; self.tiles_ts = tiles_ts; self._prev = None; self._last_idx = None; self.ts_wave = ts_wave; self.opt = opt
    def stamp(self, idx):
        if not self.ts: return
        E = self.E
        E.e('s_waitcnt lgkmcnt(0)'); E.lg = []
        E.e(f'v_writelane_b32 v255, s92, {self._prev}')
        E.e('s_memtime s[92:93]')
        self._prev = idx
    def stamp_flush(self):
        if not self.ts: return
        E = self.E; L = E.label('tsf')
        E.e('s_memrealtime s[80:81]')
        E.e('s_waitcnt lgkmcnt(0)')
        E.e(f'v_writelane_b32 v255, s92, {self._prev}')
        E.e('v_writelane_b32 v255, s96, 40'); E.e('v_writelane_b32 v255, s80, 41'); E.e('v_writelane_b32 v255, s98, 42')
        E.e(f's_cmp_lg_u32 s{S_W}, {self.ts_wave}'); E.e(f's_cbranch_scc1 {L}')
        E.e(f's_lshl_b32 s91, s2, 9'); E.e(f's_add_u32 s91, s91, {TS_OFF}')
        E.e(f'v_lshlrev_b32 v{V_T0}, 2, v{V_LANE}')
        E.e(f'buffer_store_dword v254, v{V_T0}, s[4:7], s91 offen')
        E.e(f'buffer_store_dword v255, v{V_T0}, s[4:7], s91 offen offset:256')
        E.e(f's_lshl_b32 s91, s2, 8'); E.e(f's_add_u32 s91, s91, {TS_OFF + 0x40000}')
        E.e(f'buffer_store_dword v253, v{V_T0}, s[4:7], s91 offen')
        E.place(L)
    def dma(self, p, src_sreg, src_imm, nfr):
        E = self.E; n = 8
        if self.nodma: return
        a, b = S_T, S_T + 1
        E.e(f's_add_u32 s{a}, s{S_SLOT + p % 4}, s{S_W8K}')
        E.e(f's_add_u32 s{b}, s{src_sreg}, s{S_W8K}')
        if src_imm: E.e(f's_add_u32 s{b}, s{b}, {src_imm}')
        for g in range(0, n, 4):
            if g == 0: E.e(f's_mov_b32 m0, s{a}')
            else:
                E.e(f's_add_u32 m0, s{a}, {g * 1024}')
                E.e(f's_add_u32 s{b}, s{b}, 4096')
            if g == 0: E.e('s_nop 0')
            for k in range(min(4, n - g)):
                E.vmem(f'buffer_load_dwordx4 v{V_L16}, s[4:7], s{b} offen offset:{k * 1024} lds', f'slab{p}')
    def dma_items(self, p, src_sreg, src_imm, nfr):
        E = self.E; n = 8
        if self.nodma: return []
        a, b = S_T + 2, S_T + 3
        it = [f's_add_u32 s{a}, s{S_SLOT + p % 4}, s{S_W8K}', f's_add_u32 s{b}, s{src_sreg}, s{S_W8K}']
        if src_imm: it.append(f's_add_u32 s{b}, s{b}, {src_imm}')
        for g in range(0, n, 4):
            if g == 0: it.append(f's_mov_b32 m0, s{a}'); it.append('s_nop 0')
            else:
                it.append(f's_add_u32 m0, s{a}, {g * 1024}'); it.append(f's_add_u32 s{b}, s{b}, 4096')
            for k in range(min(4, n - g)):
                it.append((lambda k=k: E.vmem(f'buffer_load_dwordx4 v{V_L16}, s[4:7], s{b} offen offset:{k * 1024} lds', f'slab{p}')))
        return it
    def dma_units(self, p, src_sreg, src_imm, nfr):
        E = self.E; n = 8
        if self.nodma: return []
        a, b = S_T + 2, S_T + 3
        us = []
        if self.rawp() and src_sreg in (S_WO, S_W2):
            for k in range(8):
                def u(k=k):
                    srd, off = self.rawp_unit_off(src_sreg, src_imm, k)
                    if k == 0: E.e(f's_add_u32 s{a}, s{S_SLOT + p % 4}, s{S_W8K}')
                    E.e(f's_add_u32 m0, s{a}, {k * 1024}')
                    E.e(f's_add_u32 s{b}, s3, {off}')
                    E.vmem(f'buffer_load_dwordx4 v{V_RAW2}, {srd}, s{b} offen lds', f'slab{p}')
                u.tag = f'slab{p}'
                us.append(u)
            return us
        for k in range(n):
            def u(k=k):
                if k == 0:
                    E.e(f's_add_u32 s{a}, s{S_SLOT + p % 4}, s{S_W8K}'); E.e(f's_add_u32 s{b}, s{src_sreg}, s{S_W8K}')
                    if src_imm: E.e(f's_add_u32 s{b}, s{b}, {src_imm}')
                    E.e(f's_mov_b32 m0, s{a}'); E.e('s_nop 0')
                elif k % 4 == 0:
                    E.e(f's_add_u32 m0, s{a}, {k * 1024}'); E.e(f's_add_u32 s{b}, s{b}, 4096')
                masked = self.pint() == p
                if masked: E.e('s_mov_b64 exec, s[94:95]')
                E.vmem(f'buffer_load_dwordx4 v{V_L16}, s[4:7], s{b} offen offset:{(k % 4) * 1024} lds', f'slab{p}')
                if masked: E.e('s_mov_b64 exec, -1')
            u.tag = f'slab{p}'
            us.append(u)
        return us
    def pf_units(self, src_sreg, src_imm, nbytes, parts):
        E = self.E
        if self.nodma or not self.opt.get('pf', True): return []
        piece = nbytes // parts; per_wave = piece // 4; lines = -(-per_wave // 128)
        assert lines <= 64
        def u():
            idx = 55 if parts == 2 else 56
            E.e(f's_mul_i32 s58, s{idx}, {piece}')
            E.e(f's_mul_i32 s59, s{S_W}, {per_wave}')
            E.e(f's_add_u32 s58, s58, s59')
            E.e(f's_add_u32 s58, s58, s{src_sreg}')
            if src_imm: E.e(f's_add_u32 s58, s58, {src_imm}')
            E.e(f'v_min_u32 v{V_PF}, {lines - 1}, v{V_LANE}')
            E.e(f'v_lshlrev_b32 v{V_PF}, 7, v{V_PF}')
            E.vmem(f'buffer_load_dword v{V_PF + 1}, v{V_PF}, s[4:7], s58 offen', 'pf')
        u.tag = 'pf'
        return [u]
    def raw(self): return self.opt.get('rawqkv', False)
    def rawp(self): return self.opt.get('rawproj', False)
    def rawp_unit_off(self, src_sreg, src_imm, k):
        KH = 16 if src_sreg == S_WO else 56
        sl = src_imm // 32768
        off = sl * 8 * 16 * 1024 + ((KH * ((k >> 1) & 1) + (k >> 2)) * 16 + 8 * (k & 1)) * 1024
        return ('s[64:67]' if src_sreg == S_WO else 's[68:71]'), off
    def proj_srds(self):
        self.E.e(f"""
        s_load_dwordx2 s[64:65], s[0:1], 16
        s_load_dwordx2 s[68:69], s[0:1], 48
        s_waitcnt lgkmcnt(0)
        s_and_b32 s65, s65, 0xffff
        s_mov_b32 s66, {512*512*2}
        s_mov_b32 s67, 0x20000
        s_and_b32 s69, s69, 0xffff
        s_mov_b32 s70, {1792*512*2}
        s_mov_b32 s71, 0x20000
        """)
    def qkv_units(self, p, part):
        if not self.raw(): return self.dma_units(p, S_WQ, part * SLAB33, 33)
        E = self.E
        if self.nodma: return []
        a, b = S_T + 2, S_T + 3
        col = (1024, 2048, 0)[part]
        us = []
        for k in range(8):
            def u(k=k):
                if k == 0:
                    E.e(f's_add_u32 s{a}, s{S_SLOT + p % 4}, s{S_W8K}')
                    E.e(f's_mul_i32 s{b}, s{S_W}, {8 * 16 * 3072}')
                    E.e(f's_lshl_b32 s59, s{S_M}, 6')
                    E.e(f's_add_u32 s{b}, s{b}, s59')
                    if col: E.e(f's_add_u32 s{b}, s{b}, {col}')
                    E.e(f's_mov_b32 m0, s{a}')
                    E.e('s_nop 0')
                else:
                    E.e(f's_add_u32 m0, s{a}, {k * 1024}')
                    E.e(f's_add_u32 s{b}, s{b}, {16 * 3072}')
                E.vmem(f'buffer_load_dwordx4 v{V_RAW}, s[72:75], s{b} offen lds', f'slab{p}')
            u.tag = f'slab{p}'
            us.append(u)
        return us
    def rd_tr(self, reg, vaddr, kb, tag):
        self.E.ds(f'ds_read_b64_tr_b16 v[{reg}:{reg + 1}], v{vaddr} offset:{kb * 1024}', tag)
        self.E.ds(f'ds_read_b64_tr_b16 v[{reg + 2}:{reg + 3}], v{vaddr} offset:{kb * 1024 + 512}', tag)
    def aug_local(self, items):
        E = self.E; W = T + 8
        for n, (p, ai) in enumerate(items):
            acc = ACC[n]
            E.e(f'v_add_u32 v{T + 4}, s{S_SLOT + p % 4}, v{V_TR}')
            E.e(f'v_add_u32 v{T + 4}, s{S_W8K}, v{T + 4}')
            for f in range(8):
                E.e(f'ds_read_b64_tr_b16 v[{W + 4 * f}:{W + 4 * f + 1}], v{T + 4} offset:{f * 1024}')
                E.e(f'ds_read_b64_tr_b16 v[{W + 4 * f + 2}:{W + 4 * f + 3}], v{T + 4} offset:{f * 1024 + 512}')
                if f == 6: E.e('s_waitcnt lgkmcnt(6)')
            E.e('s_waitcnt lgkmcnt(0)')
            for f in range(8):
                E.e(f'v_mfma_f32_32x32x16_bf16 v[{acc}:{acc + 15}], v[{ONES}:{ONES + 3}], v[{W + 4 * f}:{W + 4 * f + 3}], ' + ('0' if f == 0 else f'v[{acc}:{acc + 15}]'))
        E.e('s_nop 15')
        E.e(f's_lshl_b32 s59, s{S_W}, 8')
        E.e(f'v_lshlrev_b32 v{T + 3}, 2, v{V_LANE}')
        E.e(f'v_add_u32 v{T + 2}, s59, v{T + 3}')
        E.e(f'v_add_u32 v{T + 2}, {L_XCH}, v{T + 2}')
        for n, (p, ai) in enumerate(items): E.e(f'ds_write_b32 v{T + 2}, v{ACC[n]} offset:{n * 1024}')
        E.e('s_waitcnt lgkmcnt(0)')
        E.e('s_barrier')
        E.e(f'v_add_u32 v{T + 3}, {L_XCH}, v{T + 3}')
        E.e(f'v_cmp_gt_u32 vcc, 32, v{V_LANE}')
        for n, (p, ai) in enumerate(items):
            for w in range(4): E.e(f'ds_read_b32 v{W + w}, v{T + 3} offset:{n * 1024 + w * 256}')
            E.e('s_waitcnt lgkmcnt(0)')
            E.e(f'v_add_f32 v{W}, v{W}, v{W + 1}'); E.e(f'v_add_f32 v{W + 2}, v{W + 2}, v{W + 3}')
            E.e('s_nop 0')
            E.e(f'v_add_f32 v{W}, v{W}, v{W + 2}')
            E.e('s_nop 0')
            E.e(f'v_cvt_pk_bf16_f32 v{W + 1}, v{W}, v{W}')
            E.e('s_nop 0')
            E.e(f'v_lshlrev_b32 v{W + 1}, 16, v{W + 1}')
            E.e('s_nop 0')
            E.e(f'v_sub_f32 v{W + 1}, v{W}, v{W + 1}')
            E.e('s_nop 0')
            E.e(f'v_cvt_pk_bf16_f32 v{W}, v{W}, v{W + 1}')
            E.e('s_nop 0')
            E.e(f'v_cndmask_b32 v{AUG + ai}, 0, v{W}, vcc')
        E.e('s_barrier')
    def preread_units(self, sreg, offs):
        E = self.E; us = []
        for o in offs:
            def u(o=o):
                E.e(f's_add_u32 s58, s{sreg}, {o}')
                E.vmem(f'buffer_load_dwordx4 a[{0}:{3}], v{V_L16}, s[4:7], s58 offen' if False else
                       f'buffer_load_dwordx4 v[{V_DUM}:{V_DUM + 3}], v{V_L16}, s[4:7], s58 offen', 'pre')
            u.tag = 'pre'
            us.append(u)
        return us
    def stage_units(self, src_sreg, src_imm, areg):
        E = self.E
        if self.nodma: return []
        us = []
        if self.rawp() and src_sreg in (S_WO, S_W2):
            for k in range(8):
                def u(k=k):
                    srd, off = self.rawp_unit_off(src_sreg, src_imm, k)
                    E.e(f's_add_u32 s57, s3, {off}')
                    pin = self.opt.get('pin', True)
                    if pin: E.e('s_mov_b64 exec, s[94:95]')
                    E.vmem(f'buffer_load_dwordx4 a[{areg + 4 * k}:{areg + 4 * k + 3}], v{V_RAW2}, {srd}, s57 offen', f'stg{areg}')
                    if pin: E.e('s_mov_b64 exec, -1')
                u.tag = f'stg{areg}'
                us.append(u)
            return us
        for k in range(8):
            def u(k=k):
                if k == 0:
                    E.e(f's_add_u32 s57, s{src_sreg}, s{S_W8K}')
                    if src_imm: E.e(f's_add_u32 s57, s57, {src_imm}')
                elif k % 4 == 0: E.e('s_add_u32 s57, s57, 4096')
                pin = self.opt.get('pin', True)
                if pin: E.e('s_mov_b64 exec, s[94:95]')
                E.vmem(f'buffer_load_dwordx4 a[{areg + 4 * k}:{areg + 4 * k + 3}], v{V_L16}, s[4:7], s57 offen offset:{(k % 4) * 1024}', f'stg{areg}')
                if pin: E.e('s_mov_b64 exec, -1')
            u.tag = f'stg{areg}'
            us.append(u)
        return us
    def unstage_items(self, p, areg, vtmp):
        E = self.E
        if self.nodma: return []
        def first():
            E.wait_vm(f'stg{areg}')
            E.e(f'v_add_u32 v{vtmp}, s{S_W8K}, v{V_SLOT + p % 4}')
        its = [first]
        def wr(k):
            if len(E.lg) >= 14:
                E.e('s_waitcnt lgkmcnt(7)'); E.lg = E.lg[-7:]
            E.ds(f'ds_write_b128 v{vtmp}, a[{areg + 4 * k}:{areg + 4 * k + 3}] offset:{k * 1024}', f'us{p}')
        for k in range(8): its.append(lambda k=k: wr(k))
        return its
    def pinv(self):
        sel = self.opt.get('pinv', 'V')
        return [(0, 19, 172)] if sel == 'K' else [(1, 20, 172)] if sel == 'V' else []
    def pint(self):
        sel = self.opt.get('pinv', 'V')
        return {'T1': 6, 'T2': 7}.get(sel)
    def pint_copy_in(self, p):
        E = self.E
        if self.pint() != p: return
        L = E.label('pci')
        E.wait_lg_all()
        E.e(f's_cmp_eq_u32 s{S_L}, 0'); E.e(f's_cbranch_scc1 {L}')
        E.e(f'v_add_u32 v248, s{S_W8K}, v{V_SLOT + p % 4}')
        for k in range(8): E.e(f'ds_write_b128 v248, v[{172 + 4 * k}:{172 + 4 * k + 3}] offset:{k * 1024}')
        E.e('s_waitcnt lgkmcnt(0)')
        E.place(L)
    def copy_out_items(self, p, reg):
        E = self.E
        its = [lambda: E.e(f'v_add_u32 v248, s{S_W8K}, v{V_SLOT + p % 4}')]
        for k in range(8):
            its.append(lambda k=k: E.ds(f'ds_read_b128 v[{reg + 4 * k}:{reg + 4 * k + 3}], v248 offset:{k * 1024}', f'co{p}'))
        return its
    def copy_in(self, p, reg):
        E = self.E
        E.e(f'v_add_u32 v248, s{S_W8K}, v{V_SLOT + p % 4}')
        for k in range(8):
            if len(E.lg) >= 14: E.e('s_waitcnt lgkmcnt(7)'); E.lg = E.lg[-7:]
            E.ds(f'ds_write_b128 v248, v[{reg + 4 * k}:{reg + 4 * k + 3}] offset:{k * 1024}', f'us{p}')
    def staged(self, what): return what in self.opt.get('stage', 'W')
    def pf_site(self, site):
        plan = self.opt.get('pfplan', DEFAULT_PF)
        us = []
        for nm in plan.get(site, []):
            k, i = nm[0], int(nm[1:]) if len(nm) > 1 else 0
            if k == 'T': us += self.pf_units(S_W13, i * SLAB33, SLAB33, 2)
            elif k == 'W': us += self.pf_units(S_W2, i * 32768, 32768, 4)
            elif k == 'O': us += self.pf_units(S_WO, i * 32768, 32768, 4)
            elif k == 'A': us += self.pf_units(S_WQ, i * SLAB33, SLAB33, 2)
        return us
    def frag_units(self, n, areg0, tag, first=0, sreg=44, base=None):
        E = self.E
        if self.noact: return []
        us = []
        for i in range(n):
            def u(i=i):
                if i == 0 and base: base()
                if i and i % 4 == 0: E.e(f's_add_u32 s{sreg}, s{sreg}, 4096')
                ar = areg0 + 4 * (i % 32)
                E.vmem(f'buffer_load_dwordx4 a[{ar}:{ar + 3}], v{V_L16}, s[4:7], s{sreg} offen offset:{(i % 4) * 1024} sc1', f'{tag}{first + i}')
            us.append(u)
        return us
    def stats_units(self):
        E = self.E; us = []
        for i in range(4):
            def u(i=i):
                if i == 0: E.e(f's_lshl_b32 s52, s{S_W}, 12'); E.e(f's_add_u32 s52, s52, s{S_ST}')
                E.vmem(f'buffer_load_dwordx4 v[{ST + 4 * i}:{ST + 4 * i + 3}], v{V_L16}, s[4:7], s52 offen offset:{1024 * i} sc1', 'stats')
            us.append(u)
        return us
    def load_frags(self, n, areg0, soff_setup, tag, first=0):
        E = self.E
        if self.noact: return
        for i in range(n):
            if i and i % 4 == 0: E.e('s_add_u32 s44, s44, 4096')
            E.vmem(f'buffer_load_dwordx4 a[{areg0 + 4 * i}:{areg0 + 4 * i + 3}], v{V_L16}, s[4:7], s44 offen offset:{(i % 4) * 1024} sc1', f'{tag}{first + i}')
    def store_act(self, items, kind='x', tag='st'):
        E = self.E
        if kind not in self.opt.get('plain', 'x'):
            for s in items: E.vmem(s + ' sc1', tag)
            return
        Ls = E.label('st'); Ld = E.label('sd')
        E.e(f's_cmp_lg_u32 s{S_MODE}, 0'); E.e(f's_cbranch_scc1 {Ls}')
        for s in items: E.e(s)
        E.e(f's_branch {Ld}'); E.place(Ls)
        for s in items: E.e(s + ' sc1')
        E.place(Ld)
        for s in items: E.vm.append(tag)
    def poll(self, off_sreg, val_sreg, code):
        E = self.E; Lp = E.label('poll'); Lx = E.label('pollx'); Lt = E.label('pollt')
        E.e(f'''
        s_mov_b32 s46, 0
        {Lp}:
        s_add_u32 s46, s46, 1
        s_cmp_gt_u32 s46, {self.spin}
        s_cbranch_scc1 {Lt}
        buffer_load_dword v{V_T0}, v{V_FLAG}, s[4:7], s{off_sreg} offen sc1
        s_waitcnt vmcnt(0)
        v_subrev_u32 v{V_T0 + 1}, s{val_sreg}, v{V_T0}
        v_cmp_le_u32 vcc, 8, v{V_T0 + 1}
        s_cbranch_vccz {Lx}
        {'s_sleep %d' % self.opt['hsleep'] if self.opt.get('hsleep') else ''}
        s_branch {Lp}
        {Lt}:
        s_mov_b32 s{S_MODE + 2}, {code}
        {Lx}:
        ''')
    def flag_store(self):
        E = self.E; L = E.label('fl'); Ls = E.label('fs'); Ld = E.label('fd')
        E.e(f"""
        s_add_u32 s{S_STEP}, s{S_STEP}, 1
        s_cmp_lg_u32 s{S_W}, 0
        s_cbranch_scc1 {L}
        s_lshl_b32 s45, s{S_M}, 2
        s_add_u32 s45, s45, s{S_FLOFF}
        v_mov_b32 v{V_T0 + 1}, s{S_STEP}
        v_mov_b32 v{V_T0 + 2}, 0
        s_mov_b64 exec, 1
        s_cmp_lg_u32 s{S_MODE}, 0
        s_cbranch_scc1 {Ls}
        buffer_store_dword v{V_T0 + 1}, v{V_T0 + 2}, s[4:7], s45 offen
        s_branch {Ld}
        {Ls}:
        buffer_store_dword v{V_T0 + 1}, v{V_T0 + 2}, s[4:7], s45 offen sc1
        {Ld}:
        s_mov_b64 exec, -1
        {L}:
        """)
    def hop_local(self):
        E = self.E; L = E.label('hop'); Ls = E.label('fs'); Ld = E.label('fd')
        if 'st' in E.vm: E.wait_vm('st')
        else: E.wait_vm_all(force=True)
        self._left = list(E.vm)
        E.wait_lg_all()
        E.barrier()
        E.e(f'''
        s_add_u32 s{S_STEP}, s{S_STEP}, 1
        s_cmp_lg_u32 s{S_W}, 0
        s_cbranch_scc1 {L}
        s_lshl_b32 s45, s{S_M}, 2
        s_add_u32 s45, s45, s{S_FLOFF}
        v_mov_b32 v{V_T0 + 1}, s{S_STEP}
        v_mov_b32 v{V_T0 + 2}, 0
        s_mov_b64 exec, 1
        s_cmp_lg_u32 s{S_MODE}, 0
        s_cbranch_scc1 {Ls}
        buffer_store_dword v{V_T0 + 1}, v{V_T0 + 2}, s[4:7], s45 offen
        s_branch {Ld}
        {Ls}:
        buffer_store_dword v{V_T0 + 1}, v{V_T0 + 2}, s[4:7], s45 offen sc1
        {Ld}:
        s_mov_b64 exec, -1
        ''')
        if self.opt.get('allpoll'):
            E.place(L)
            self.poll(S_FLOFF, S_STEP, 1)
        else:
            self.poll(S_FLOFF, S_STEP, 1)
            E.place(L)
            E.barrier()
    def stats_loads(self):
        E = self.E
        E.e(f's_lshl_b32 s44, s{S_W}, 12')
        E.e(f's_add_u32 s44, s44, s{S_ST}')
        for i in range(8):
            E.vmem(f'buffer_load_dwordx2 v[{ST + 2 * i}:{ST + 2 * i + 1}], v{V_L8}, s[4:7], s44 offen offset:{512 * i} sc1', 'stats')
    def stats_items(self, c1_sign):
        E = self.E; a, b, c, d = T, T + 1, T + 2, T + 3
        it = [lambda: E.wait_vm('stats')]
        it += [f'v_add_f32 v{a}, v{ST}, v{ST + 2}', f'v_add_f32 v{b}, v{ST + 4}, v{ST + 6}',
               f'v_add_f32 v{c}, v{ST + 1}, v{ST + 3}', f'v_add_f32 v{d}, v{ST + 5}, v{ST + 7}']
        for i in (4, 6):
            it += [f'v_add_f32 v{a}, v{a}, v{ST + 2 * i}', f'v_add_f32 v{b}, v{b}, v{ST + 2 * i + 2}',
                   f'v_add_f32 v{c}, v{c}, v{ST + 2 * i + 1}', f'v_add_f32 v{d}, v{d}, v{ST + 2 * i + 3}']
        it += [f'v_add_f32 v{a}, v{a}, v{b}', f'v_add_f32 v{c}, v{c}, v{d}', f'v_mov_b32 v{b}, v{a}', 's_nop 1',
               f'v_permlane32_swap_b32 v{a}, v{b}', f'v_add_f32 v{a}, v{a}, v{b}',
               f'v_mul_f32 v{a}, 0x3b000000, v{a}']
        it += [f'v_mov_b32 v{T + 4}, 0x3d000000']
        for i in range(8):
            it += [f'v_fma_f32 v{ST + 2 * i}, v{ST + 2 * i}, v{T + 4}, -v{a}']
        it += [f'v_mul_f32 v{b}, v{ST}, v{ST}', f'v_mul_f32 v{d}, v{ST + 2}, v{ST + 2}']
        for i in range(2, 8, 2):
            it += [f'v_fmac_f32 v{b}, v{ST + 2 * i}, v{ST + 2 * i}', f'v_fmac_f32 v{d}, v{ST + 2 * i + 2}, v{ST + 2 * i + 2}']
        it += [f'v_add_f32 v{b}, v{b}, v{d}', f'v_mov_b32 v{T + 4}, 0x42000000',
               f'v_fmac_f32 v{c}, v{T + 4}, v{b}',
               f'v_mov_b32 v{b}, v{c}', 's_nop 1' if False else f'v_sub_f32 v{a}, 0, v{a}', 's_nop 0',
               f'v_permlane32_swap_b32 v{c}, v{b}', f'v_add_f32 v{c}, v{c}, v{b}',
               f'v_mov_b32 v{d}, {EPS_LN:#x}',
               f'v_fmac_f32 v{d}, 0x3b000000, v{c}',
               f'v_cvt_pk_bf16_f32 v{MF}, v{a}, v{a}',
               f'v_rsq_f32 v{V_R}, v{d}',
               f'v_lshlrev_b32 v{b}, 16, v{MF}',
               f'v_sub_f32 v{b}, v{a}, v{b}',
               f'v_mul_f32 v{V_C1}, {(LOG2E if c1_sign > 0 else NLOG2E):#x}, v{V_R}',
               f'v_mov_b32 v{V_C2}, v{d}',
               f'v_cvt_pk_bf16_f32 v{MF + 1}, v{b}, v{b}']
        return it
    def init(self):
        E = self.E; single = self.opt.get('single', True)
        dbg = self.ts or self.opt.get('dbgclk')
        E.e(f'''
        s_cmp_ge_u32 s2, 256
        s_cbranch_scc1 L_k1_end
        {'s_memrealtime s[96:97]' if dbg else ''}
        {'s_memtime s[98:99]' if dbg else ''}
        s_load_dwordx2 s[4:5], s[0:1], 72
        s_load_dwordx2 s[8:9], s[0:1], 56
        {'s_load_dwordx4 s[76:79], s[0:1], 0' if single else 's_load_dwordx2 s[72:73], s[0:1], 64'}
        {'s_load_dwordx2 s[80:81], s[0:1], 16' if single else ''}
        {'s_load_dwordx4 s[84:87], s[0:1], 32' if single else ''}
        {'s_load_dwordx2 s[88:89], s[0:1], 48' if single else ''}
        v_lshrrev_b32 v9, 6, v0
        v_and_b32 v{V_LANE}, 63, v0
        v_readfirstlane_b32 s{S_W}, v9
        s_getreg_b32 s{S_MODE + 3}, hwreg(HW_REG_XCC_ID)
        s_and_b32 s{S_MODE + 3}, s{S_MODE + 3}, 7
        v_lshlrev_b32 v{V_L16}, 4, v{V_LANE}
        v_lshlrev_b32 v{V_L8}, 3, v{V_LANE}
        v_and_b32 v9, 31, v{V_LANE}
        v_lshlrev_b32 v{V_S8}, 3, v9
        v_and_b32 v9, 15, v{V_LANE}
        v_lshlrev_b32 v{V_FLAG}, 2, v9
        s_and_b32 s40, s2, 7
        s_lshr_b32 s41, s2, 3
        s_lshl_b32 s{S_C}, s40, 1
        s_lshr_b32 s42, s41, 4
        s_add_u32 s{S_C}, s{S_C}, s42
        s_and_b32 s{S_M}, s41, 15
        s_mov_b32 s{S_L}, 0
        s_mov_b32 s{S_MODE}, 0
        s_mov_b32 s{S_MODE + 2}, 0
        s_mov_b32 s{S_SLOT}, 0
        s_mov_b32 s{S_SLOT + 1}, {SLOT}
        s_mov_b32 s{S_SLOT + 2}, {2 * SLOT}
        s_mov_b32 s{S_SLOT + 3}, {3 * SLOT}
        s_lshl_b32 s{S_W8K}, s{S_W}, 13
        s_lshr_b32 s{S_R64}, s{S_M}, 3
        s_and_b32 s{S_CB}, s{S_M}, 7
        s_and_b32 s{S_RH}, s{S_W}, 1
        s_lshr_b32 s{S_KH}, s{S_W}, 1
        s_lshl_b32 s{S_SBW}, s{S_R64}, 1
        s_add_u32 s{S_SBW}, s{S_SBW}, s{S_RH}
        s_mul_i32 s{S_WQ}, s{S_M}, {3 * SLAB33}
        s_add_u32 s{S_WQ}, s{S_WQ}, {WQKV}
        s_lshl_b32 s{S_WO}, s{S_CB}, 16
        s_add_u32 s{S_WO}, s{S_WO}, {WO}
        s_mul_i32 s{S_W13}, s{S_M}, {7 * SLAB33}
        s_add_u32 s{S_W13}, s{S_W13}, {W13}
        s_mul_i32 s{S_W2}, s{S_CB}, {224 * 1024}
        s_add_u32 s{S_W2}, s{S_W2}, {W2}
        s_lshl_b32 s{S_XF}, s{S_C}, 17
        s_add_u32 s{S_XF}, s{S_XF}, {XF0}
        s_lshl_b32 s{S_ST}, s{S_C}, 14
        s_add_u32 s{S_ST}, s{S_ST}, {ST0}
        s_lshl_b32 s{S_FLOFF}, s{S_C}, 7
        s_add_u32 s{S_FLOFF}, s{S_FLOFF}, {FL}
        v_mov_b32 v{MF + 2}, 0
        v_mov_b32 v{MF + 3}, 0
        v_mov_b32 v{ONES}, 0x3f803f80
        v_mov_b32 v{ONES + 1}, 0x3f803f80
        v_mov_b32 v{ONES + 2}, 0x3f803f80
        v_mov_b32 v{ONES + 3}, 0x3f803f80
        s_waitcnt lgkmcnt(0)
        s_and_b32 s5, s5, 0xffff
        s_mov_b32 s6, {WS_BYTES}
        s_mov_b32 s7, 0x20000
        ''')
        if single:
            E.e(f'v_mov_b32 v9, {EPOCH}')
            E.vmem(f'buffer_load_dword v{T + 71}, v9, s[4:7], 0 offen sc1', 'epoch')
            if self.opt.get('tlbw'):
                E.e(f'v_min_u32 v10, 6, v{V_LANE}'); E.e('v_lshlrev_b32 v10, 21, v10')
                E.vmem(f'buffer_load_dword v{T + 70}, v10, s[4:7], 0 offen', 'tlb')
        E.e(f'''
        s_and_b32 s9, s9, 0xffff
        s_mov_b32 s10, {2048 * 512 * 2}
        s_mov_b32 s11, 0x20000
        ''')
        if self.ts: E.e('v_mov_b32 v253, 0')
        self.pstamp(0)
        if single: self.prep_issue()
        self.pstamp(1)
        if self.opt.get('codepf', False):
            E.e('s_getpc_b64 s[92:93]')
            E.place('L_k1_pc')
            E.e(f's_lshl_b32 s40, s{S_W}, 6')
            E.e(f'v_add_u32 v9, s40, v{V_LANE}')
            E.e(f'v_lshlrev_b32 v9, 7, v9')
            E.e('s_mov_b32 s40, L_k1_last-L_k1_pc')
            E.e('v_min_u32 v9, s40, v9')
            E.e(f'global_load_dword v{V_PF + 1}, v9, s[92:93]')
            E.vm.append('code')
        def persist():
            E.e(f'''
            s_and_b32 s55, s{S_C}, 1
            s_lshl_b32 s56, s55, 1
            s_add_u32 s56, s56, s{S_R64}
            s_mov_b32 s94, -1
            s_mov_b32 s95, -1
            s_mul_i32 s53, s{S_KH}, 3072
            s_lshl_b32 s54, s{S_KH}, 10
            s_add_u32 s54, s54, 1024
            ''')
            for i in range(4): E.e(f'v_add_u32 v{V_SLOT + i}, s{S_SLOT + i}, v{V_L16}')
            E.e(f'''
            s_lshl_b32 s45, s{S_W}, 8
            s_add_u32 s45, s45, {L_RS}
            v_lshrrev_b32 v9, 1, v{V_S8}
            v_add_u32 v{A_RSW}, s45, v9
            v_lshrrev_b32 v10, 5, v{V_LANE}
            v_lshlrev_b32 v9, 4, v10
            v_add_u32 v{A_RSR}, s45, v9
            s_mul_i32 s45, s{S_W}, 2304
            s_add_u32 s45, s45, {L_KVS}
            v_and_b32 v9, 15, v{V_LANE}
            v_lshlrev_b32 v11, 4, v10
            v_add_u32 v9, v9, v11
            v_lshlrev_b32 v9, 5, v9
            v_and_b32 v11, 16, v{V_LANE}
            v_lshlrev_b32 v12, 6, v11
            v_add_u32 v12, v9, v12
            v_add_u32 v{A_KVW}, s45, v12
            v_lshlrev_b32 v12, 5, v10
            v_add_u32 v{A_ZW}, s45, v12
            v_add_u32 v12, 2048, v12
            v_cmp_eq_u32 vcc, 0, v11
            v_add_u32 v13, 1024, v9
            v_add_u32 v14, 64, v12
            v_cndmask_b32 v9, v12, v9, vcc
            v_cndmask_b32 v13, v14, v13, vcc
            v_add_u32 v{A_KZ0}, {L_KVF}, v9
            v_add_u32 v{A_KZ1}, {L_KVF}, v13
            s_lshl_b32 s45, s{S_W}, 10
            v_add_u32 v{A_RED}, s45, v{V_L16}
            s_lshl_b32 s45, s{S_W}, 12
            s_add_u32 s45, s45, {L_XCH}
            v_add_u32 v{A_XW}, s45, v{V_L16}
            s_xor_b32 s46, s{S_W}, 2
            s_lshl_b32 s46, s46, 12
            s_add_u32 s46, s46, {L_XCH}
            v_add_u32 v{A_XR}, s46, v{V_L16}
            v_lshlrev_b32 v{A_FA}, 2, v{V_LANE}
            v_lshlrev_b32 v{V_S8}, 1, v{V_S8}
            s_lshl_b32 s44, s{S_C}, 2
            s_add_u32 s44, s44, s{S_SBW}
            s_lshl_b32 s47, s44, 12
            s_lshl_b32 s44, s44, 15
            s_lshl_b32 s45, s{S_CB}, 2
            s_lshl_b32 s46, s{S_KH}, 1
            s_add_u32 s45, s45, s46
            s_lshl_b32 s45, s45, 10
            s_add_u32 s{S_XD}, s44, s45
            s_add_u32 s{S_XD}, s{S_XD}, {XF0}
            s_lshr_b32 s45, s{S_CB}, 1
            s_lshl_b32 s45, s45, 10
            s_add_u32 s47, s47, s45
            s_and_b32 s45, s{S_CB}, 1
            s_lshl_b32 s45, s45, 9
            s_add_u32 s47, s47, s45
            s_lshl_b32 s45, s{S_KH}, 3
            s_add_u32 s{S_SD}, s47, s45
            s_add_u32 s{S_SD}, s{S_SD}, {ST0}
            s_lshl_b32 s45, s{S_CB}, 7
            s_add_u32 s{S_OUT}, s44, s45
            s_lshl_b32 s45, s{S_KH}, 6
            s_add_u32 s{S_OUT}, s{S_OUT}, s45
            s_lshl_b32 s44, s{S_C}, 17
            s_lshl_b32 s45, s{S_W}, 15
            s_add_u32 s44, s44, s45
            s_lshl_b32 s45, s{S_M}, 11
            s_add_u32 s44, s44, s45
            s_add_u32 s{S_OD}, s44, {LB(0) + OF_}
            s_lshl_b32 s44, s{S_C}, 2
            s_add_u32 s44, s44, s{S_W}
            s_mul_i32 s44, s44, {112 * 1024}
            s_mul_i32 s45, s{S_M}, {7 * 1024}
            s_add_u32 s44, s44, s45
            s_add_u32 s{S_HD}, s44, {LB(0) + HF_}
            s_mul_i32 s{S_KG}, s{S_M}, {16 * KVP_STRIDE}
            s_add_u32 s{S_KG}, s{S_KG}, {LB(0) + KVP_}
            s_mul_i32 s45, s{S_C}, {KVP_STRIDE}
            s_add_u32 s{S_KP}, s{S_KG}, s45
            s_lshl_b32 s{S_FAR}, s{S_M}, 8
            s_add_u32 s{S_FAR}, s{S_FAR}, {FA}
            s_lshl_b32 s45, s{S_C}, 2
            s_add_u32 s45, s45, s{S_W}
            s_lshl_b32 s45, s45, 2
            s_add_u32 s{S_FAW}, s{S_FAR}, s45
            ''')
            if self.rawp():
                E.e(f'''
                v_lshrrev_b32 v9, 2, v{V_LANE}
                v_and_b32 v9, 7, v9
                v_lshlrev_b32 v9, 10, v9
                v_lshrrev_b32 v10, 5, v{V_LANE}
                v_lshlrev_b32 v10, 6, v10
                v_add_u32 v9, v9, v10
                v_and_b32 v10, 3, v{V_LANE}
                v_lshlrev_b32 v10, 4, v10
                v_add_u32 v{V_RAW2}, v9, v10
                s_lshl_b32 s3, s{S_W}, 15
                s_lshl_b32 s45, s{S_CB}, 7
                s_add_u32 s3, s3, s45
                s_mul_i32 s53, s{S_KH}, 2560
                s_mul_i32 s54, s{S_KH}, 1536
                s_add_u32 s54, s54, 512
                ''')
                if not self.raw(): self.proj_srds()
            if self.raw() or self.rawp():
                E.e(f'''
                v_lshrrev_b32 v9, 2, v{V_LANE}
                v_mul_u32_u24 v9, 3072, v9
                v_and_b32 v10, 3, v{V_LANE}
                v_lshlrev_b32 v11, 4, v10
                v_add_u32 v{V_RAW}, v9, v11
                v_lshrrev_b32 v9, 5, v{V_LANE}
                v_lshlrev_b32 v9, 2, v9
                v_and_b32 v11, 15, v{V_LANE}
                v_lshrrev_b32 v11, 2, v11
                v_add_u32 v9, v9, v11
                v_lshlrev_b32 v9, 6, v9
                v_lshrrev_b32 v11, 4, v{V_LANE}
                v_and_b32 v11, 1, v11
                v_lshlrev_b32 v11, 5, v11
                v_add_u32 v9, v9, v11
                v_lshlrev_b32 v10, 3, v10
                v_add_u32 v{V_TR}, v9, v10
                ''')
        if self.raw():
            self.prologue_raw(persist, self.prep_issue_job)
        else:
            if single: self.prep_finish()
            persist()
            if not single:
                E.e(f's_mov_b32 s{S_B}, 0')
            E.e(f's_mov_b32 s{S_STEP}, s{S_B}')
            E.e(f's_add_u32 s{S_MODE + 3}, s{S_MODE + 3}, s{S_B}'); E.e(f's_add_u32 s{S_MODE + 3}, s{S_MODE + 3}, 1')
            if single and self.opt.get('warm'):
                for q in range(4): E.e(f'v_mov_b32 v{140 + q}, 0')
                if 'o' in self.opt['warm']:
                    for k in range(2): E.e(f'buffer_store_dwordx4 v[140:143], v{V_L16}, s[4:7], s{S_OD} offen offset:{1024 * k} sc1')
                if 'h' in self.opt['warm']:
                    E.e(f's_mov_b32 s44, s{S_HD}')
                    for k in range(7):
                        if k == 4: E.e('s_add_u32 s44, s44, 4096')
                        E.e(f'buffer_store_dwordx4 v[140:143], v{V_L16}, s[4:7], s44 offen offset:{1024 * (k % 4)} sc1')
            if single: self.prep_publish()
            else:
                L = E.label('reg')
                E.e(f'''
                s_cmp_lg_u32 s{S_W}, 0
                s_cbranch_scc1 {L}
                s_lshl_b32 s45, s{S_C}, 7
                s_lshl_b32 s46, s{S_M}, 2
                s_add_u32 s45, s45, s46
                s_add_u32 s45, s45, {REG}
                v_mov_b32 v10, s{S_MODE + 3}
                v_mov_b32 v11, 0
                s_mov_b64 exec, 1
                buffer_store_dword v10, v11, s[4:7], s45 offen sc1
                s_mov_b64 exec, -1
                {L}:
                ''')
        if not self.raw():
            if single:
                AP = T + 0
                E.e(f'v_and_b32 v9, 31, v{V_LANE}'); E.e('v_lshlrev_b32 v9, 4, v9')
                E.e(f's_mul_i32 s44, s{S_M}, {3 * 512}'); E.e(f's_add_u32 s44, s44, {AUGP}')
                for i in range(10):
                    if i == 3:
                        E.e(f's_mul_i32 s44, s{S_M}, {7 * 512}'); E.e(f's_add_u32 s44, s44, {AUGP + 48 * 512}')
                    k = i if i < 3 else i - 3
                    E.vmem(f'buffer_load_dwordx4 v[{AP + 4 * i}:{AP + 4 * i + 3}], v9, s[4:7], s44 offen offset:{k * 512}', 'augp')
            self.dma(0, S_WQ, 0, 33); self.dma(1, S_WQ, SLAB33, 33)
            if not single:
                for i in range(10):
                    base, k = (S_WQ, i) if i < 3 else (S_W13, i - 3)
                    E.e(f's_add_u32 s44, s{base}, {k * SLAB33 + 32 * 1024}')
                    E.vmem(f'buffer_load_dword v{AUG + i}, v{V_L16}, s[4:7], s44 offen', 'aug')
        for q in AQ: E.e(f'v_mov_b32 v{q + 2}, 0'); E.e(f'v_mov_b32 v{q + 3}, 0')
        if not single:
            E.vmem(f'buffer_load_dwordx4 v[{RES}:{RES + 3}], v{V_L16}, s[4:7], s{S_XD} offen', 'res')
            E.vmem(f'buffer_load_dwordx4 v[{RES + 4}:{RES + 7}], v{V_L16}, s[4:7], s{S_XD} offen offset:1024', 'res')
    def pstamp(self, i):
        if not self.ts: return
        E = self.E
        E.e('s_memtime s[92:93]'); E.e('s_waitcnt lgkmcnt(0)'); E.e(f'v_writelane_b32 v253, s92, {i}')
    def aug_words(self, AP, idx):
        E = self.E; n = len(idx)
        for i in range(n):
            b = AP + 4 * i
            E.e(f'v_add_f32 v{b}, v{b}, v{b + 1}'); E.e(f'v_add_f32 v{b + 2}, v{b + 2}, v{b + 3}')
        for i in range(n): E.e(f'v_add_f32 v{AP + 4 * i}, v{AP + 4 * i}, v{AP + 4 * i + 2}')
        for i in range(n): E.e(f'v_cvt_pk_bf16_f32 v{AP + 4 * i + 1}, v{AP + 4 * i}, v{AP + 4 * i}')
        for i in range(n): E.e(f'v_lshlrev_b32 v{AP + 4 * i + 1}, 16, v{AP + 4 * i + 1}')
        for i in range(n): E.e(f'v_sub_f32 v{AP + 4 * i + 1}, v{AP + 4 * i}, v{AP + 4 * i + 1}')
        E.e(f'v_cmp_gt_u32 vcc, 32, v{V_LANE}')
        for i in range(n): E.e(f'v_cvt_pk_bf16_f32 v{AP + 4 * i}, v{AP + 4 * i}, v{AP + 4 * i + 1}')
        for i in range(n): E.e(f'v_cndmask_b32 v{AUG + idx[i]}, 0, v{AP + 4 * i}, vcc')
    def layer0_block(self):
        E = self.E; L = E.label('l0'); Lw = E.label('l0w'); Lp = E.label('l0p'); Lt = E.label('l0t'); Lx = E.label('l0x')
        E.e(f"""
        s_cmp_lg_u32 s{S_L}, 0
        s_cbranch_scc1 {L}
        s_waitcnt lgkmcnt(0)
        s_barrier
        """)
        self.job_process()
        E.e(f"""
        s_waitcnt vmcnt(0)
        s_barrier
        s_cmp_lg_u32 s{S_W}, 0
        s_cbranch_scc1 {Lw}
        s_lshl_b32 s46, s2, 6
        s_add_u32 s46, s46, {PF2}
        s_add_u32 s47, s{S_B}, 1
        v_mov_b32 v14, s47
        v_mov_b32 v15, 0
        s_mov_b64 exec, 1
        buffer_store_dword v14, v15, s[4:7], s46 offen sc1
        s_mov_b64 exec, -1
        ; lanes 0..1 wo jobs, 2..13 w1/w3 jobs, 14..20 w2 jobs
        s_lshl_b32 s45, s{S_CB}, 1
        s_add_u32 s45, s45, 160
        v_add_u32 v14, s45, v{V_LANE}
        s_mul_i32 s45, s{S_M}, 7
        s_lshr_b32 s45, s45, 2
        s_lshl_b32 s45, s45, 2
        s_add_u32 s45, s45, 48-2
        v_add_u32 v15, s45, v{V_LANE}
        v_min_u32 v15, 159, v15
        v_cmp_le_u32 vcc, 2, v{V_LANE}
        s_nop 1
        v_cndmask_b32 v14, v14, v15, vcc
        s_mul_i32 s45, s{S_CB}, 7
        s_add_u32 s45, s45, 176-14
        v_add_u32 v15, s45, v{V_LANE}
        v_cmp_le_u32 vcc, 14, v{V_LANE}
        s_nop 1
        v_cndmask_b32 v14, v14, v15, vcc
        v_lshlrev_b32 v14, 6, v14
        v_add_u32 v14, {PF2}, v14
        s_add_u32 s47, s{S_B}, 1
        s_mov_b32 s58, 0x1fffff
        s_mov_b32 s59, 0
        s_mov_b64 exec, s[58:59]
        s_mov_b32 s46, 0
        {Lp}:
        s_add_u32 s46, s46, 1
        s_cmp_gt_u32 s46, {self.spin}
        s_cbranch_scc1 {Lt}
        buffer_load_dword v{V_T0}, v14, s[4:7], 0 offen sc1
        s_waitcnt vmcnt(0)
        v_subrev_u32 v15, s47, v{V_T0}
        v_cmp_le_u32 vcc, 8, v15
        s_cbranch_vccnz {Lp}
        s_branch {Lx}
        {Lt}:
        s_mov_b32 s{S_MODE + 2}, 5
        {Lx}:
        s_mov_b64 exec, -1
        {Lw}:
        s_barrier
        v_and_b32 v9, 31, v{V_LANE}
        v_lshlrev_b32 v9, 4, v9
        s_mul_i32 s44, s{S_M}, {7 * 512}
        s_add_u32 s44, s44, {AUGP + 48 * 512}
        """)
        for k in range(7): E.e(f'buffer_load_dwordx4 v[{WF + 4 * k}:{WF + 4 * k + 3}], v9, s[4:7], s44 offen offset:{k * 512} sc1')
        self.aug_local([(2, 2)])
        E.e('s_waitcnt vmcnt(0)')
        self.aug_words(WF, [3 + k for k in range(7)])
        E.place(L)
    def aug_finish(self):
        E = self.E; AP = T + 0; L = E.label('aug')
        n = len(E.vm) - 1 - max(i for i, t in enumerate(E.vm) if t == 'augp')
        E.e(f's_cmp_lg_u32 s{S_L}, 0'); E.e(f's_cbranch_scc1 {L}')
        E.e(f's_waitcnt vmcnt({n})')
        for i in range(10):
            b = AP + 4 * i
            E.e(f'v_add_f32 v{b}, v{b}, v{b + 1}'); E.e(f'v_add_f32 v{b + 2}, v{b + 2}, v{b + 3}')
        for i in range(10): E.e(f'v_add_f32 v{AP + 4 * i}, v{AP + 4 * i}, v{AP + 4 * i + 2}')
        for i in range(10): E.e(f'v_cvt_pk_bf16_f32 v{AP + 4 * i + 1}, v{AP + 4 * i}, v{AP + 4 * i}')
        for i in range(10): E.e(f'v_lshlrev_b32 v{AP + 4 * i + 1}, 16, v{AP + 4 * i + 1}')
        for i in range(10): E.e(f'v_sub_f32 v{AP + 4 * i + 1}, v{AP + 4 * i}, v{AP + 4 * i + 1}')
        E.e(f'v_cmp_gt_u32 vcc, 32, v{V_LANE}')
        for i in range(10): E.e(f'v_cvt_pk_bf16_f32 v{AP + 4 * i}, v{AP + 4 * i}, v{AP + 4 * i + 1}')
        for i in range(10): E.e(f'v_cndmask_b32 v{AUG + i}, 0, v{AP + 4 * i}, vcc')
        E.place(L)
    def prep_issue(self):
        E = self.E
        if self.opt.get('jobfirst') and not self.raw(): self.prep_issue_job()
        E.e(f"""
        s_mov_b32 s72, s76
        s_and_b32 s73, s77, 0xffff
        s_mov_b32 s74, {2048*512*2}
        s_mov_b32 s75, 0x20000
        s_lshl_b32 s40, s{S_C}, 2
        s_add_u32 s40, s40, s{S_SBW}
        s_lshl_b32 s40, s40, 15
        s_lshl_b32 s41, s{S_CB}, 7
        s_add_u32 s40, s40, s41
        s_lshl_b32 s41, s{S_KH}, 6
        s_add_u32 s40, s40, s41
        v_and_b32 v134, 31, v{V_LANE}
        v_lshlrev_b32 v134, 10, v134
        v_lshrrev_b32 v135, 5, v{V_LANE}
        v_lshlrev_b32 v135, 3, v135
        v_add_u32 v134, v134, v135
        """)
        for i in range(4):
            E.vmem(f'buffer_load_dwordx2 v[{RES+2*i}:{RES+2*i+1}], v134, s[72:75], s40 offen offset:{16*i}', 'x')
        if not self.raw() and not self.opt.get('jobfirst'): self.prep_issue_job()
    def prep_issue_job(self):
        E = self.E
        E.e(f"""
        s_mov_b32 s67, 0x20000
        s_mov_b32 s71, 0x20000
        s_lshl_b32 s58, s{S_W}, 13
        s_add_u32 s58, s58, {(3 if self.raw() else 2) * SLOT}
        s_mov_b32 s45, 0
        s_mov_b32 s49, 0
        s_cmp_ge_u32 s2, {160 if self.rawp() else 232}
        s_cbranch_scc1 L_p_none
        s_cmp_lt_u32 s2, {48 if self.raw() else 0}
        s_cbranch_scc1 L_p_none
        s_mov_b32 s45, 1
        s_cmp_ge_u32 s2, 176
        s_cbranch_scc1 L_p_j2
        s_cmp_ge_u32 s2, 160
        s_cbranch_scc1 L_p_jo
        s_cmp_ge_u32 s2, 48
        s_cbranch_scc1 L_p_j13
        s_lshr_b32 s50, s2, 4
        s_lshr_b32 s51, s2, 1
        s_and_b32 s51, s51, 7
        s_and_b32 s52, s2, 1
        s_mov_b32 s64, s78
        s_and_b32 s65, s79, 0xffff
        s_mov_b32 s66, {512*1536*2}
        s_mov_b32 s41, 3072
        s_add_u32 s53, s50, 1
        s_cmp_eq_u32 s50, 2
        s_cselect_b32 s53, 0, s53
        s_lshl_b32 s53, s53, 10
        s_lshl_b32 s42, s51, 7
        s_add_u32 s42, s42, s53
        s_lshl_b32 s44, s52, 4             ; first kb of the job
        s_lshl_b32 s53, s{S_W}, 2
        s_add_u32 s44, s44, s53            ; first kb of the wave
        s_mul_i32 s53, s51, 6
        s_add_u32 s53, s53, s50
        s_mul_i32 s46, s53, {SLAB33}
        s_add_u32 s46, s46, {WQKV}
        s_lshl_b32 s54, s44, 10
        s_add_u32 s46, s46, s54
        s_mov_b32 s47, {3 * SLAB33}
        s_mov_b32 s60, 0
        s_mov_b32 s61, 1024
        s_mov_b32 s62, 2048
        s_mov_b32 s63, 3072
        s_lshl_b32 s49, s53, 9
        s_lshl_b32 s54, s52, 3
        s_add_u32 s49, s49, s54
        s_add_u32 s49, s49, {AUGP}
        s_branch L_p_jobA
        L_p_jo:
        s_sub_u32 s50, s2, 160
        s_lshr_b32 s51, s50, 1             ; cb
        s_and_b32 s52, s50, 1              ; khalf
        {'s_load_dwordx2 s[64:65], s[0:1], 16' if self.raw() else 's_mov_b32 s64, s80'}
        {'s_waitcnt lgkmcnt(0)' if self.raw() else 's_mov_b32 s65, s81'}
        s_and_b32 s65, s65, 0xffff
        s_mov_b32 s66, {512*512*2}
        s_mov_b32 s41, 1024
        s_lshl_b32 s42, s51, 7
        s_lshl_b32 s44, s52, 4
        s_lshl_b32 s53, s{S_W}, 2
        s_add_u32 s44, s44, s53
        s_lshl_b32 s46, s51, 16
        s_add_u32 s46, s46, {WO}
        s_lshl_b32 s54, s{S_W}, 4          ; (4w)*4
        s_lshl_b32 s55, s52, 1
        s_add_u32 s54, s54, s55
        s_lshl_b32 s54, s54, 10
        s_add_u32 s46, s46, s54
        s_mov_b32 s47, 1024
        s_mov_b32 s60, 0
        s_mov_b32 s61, 4096
        s_mov_b32 s62, 8192
        s_mov_b32 s63, 12288
        s_branch L_p_jobA
        L_p_j2:
        s_sub_u32 s50, s2, 176
        s_mul_i32 s51, s50, 9363
        s_lshr_b32 s51, s51, 16
        s_mul_i32 s52, s51, 7
        s_sub_u32 s52, s50, s52            ; kp
        {'s_load_dwordx2 s[64:65], s[0:1], 48' if self.raw() else 's_mov_b32 s64, s88'}
        {'s_waitcnt lgkmcnt(0)' if self.raw() else 's_mov_b32 s65, s89'}
        s_and_b32 s65, s65, 0xffff
        s_mov_b32 s66, {1792*512*2}
        s_mov_b32 s41, 1024
        s_lshl_b32 s42, s51, 7
        s_lshl_b32 s44, s52, 4
        s_lshl_b32 s53, s{S_W}, 2
        s_add_u32 s44, s44, s53            ; kb0
        s_cmp_ge_u32 s44, 56
        s_cselect_b32 s54, 56, 0
        s_cselect_b32 s55, 2, 0
        s_sub_u32 s54, s44, s54
        s_lshl_b32 s55, s55, 10
        s_mul_i32 s46, s51, {224*1024}
        s_add_u32 s46, s46, s55
        s_add_u32 s46, s46, {W2}
        s_mov_b32 s47, 1024
        """)
        for k in range(4):
            if self.opt.get('earlyd', False):
                E.e(f"""
                s_add_u32 s50, s54, {k}
                s_mul_i32 s52, s50, 9363
                s_lshr_b32 s52, s52, 16
                s_mul_i32 s53, s52, 7
                s_sub_u32 s53, s50, s53
                s_mul_i32 s50, s52, 5
                s_add_u32 s50, s50, s53
                s_lshl_b32 s52, s52, 1
                s_add_u32 s52, s52, s53
                s_add_u32 s52, s52, 35
                s_cmp_ge_u32 s53, 5
                s_cselect_b32 s50, s52, s50
                s_lshl_b32 s{60 + k}, s50, 12
                """)
            else:
                E.e(f's_add_u32 s50, s54, {k}'); E.e(f's_lshl_b32 s{60 + k}, s50, 12')
        E.e(f"""
        L_p_jobA:
        v_lshrrev_b32 v136, 2, v{V_LANE}
        v_and_b32 v136, 7, v136
        v_mul_lo_u32 v136, v136, s41
        v_lshrrev_b32 v137, 5, v{V_LANE}
        v_lshlrev_b32 v137, 6, v137
        v_add_u32 v136, v136, v137
        v_and_b32 v137, 3, v{V_LANE}
        v_lshlrev_b32 v137, 4, v137
        v_add_u32 v136, v136, v137
        s_lshl_b32 s56, s41, 3             ; 8 rows
        s_mul_i32 s57, s44, s41
        s_lshl_b32 s57, s57, 4
        s_add_u32 s57, s57, s42
        """)
        for q in range(8):
            E.e(f's_add_u32 m0, s58, {q*1024}')
            E.e('s_nop 0')
            E.e('buffer_load_dwordx4 v136, s[64:67], s57 offen lds')
            if q < 7: E.e('s_add_u32 s57, s57, s56')
        E.e(f"""
        s_branch L_p_none
        L_p_j13:
        s_mov_b32 s45, 2
        s_sub_u32 s50, s2, 48
        s_lshr_b32 s51, s50, 2             ; g
        s_and_b32 s52, s50, 3              ; kq
        {'s_load_dwordx2 s[64:65], s[0:1], 32' if self.raw() else 's_mov_b32 s64, s84'}
        {'s_load_dwordx2 s[68:69], s[0:1], 40' if self.raw() else 's_mov_b32 s68, s86'}
        {'s_waitcnt lgkmcnt(0)' if self.raw() else 's_mov_b32 s65, s85'}
        {'' if self.raw() else 's_mov_b32 s69, s87'}
        s_and_b32 s65, s65, 0xffff
        s_mov_b32 s66, {512*1792*2}
        s_and_b32 s69, s69, 0xffff
        s_mov_b32 s70, {512*1792*2}
        s_lshl_b32 s44, s52, 3
        s_lshl_b32 s53, s{S_W}, 1
        s_add_u32 s44, s44, s53
        s_mul_i32 s46, s51, {4 * SLAB33}
        s_add_u32 s46, s46, {W13}
        s_lshl_b32 s54, s44, 10
        s_add_u32 s46, s46, s54
        s_mov_b32 s47, {SLAB33}
        s_mov_b32 s60, 0
        s_mov_b32 s61, 1024
        s_lshl_b32 s49, s51, 2
        s_add_u32 s49, s49, 48
        s_add_u32 s49, s49, s{S_W}
        s_lshl_b32 s49, s49, 9
        s_lshl_b32 s54, s52, 2
        s_add_u32 s49, s49, s54
        s_add_u32 s49, s49, {AUGP}
        v_lshrrev_b32 v136, 3, v{V_LANE}
        v_mul_u32_u24 v136, 3584, v136
        v_and_b32 v137, 7, v{V_LANE}
        v_lshlrev_b32 v137, 4, v137
        v_add_u32 v136, v136, v137
        s_mul_i32 s57, s44, {16 * 3584}
        s_lshl_b32 s54, s51, 7
        s_add_u32 s57, s57, s54
        """)
        for mtx, srd in ((0, 's[64:67]'), (1, 's[68:71]')):
            E.e('s_mov_b32 s59, s57')
            for q in range(4):
                E.e(f's_add_u32 m0, s58, {mtx * 4096 + q * 1024}')
                E.e('s_nop 0')
                E.e(f'buffer_load_dwordx4 v136, {srd}, s59 offen lds')
                if q < 3: E.e(f's_add_u32 s59, s59, {8 * 3584}')
        E.e('L_p_none:')
    def prep_finish(self):
        E = self.E
        W = 164
        X = list(range(140, 156))
        accs = [ACC[0], ACC[1], ACC[2], 140]
        E.e(f"""
        v_lshrrev_b32 v139, 5, v{V_LANE}
        v_lshlrev_b32 v139, 2, v139
        v_and_b32 v137, 15, v{V_LANE}
        v_lshrrev_b32 v137, 2, v137
        v_add_u32 v139, v139, v137           ; 4*hf + r
        v_lshrrev_b32 v137, 4, v{V_LANE}
        v_and_b32 v137, 1, v137
        v_and_b32 v135, 3, v{V_LANE}
        v_lshlrev_b32 v135, 3, v135          ; c*8
        v_lshlrev_b32 v138, 6, v139
        v_lshlrev_b32 v134, 5, v137
        v_add_u32 v138, v138, v134
        v_add_u32 v138, v138, v135
        v_add_u32 v138, s58, v138
        v_lshlrev_b32 v139, 7, v139
        v_lshlrev_b32 v134, 12, v137
        v_add_u32 v139, v139, v134
        v_add_u32 v139, v139, v135
        v_add_u32 v139, s58, v139            ; w1 / w3 image
        s_lshl_b32 s40, s{S_C}, 2
        s_add_u32 s40, s40, s{S_SBW}
        s_lshl_b32 s50, s40, 12
        s_lshl_b32 s40, s40, 15
        s_lshl_b32 s51, s{S_CB}, 2
        s_lshl_b32 s52, s{S_KH}, 1
        s_add_u32 s51, s51, s52
        s_lshl_b32 s51, s51, 10
        s_add_u32 s40, s40, s51
        s_add_u32 s40, s40, {XF0}
        s_lshr_b32 s51, s{S_CB}, 1
        s_lshl_b32 s51, s51, 10
        s_add_u32 s50, s50, s51
        s_and_b32 s51, s{S_CB}, 1
        s_lshl_b32 s51, s51, 9
        s_add_u32 s50, s50, s51
        s_lshl_b32 s51, s{S_KH}, 3
        s_add_u32 s50, s50, s51
        s_add_u32 s50, s50, {ST0}
        v_lshlrev_b32 v156, 1, v{V_S8}
        v_lshlrev_b32 v157, 2, v{V_LANE}
        """)
        xfirst = self.opt.get('xfirst', True) and not self.opt.get('jobfirst')
        def xpart():
            E.e(f'v_readfirstlane_b32 s{S_E}, v{T + 71}')
            E.e(f'buffer_store_dwordx4 v[{RES}:{RES + 3}], v{V_L16}, s[4:7], s40 offen sc1')
            E.e(f'buffer_store_dwordx4 v[{RES + 4}:{RES + 7}], v{V_L16}, s[4:7], s40 offen offset:1024 sc1')
            XX = list(range(140, 156))
            for i in range(8):
                E.e(f'v_lshlrev_b32 v{XX[2*i]}, 16, v{RES+i}')
                E.e(f'v_and_b32 v{XX[2*i+1]}, 0xffff0000, v{RES+i}')
            stats32(E, XX, (196, 197, 198, 199), 200, 201)
            E.e('buffer_store_dwordx2 v[200:201], v156, s[4:7], s50 offen sc1')
        if xfirst:
            Lw = E.label('xw'); Lw2 = E.label('xw2')
            ncode = 1 if self.opt.get('codepf', False) else 0
            E.e(f's_cmp_eq_u32 s45, 0'); E.e(f's_cbranch_scc1 {Lw}')
            E.e(f's_waitcnt vmcnt({8 + ncode})'); E.e(f's_branch {Lw2}')
            E.place(Lw); E.e(f's_waitcnt vmcnt({ncode})'); E.place(Lw2)
            xpart()
            E.e('s_waitcnt vmcnt(3)')
            self.pstamp(2)
        else:
            E.e('s_waitcnt vmcnt(0)')
            self.pstamp(2)
            xpart()
        E.e(f"""
        s_cmp_eq_u32 s45, 0
        s_cbranch_scc1 L_p_now
        s_cmp_eq_u32 s45, 2
        s_cbranch_scc1 L_p_fB
        """)
        E.vm = []
        def body(vaddr, frs, nacc):
            for f, (o1, o2, t, k) in enumerate(frs):
                E.e(f'ds_read_b64_tr_b16 v[{W+4*f}:{W+4*f+1}], v{vaddr} offset:{o1}')
                E.e(f'ds_read_b64_tr_b16 v[{W+4*f+2}:{W+4*f+3}], v{vaddr} offset:{o2}')
                if f == 6: E.e('s_waitcnt lgkmcnt(6)')
            E.e('s_waitcnt lgkmcnt(0)')
            seen = set()
            for f, (o1, o2, t, k) in enumerate(frs):
                E.e(f's_mul_i32 s51, s47, {t}')
                E.e(f's_add_u32 s51, s51, s{60 + k}'); E.e('s_add_u32 s51, s51, s46')
                E.e(f'buffer_store_dwordx4 v[{W+4*f}:{W+4*f+3}], v{V_L16}, s[4:7], s51 offen sc1')
                a = accs[t]
                E.e(f'v_mfma_f32_32x32x16_bf16 v[{a}:{a+15}], v[{ONES}:{ONES+3}], v[{W+4*f}:{W+4*f+3}], ' + ('0' if t not in seen else f'v[{a}:{a+15}]'))
                seen.add(t)
            E.e('s_nop 15')
            E.e(f's_lshl_b32 s59, s{S_W}, 8')
            E.e('v_add_u32 v158, s59, v157')
            E.e(f'v_add_u32 v158, {L_XCH}, v158')
            for t in range(nacc): E.e(f'ds_write_b32 v158, v{accs[t]} offset:{t * 1024}')
            E.e('s_waitcnt lgkmcnt(0)')
        body(138, [(k * 2048 + t * 512, k * 2048 + t * 512 + 1024, t, k) for t in range(2) for k in range(4)], 2)
        E.e('s_branch L_p_now')
        E.e('L_p_fB:')
        body(139, [(k * 2048 + t * 32, k * 2048 + t * 32 + 1024, t, k) for t in range(4) for k in range(2)], 4)
        E.e(f"""
        L_p_now:
        s_barrier
        s_cmp_eq_u32 s49, 0
        s_cbranch_scc1 L_p_noaug
        s_cmp_eq_u32 s45, 2
        s_cbranch_scc1 L_p_augB
        s_cmp_ge_u32 s{S_W}, 2
        s_cbranch_scc1 L_p_noaug
        s_lshl_b32 s59, s{S_W}, 10
        s_mul_i32 s51, s{S_W}, {3 * 512}
        s_add_u32 s49, s49, s51
        s_branch L_p_augC
        L_p_augB:
        s_lshl_b32 s59, s{S_W}, 10
        L_p_augC:
        v_add_u32 v158, s59, v157
        v_add_u32 v158, {L_XCH}, v158
        ds_read_b32 v159, v158
        ds_read_b32 v160, v158 offset:256
        ds_read_b32 v161, v158 offset:512
        ds_read_b32 v162, v158 offset:768
        s_waitcnt lgkmcnt(0)
        v_add_f32 v159, v159, v160
        v_add_f32 v161, v161, v162
        v_add_f32 v160, v159, v161
        v_mov_b32 v161, 0
        s_cmp_eq_u32 s45, 2
        s_cbranch_scc1 L_p_augD
        buffer_store_dwordx2 v[160:161], v156, s[4:7], s49 offen sc1
        s_branch L_p_noaug
        L_p_augD:
        buffer_store_dword v160, v156, s[4:7], s49 offen sc1
        L_p_noaug:
        """)
        E.e(f's_add_u32 s{S_E}, s{S_E}, 1')
        E.e(f's_mul_i32 s{S_B}, s{S_E}, 0x9e3779b1')
        E.e(f's_and_b32 s{S_B}, s{S_B}, 0xfffffff0')
    def job_issue_params(self):
        E = self.E
        E.e("""
        s_mov_b32 s76, s45
        s_mov_b32 s77, s46
        s_mov_b32 s78, s47
        s_mov_b32 s79, s48
        s_mov_b32 s80, s49
        s_mov_b32 s81, s58
        """)
    def job_process(self):
        E = self.E; W = WF; accs = [ACC[0], ACC[1], ACC[2], 140]
        a1, a2, t0, t1, t2 = 116, 117, 118, 119, 120
        E.e(f"""
        s_cmp_eq_u32 s76, 0
        s_cbranch_scc1 L_p_now
        v_lshrrev_b32 v{a2}, 5, v{V_LANE}
        v_lshlrev_b32 v{a2}, 2, v{a2}
        v_and_b32 v{t0}, 15, v{V_LANE}
        v_lshrrev_b32 v{t0}, 2, v{t0}
        v_add_u32 v{a2}, v{a2}, v{t0}
        v_lshrrev_b32 v{t0}, 4, v{V_LANE}
        v_and_b32 v{t0}, 1, v{t0}
        v_and_b32 v{t1}, 3, v{V_LANE}
        v_lshlrev_b32 v{t1}, 3, v{t1}
        v_lshlrev_b32 v{a1}, 6, v{a2}
        v_lshlrev_b32 v{t2}, 5, v{t0}
        v_add_u32 v{a1}, v{a1}, v{t2}
        v_add_u32 v{a1}, v{a1}, v{t1}
        v_add_u32 v{a1}, s81, v{a1}
        v_lshlrev_b32 v{a2}, 7, v{a2}
        v_lshlrev_b32 v{t2}, 12, v{t0}
        v_add_u32 v{a2}, v{a2}, v{t2}
        v_add_u32 v{a2}, v{a2}, v{t1}
        v_add_u32 v{a2}, s81, v{a2}
        s_cmp_eq_u32 s76, 2
        s_cbranch_scc1 L_p_fB
        """)
        def body(vaddr, frs, nacc):
            for f, (o1, o2, t, k) in enumerate(frs):
                E.e(f'ds_read_b64_tr_b16 v[{W+4*f}:{W+4*f+1}], v{vaddr} offset:{o1}')
                E.e(f'ds_read_b64_tr_b16 v[{W+4*f+2}:{W+4*f+3}], v{vaddr} offset:{o2}')
                if f == 6: E.e('s_waitcnt lgkmcnt(6)')
            E.e('s_waitcnt lgkmcnt(0)')
            seen = set()
            for f, (o1, o2, t, k) in enumerate(frs):
                E.e(f's_mul_i32 s51, s78, {t}'); E.e(f's_mul_i32 s52, s79, {k}')
                E.e('s_add_u32 s51, s51, s52'); E.e('s_add_u32 s51, s51, s77')
                E.e(f'buffer_store_dwordx4 v[{W+4*f}:{W+4*f+3}], v{V_L16}, s[4:7], s51 offen sc1')
                if nacc == 4:
                    a = accs[t]
                    E.e(f'v_mfma_f32_32x32x16_bf16 v[{a}:{a+15}], v[{ONES}:{ONES+3}], v[{W+4*f}:{W+4*f+3}], ' + ('0' if t not in seen else f'v[{a}:{a+15}]'))
                    seen.add(t)
            if nacc == 4:
                E.e('s_nop 15')
                E.e(f's_lshl_b32 s59, s{S_W}, 8')
                E.e(f'v_add_u32 v{t0}, s59, v{A_FA}')
                E.e(f'v_add_u32 v{t0}, {L_XCH}, v{t0}')
                for t in range(nacc): E.e(f'ds_write_b32 v{t0}, v{accs[t]} offset:{t * 1024}')
                E.e('s_waitcnt lgkmcnt(0)')
        body(a1, [(k * 2048 + t * 512, k * 2048 + t * 512 + 1024, t, k) for t in range(2) for k in range(4)], 2)
        E.e('s_branch L_p_now')
        E.e('L_p_fB:')
        body(a2, [(k * 2048 + t * 32, k * 2048 + t * 32 + 1024, t, k) for t in range(4) for k in range(2)], 4)
        E.e(f"""
        L_p_now:
        s_barrier
        s_cmp_lg_u32 s76, 2
        s_cbranch_scc1 L_p_noaug
        s_lshl_b32 s59, s{S_W}, 10
        v_add_u32 v{t0}, s59, v{A_FA}
        v_add_u32 v{t0}, {L_XCH}, v{t0}
        ds_read_b32 v121, v{t0}
        ds_read_b32 v122, v{t0} offset:256
        ds_read_b32 v123, v{t0} offset:512
        ds_read_b32 v124, v{t0} offset:768
        s_waitcnt lgkmcnt(0)
        v_add_f32 v121, v121, v122
        v_add_f32 v123, v123, v124
        s_nop 0
        v_add_f32 v122, v121, v123
        s_nop 0
        buffer_store_dword v122, v{V_S8}, s[4:7], s80 offen sc1
        L_p_noaug:
        """)
    def prologue_raw(self, persist, issue_job):
        E = self.E
        E.e(f"""
        s_mov_b32 s72, s78
        s_and_b32 s73, s79, 0xffff
        s_mov_b32 s74, {512*1536*2}
        s_mov_b32 s75, 0x20000
        """)
        persist()
        E.e('s_waitcnt vmcnt(0)')
        self.pstamp(1)
        E.e(f'v_readfirstlane_b32 s{S_E}, v{T + 71}')
        E.e(f'buffer_store_dwordx4 v[{RES}:{RES + 3}], v{V_L16}, s[4:7], s{S_XD} offen sc1')
        E.e(f'buffer_store_dwordx4 v[{RES + 4}:{RES + 7}], v{V_L16}, s[4:7], s{S_XD} offen offset:1024 sc1')
        XX = list(range(140, 156))
        for i in range(8):
            E.e(f'v_lshlrev_b32 v{XX[2*i]}, 16, v{RES+i}')
            E.e(f'v_and_b32 v{XX[2*i+1]}, 0xffff0000, v{RES+i}')
        stats32(E, XX, (196, 197, 198, 199), 200, 201)
        E.e(f'buffer_store_dwordx2 v[200:201], v{V_S8}, s[4:7], s{S_SD} offen sc1')
        E.e(f's_add_u32 s{S_E}, s{S_E}, 1')
        E.e(f's_mul_i32 s{S_B}, s{S_E}, 0x9e3779b1')
        E.e(f's_and_b32 s{S_B}, s{S_B}, 0xfffffff0')
        E.e(f's_mov_b32 s{S_STEP}, s{S_B}')
        E.e(f's_add_u32 s{S_MODE + 3}, s{S_MODE + 3}, s{S_B}'); E.e(f's_add_u32 s{S_MODE + 3}, s{S_MODE + 3}, 1')
        E.vm = []
        for u in self.qkv_units(0, 0) + self.qkv_units(1, 1): u()
        issue_job()
        self.job_issue_params()
        E.e(f"""
        s_and_b32 s55, s{S_C}, 1
        s_lshl_b32 s56, s55, 1
        s_add_u32 s56, s56, s{S_R64}
        s_mul_i32 s53, s{S_KH}, {2560 if self.rawp() else 3072}
        s_mul_i32 s54, s{S_KH}, {1536 if self.rawp() else 1024}
        s_add_u32 s54, s54, {512 if self.rawp() else 1024}
        """)
        if self.rawp(): self.proj_srds()
        La = E.label('xs'); Lb = E.label('xs2')
        E.e(f"""
        s_cmp_eq_u32 s76, 0
        s_cbranch_scc1 {La}
        s_waitcnt vmcnt(24)
        s_branch {Lb}
        {La}:
        s_waitcnt vmcnt(16)
        {Lb}:
        """)
        self.pstamp(2)
        E.e('s_barrier')
        L = E.label('reg')
        E.e(f"""
        s_cmp_lg_u32 s{S_W}, 0
        s_cbranch_scc1 {L}
        s_lshl_b32 s45, s{S_C}, 7
        s_lshl_b32 s46, s{S_M}, 2
        s_add_u32 s45, s45, s46
        s_add_u32 s45, s45, {REG}
        v_mov_b32 v10, s{S_MODE + 3}
        v_mov_b32 v11, 0
        s_mov_b64 exec, 1
        buffer_store_dword v10, v11, s[4:7], s45 offen sc1
        s_mov_b64 exec, -1
        {L}:
        """)
        La = E.label('kv8'); Lc = E.label('kvd')
        E.e(f"""
        s_cmp_lg_u32 s76, 0
        s_cbranch_scc1 {La}
        s_waitcnt vmcnt(0)
        s_branch {Lc}
        {La}:
        s_waitcnt vmcnt(8)
        {Lc}:
        s_barrier
        """)
        E.vm = []
        self.pstamp(3)
        self.aug_local([(0, 0), (1, 1)])
        self.pstamp(4)
        L = E.label('pp')
        E.e(f"""
        s_cmp_lg_u32 s{S_W}, 0
        s_cbranch_scc1 {L}
        s_lshl_b32 s45, s{S_C}, 7
        s_add_u32 s45, s45, {REG}
        s_add_u32 s47, s{S_B}, 1
        """)
        self.poll(45, 47, 4)
        E.e(f"""
        v_cmp_ne_u32 vcc, s{S_MODE + 3}, v{V_T0}
        s_cmp_lg_u64 vcc, 0
        s_cselect_b32 s47, 1, 0
        v_mov_b32 v10, s47
        v_mov_b32 v11, {L_KVF + 2240}
        ds_write_b32 v11, v10
        s_waitcnt lgkmcnt(0)
        {L}:
        s_barrier
        v_mov_b32 v11, {L_KVF + 2240}
        ds_read_b32 v10, v11
        s_waitcnt lgkmcnt(0)
        v_readfirstlane_b32 s{S_MODE}, v10
        """)
        self.pstamp(5)
    def prep_publish(self):
        E = self.E; L = E.label('pp'); Lp = E.label('ppl'); Lt = E.label('ppt'); Lx = E.label('ppx')
        self.pstamp(3)
        E.e('s_waitcnt vmcnt(0)'); E.vm = []
        self.pstamp(4)
        E.e('s_barrier')
        E.e(f'''
        s_cmp_lg_u32 s{S_W}, 0
        s_cbranch_scc1 {L}
        s_lshl_b32 s45, s{S_C}, 7
        s_lshl_b32 s46, s{S_M}, 2
        s_add_u32 s45, s45, s46
        s_add_u32 s45, s45, {REG}
        s_lshl_b32 s46, s2, 6
        s_add_u32 s46, s46, {PF2}
        v_mov_b32 v10, s{S_MODE + 3}
        v_mov_b32 v11, 0
        s_add_u32 s47, s{S_B}, 1
        v_mov_b32 v12, s47
        s_mov_b64 exec, 1
        buffer_store_dword v10, v11, s[4:7], s45 offen sc1
        buffer_store_dword v12, v11, s[4:7], s46 offen sc1
        s_mov_b64 exec, -1
        ; per-lane flag address: 0..15 cluster members, 16..21 q/k/v jobs, 22..23 wo, 24..35 w1/w3, 36..42 w2
        s_lshl_b32 s45, s{S_C}, 7
        s_add_u32 s45, s45, {REG}
        v_lshlrev_b32 v13, 2, v{V_LANE}
        v_add_u32 v13, s45, v13
        v_subrev_u32 v15, 16, v{V_LANE}
        v_lshrrev_b32 v14, 1, v15
        v_lshlrev_b32 v14, 4, v14
        v_and_b32 v15, 1, v15
        v_add_u32 v14, v14, v15
        s_lshr_b32 s45, s{S_M}, 1
        s_lshl_b32 s45, s45, 1
        v_add_u32 v14, s45, v14
        s_lshl_b32 s45, s{S_CB}, 1
        s_add_u32 s45, s45, 160-22
        v_add_u32 v15, s45, v{V_LANE}
        v_cmp_le_u32 vcc, 22, v{V_LANE}
        s_nop 1
        v_cndmask_b32 v14, v14, v15, vcc
        s_mul_i32 s45, s{S_M}, 7
        s_lshr_b32 s45, s45, 2
        s_lshl_b32 s45, s45, 2
        s_add_u32 s45, s45, 48-24
        v_add_u32 v15, s45, v{V_LANE}
        v_min_u32 v15, 159, v15
        v_cmp_le_u32 vcc, 24, v{V_LANE}
        s_nop 1
        v_cndmask_b32 v14, v14, v15, vcc
        s_mul_i32 s45, s{S_CB}, 7
        s_add_u32 s45, s45, 176-36
        v_add_u32 v15, s45, v{V_LANE}
        v_cmp_le_u32 vcc, 36, v{V_LANE}
        s_nop 1
        v_cndmask_b32 v14, v14, v15, vcc
        v_lshlrev_b32 v14, 6, v14
        v_add_u32 v14, {PF2}, v14
        v_cmp_le_u32 vcc, 16, v{V_LANE}
        s_nop 1
        v_cndmask_b32 v13, v13, v14, vcc
        s_mov_b32 s62, -1
        s_mov_b32 s63, 0x7ff
        s_mov_b64 exec, s[62:63]
        s_mov_b32 s46, 0
        {Lp}:
        s_add_u32 s46, s46, 1
        s_cmp_gt_u32 s46, {self.spin}
        s_cbranch_scc1 {Lt}
        buffer_load_dword v{V_T0}, v13, s[4:7], 0 offen sc1
        s_waitcnt vmcnt(0)
        v_subrev_u32 v10, s47, v{V_T0}
        v_cmp_le_u32 vcc, 8, v10
        s_cbranch_vccz {Lx}
        {'s_sleep %d' % self.opt['psleep'] if self.opt.get('psleep') else ''}
        s_branch {Lp}
        {Lt}:
        s_mov_b32 s{S_MODE + 2}, 4
        {Lx}:
        s_mov_b32 s62, 0xffff
        s_mov_b32 s63, 0
        s_mov_b64 exec, s[62:63]
        v_cmp_ne_u32 vcc, s{S_MODE + 3}, v{V_T0}
        s_mov_b64 exec, -1
        s_cmp_lg_u64 vcc, 0
        s_cselect_b32 s47, 1, 0
        v_mov_b32 v10, s47
        v_mov_b32 v11, {L_KVF + 2240}
        ds_write_b32 v11, v10
        s_waitcnt lgkmcnt(0)
        {L}:
        s_barrier
        v_mov_b32 v11, {L_KVF + 2240}
        ds_read_b32 v10, v11
        s_waitcnt lgkmcnt(0)
        v_readfirstlane_b32 s{S_MODE}, v10
        ''')
        self.pstamp(5)
    def kouter(self, v0, v1, acc0, acc1, transposed, F, tail_units, aug, fine=None, pre_wait=None, tr=False, pre_hook=None):
        E = self.E; D = self.opt.get('D', 10)
        xq = self.frag_units(32, 0, 'x', base=lambda: (E.e(f's_lshl_b32 s44, s{S_W}, 15'), E.e(f's_add_u32 s44, s44, s{S_XF}')))
        sq = self.stats_units()
        order = xq[:4] + sq + xq[4:]
        npro = min(len(order), D + 4)
        def rd(i):
            kb, j = divmod(i, 2)
            if tr: self.rd_tr(self.wfrag(i), v0 if j == 0 else v1, kb, f'w{i}')
            else: E.ds(f'ds_read_b128 v[{self.wfrag(i)}:{self.wfrag(i) + 3}], v{v0 if j == 0 else v1} offset:{kb * 1024}', f'w{i}')
        if pre_wait:
            for u in order[:npro]: u()
            if self.opt.get('single', True) and not self.raw(): self.aug_finish()
            if pre_hook: pre_hook(npro)
            for tag in pre_wait:
                if tag in E.vm: E.wait_vm(tag)
            E.e('s_barrier')
            if pre_hook: pre_hook(None)
            for i in range(4): rd(i)
        else:
            for u in order[:2]: u()
            for i in range(4): rd(i)
            for u in order[2:npro]: u()
        q = order[npro:] + list(tail_units)
        ntail = len(tail_units)
        bal = self.opt.get('bal', True) and not tr
        for kb in range(33):
            def pump_vm():
                if q:
                    n = 1 if len(q) > ntail else self.opt.get('tailrate', 2)
                    for _ in range(min(n, len(q))): q.pop(0)()
            if tr and kb < 32: E.wait_lg(f'w{2 * kb + 1}')
            if not bal:
                if kb + 2 < 32: rd(2 * kb + 4); rd(2 * kb + 5)
            if kb == 30:
                for j in range(2):
                    E.e(f'v_mov_b32 v{AQ[j]}, v{aug[j]}'); E.e(f'v_mov_b32 v{AQ[j] + 1}, v{aug[j]}')
            if not bal: pump_vm()
            if kb < 32:
                if self.opt.get('w2x') and kb >= 2:
                    if kb % 2 == 0: E.wait_vm(f'x{min(kb + 1, 31)}')
                else: E.wait_vm(f'x{kb}')
            if fine and kb in (0, 8, 16, 24): self.stamp(12 + kb // 8)
            if kb == 32: F.flush(); E.e('s_nop 1')
            if kb < 32: E.wait_lg(f'w{2 * kb + 1}')
            X = f'a[{4 * kb}:{4 * kb + 3}]' if kb < 32 else f'v[{MF}:{MF + 3}]'
            for j, acc in ((0, acc0), (1, acc1)):
                w = self.wfrag(2 * kb + j) if kb < 32 else AQ[j]; W = f'v[{w}:{w + 3}]'
                C = '0' if kb == 0 else f'v[{acc}:{acc + 15}]'
                A, B = (W, X) if transposed else (X, W)
                E.e(f'v_mfma_f32_32x32x16_bf16 v[{acc}:{acc + 15}], {A}, {B}, {C}')
                if bal:
                    if kb + 2 < 32: rd(2 * kb + 4 + j)
                    if j == 1: pump_vm()
                    if kb >= 3 and not self.opt.get('nofill'): F.pump(self.opt.get('f0', 3) if j == 0 else self.opt.get('f1', 1))
                elif kb >= 3 and not self.opt.get('nofill'): F.pump(self.opt.get('fpump', 2))
        for u in q: u()
    def wfrag(self, idx, ring=6): return (WF if ring == 6 else WF8) + 4 * (idx % ring)
    def phase_qkv(self):
        E = self.E; F = Fill(E)
        E.c('==== QKV ====')
        for (p, pn, reg) in self.pinv():
            for it in self.copy_out_items(p, reg): F.add(it, lambda: None)
        F.add(*self.stats_items(+1))
        R, RL = T + 8, T + 24
        F.add(lambda: E.ds(f'ds_write_b32 v{A_RSW}, v{V_R}', 'rs'), lambda: None,
              lambda: E.ds(f'ds_write_b32 v{A_RSW}, v{V_C1} offset:128', 'rs'), lambda: None)
        for i in range(4):
            F.add(lambda i=i: E.ds(f'ds_read_b128 v[{R + 4 * i}:{R + 4 * i + 3}], v{A_RSR} offset:{32 * i}', 'r'), lambda: None)
            F.add(lambda i=i: E.ds(f'ds_read_b128 v[{RL + 4 * i}:{RL + 4 * i + 3}], v{A_RSR} offset:{128 + 32 * i}', 'r'), lambda: None)
        F.add(f'v_mov_b32 v{T + 2}, {EPS_PHI:#x}', f'v_and_b32 v{T + 4}, 16, v{V_LANE}')
        a_k, a_v, a_q = ACC
        vK, vV, vQ = V_SLOT + 0, V_SLOT + 1, V_SLOT + 2
        raw = self.raw()
        if raw:
            vK, vV, vQ = T + 5, T + 6, T + 7
            for i, r_ in enumerate((vK, vV, vQ)): E.e(f'v_add_u32 v{r_}, s{S_SLOT + i}, v{V_TR}')
            qw = self.qkv_units(2, 2) + self.pf_site('qkvtail')
            def hook(n):
                L = E.label('pf2')
                E.e(f's_cmp_lg_u32 s{S_L}, 0'); E.e(f's_cbranch_scc1 {L}')
                if n is not None: E.e(f's_waitcnt vmcnt({n})')
                else:
                    E.e(f"""
                    s_cmp_lg_u32 s{S_W}, 0
                    s_cbranch_scc1 {L}
                    s_lshl_b32 s46, s2, 6
                    s_add_u32 s46, s46, {PF2}
                    s_add_u32 s47, s{S_B}, 1
                    v_mov_b32 v{V_T0 + 1}, s47
                    v_mov_b32 v{V_T0 + 2}, 0
                    s_mov_b64 exec, 1
                    buffer_store_dword v{V_T0 + 1}, v{V_T0 + 2}, s[4:7], s46 offen sc1
                    s_mov_b64 exec, -1
                    """)
                E.place(L)
            self.kouter(vK, vV, a_k, a_v, False, F, qw, (AUG, AUG + 1), fine=self.opt.get('fine_q'), pre_wait=['slab0', 'slab1'], tr=True)
        else:
            qw = self.dma_units(2, S_WQ, 2 * SLAB33, 33) + self.dma_units(3, S_WO, 0, 32) + self.pf_site('qkvtail')
            if 'o' in self.opt.get('pre', ''): qw = self.preread_units(S_OD, (0, 1024)) + qw
            self.kouter(vK, vV, a_k, a_v, False, F, qw, (AUG, AUG + 1), fine=self.opt.get('fine_q'), pre_wait=['slab0', 'slab1'])
        if self.opt.get('fine_q'): self.stamp(1)
        PK, PV = WF, WF + 8
        X1, X2 = ST, ST + 8
        D = a_q
        D2 = 240 - 0 if False else WF + 24
        E.e(f'v_cmp_eq_u32 vcc, 0, v{T + 4}')
        E.wait_lg_all()
        E.nop(11)
        sT = self.staged('T')
        t1s, t2s, t3s = self.opt.get('t1s', 'gat'), self.opt.get('t2s', 'wo'), self.opt.get('t3s', 'wo')
        def stg(site):
            us = []
            if sT:
                for nm, where, areg in ((1, t1s, 128), (2, t2s, 160), (3, t3s, 192)):
                    if where == site: us += self.stage_units(S_W13, nm * SLAB33, areg)
            return us
        self._stg = stg
        E.inject(stg('kvepi'), 10)
        for h in range(2):
            rr = range(8 * h, 8 * h + 8)
            for r in rr: E.e(f'v_mul_f32 v{X2 + r % 8}, v{a_k + r}, v{RL + r}')
            for r in rr: E.e(f'v_fma_f32 v{X1 + r % 8}, v{a_k + r}, v{R + r}, v{T + 2}')
            for r in rr: E.e(f'v_exp_f32 v{X2 + r % 8}, v{X2 + r % 8} clamp')
            for r in rr: E.e(f'v_max_f32 v{X1 + r % 8}, v{X1 + r % 8}, v{T + 2}')
            for r in rr: E.e(f'v_add_f32 v{X1 + r % 8}, v{X1 + r % 8}, v{X2 + r % 8}')
            for r in rr: E.e(f'v_mul_f32 v{X2 + r % 8}, v{a_v + r}, v{R + r}')
            for r in range(0, 8, 2): E.e(f'v_cvt_pk_bf16_f32 v{PK + 4 * h + r // 2}, v{X1 + r}, v{X1 + r + 1}')
            for r in range(0, 8, 2): E.e(f'v_cvt_pk_bf16_f32 v{PV + 4 * h + r // 2}, v{X2 + r}, v{X2 + r + 1}')
            E.nop(2)
            C1 = '0' if h == 0 else f'v[{D}:{D + 15}]'; C2 = '0' if h == 0 else f'v[{D2}:{D2 + 15}]'
            E.e(f'v_mfma_f32_32x32x16_bf16 v[{D}:{D + 15}], v[{PK + 4 * h}:{PK + 4 * h + 3}], v[{PV + 4 * h}:{PV + 4 * h + 3}], {C1}')
            E.e(f'v_mfma_f32_32x32x16_bf16 v[{D2}:{D2 + 15}], v[{PK + 4 * h}:{PK + 4 * h + 3}], v[{ONES}:{ONES + 3}], {C2}')
        E.inject_off()
        E.e(f"""
        s_cmp_eq_u32 s{S_W}, 2
        s_cselect_b32 s60, 0xff, -1
        s_cselect_b32 s61, 0, -1
        s_mov_b32 s62, 1
        s_mov_b32 s63, 1
        v_add_u32 v{T + 1}, {L_KVS}, v{A_RED}
        s_add_u32 s49, s{S_B}, 8
        v_mov_b32 v{V_T0 + 1}, s49
        v_mov_b32 v{V_T0 + 2}, 0
        """)
        E.nop(4)
        for r in range(8): E.e(f'v_cndmask_b32 v{X1 + r}, v{D + 8 + r}, v{D + r}, vcc')
        E.ds(f'ds_write_b128 v{A_KVW}, v[{X1}:{X1 + 3}]', 'kv')
        E.ds(f'ds_write_b128 v{A_KVW}, v[{X1 + 4}:{X1 + 7}] offset:16', 'kv')
        E.e('s_mov_b64 exec, s[62:63]')
        for q in range(4):
            E.ds(f'ds_write_b128 v{A_ZW}, v[{D2 + 4 * q}:{D2 + 4 * q + 3}] offset:{2048 + (q // 2) * 64 + (q % 2) * 16}', 'kv')
        E.e('s_mov_b64 exec, -1')
        E.wait_vm_all()
        E.wait_lg_all()
        if self.opt.get('fine_q'): self.stamp(24)
        E.barrier()
        Lskip = E.label('kvp')
        E.e(f"""
        s_cmp_ge_u32 s{S_W}, 3
        s_cbranch_scc1 {Lskip}
        s_mov_b64 exec, s[60:61]
        ds_read_b128 v[{X1}:{X1 + 3}], v{T + 1}
        ds_read_b128 v[{X1 + 4}:{X1 + 7}], v{T + 1} offset:2304
        ds_read_b128 v[{X2}:{X2 + 3}], v{T + 1} offset:4608
        ds_read_b128 v[{X2 + 4}:{X2 + 7}], v{T + 1} offset:6912
        s_waitcnt lgkmcnt(2)
        """)
        for j in range(4): E.e(f'v_add_f32 v{X1 + j}, v{X1 + j}, v{X1 + 4 + j}')
        E.e('s_waitcnt lgkmcnt(0)')
        for j in range(4): E.e(f'v_add_f32 v{X2 + j}, v{X2 + j}, v{X2 + 4 + j}')
        for j in range(4): E.e(f'v_add_f32 v{X1 + j}, v{X1 + j}, v{X2 + j}')
        E.e(f'buffer_store_dwordx4 v[{X1}:{X1 + 3}], v{A_RED}, s[4:7], s{S_KP} offen sc1')
        E.e('s_mov_b64 exec, -1')
        E.place(Lskip)
        def rq(kb):
            if raw: self.rd_tr(self.wfrag(kb), vQ, kb, f'w{kb}')
            else: E.ds(f'ds_read_b128 v[{self.wfrag(kb)}:{self.wfrag(kb) + 3}], v{vQ} offset:{kb * 1024}', f'w{kb}')
        if not raw:
            for kb in range(4): rq(kb)
        Lf = E.label('fa')
        E.e(f"""
        s_cmp_ge_u32 s{S_W}, 3
        s_cbranch_scc1 {Lf}
        s_waitcnt vmcnt(0)
        s_mov_b64 exec, 1
        buffer_store_dword v{V_T0 + 1}, v{V_T0 + 2}, s[4:7], s{S_FAW} offen sc1
        s_mov_b64 exec, -1
        {Lf}:
        """)
        if self.opt.get('fine_q'): self.stamp(25)
        self.stamp(2)
        if raw: self.layer0_block()
        if self.ts or raw:
            for kb in range(4): rq(kb)
        dq = self.dma_units(4, S_WO, 32 * 1024, 32) + self.dma_units(5, S_W13, 0, 33) + self.pf_site('qwin')
        if raw: dq = self.dma_units(3, S_WO, 0, 32) + dq
        late = self.opt.get('wt0', 'q') == 'gat'
        dq2 = []
        if late: dq2, dq = dq, []
        if self.opt.get('wt0', 'q') == 'split':
            dq2 = [u for u in dq if u.tag == 'slab5']; dq = [u for u in dq if u.tag != 'slab5']
        dq += stg('q'); dq2 += stg('gat')
        t1gat = self.opt.get('t1site', 'wo') == 'gat' and not sT
        if t1gat: dq2 += self.dma_units(6, S_W13, SLAB33, 33)
        for kb in range(33):
            if kb + 4 < 32: rq(kb + 4)
            if kb == 28: E.e(f'v_mov_b32 v{AQ[0]}, v{AUG + 2}'); E.e(f'v_mov_b32 v{AQ[0] + 1}, v{AUG + 2}')
            if kb % 2 == 0 and kb < 32: E.wait_lg(f'w{kb + 1}')
            B = f'a[{4 * kb}:{4 * kb + 3}]' if kb < 32 else f'v[{MF}:{MF + 3}]'
            w = self.wfrag(kb) if kb < 32 else AQ[0]; C = '0' if kb == 0 else f'v[{a_q}:{a_q + 15}]'
            E.e(f'v_mfma_f32_32x32x16_bf16 v[{a_q}:{a_q + 15}], v[{w}:{w + 3}], {B}, {C}')
            if dq and kb % 2 == 0: dq.pop(0)()
        for u in dq: u()
        if t1gat:
            E.wait_lg_all(); E.e('s_barrier')
        self.stamp(3)
        GQ = [T + 8 + 4 * i for i in range(8)] + [WF + 4 * i for i in range(8)]
        Lg = E.label('gat'); Lr = E.label('regchk')
        E.e(f"""
        s_mov_b32 s62, 0x77777777
        s_mov_b32 s63, 0x77777777
        s_cmp_ge_u32 s{S_W}, 3
        s_cbranch_scc1 {Lg}
        s_cmp_lg_u32 s{S_W}, 0
        s_cbranch_scc1 {Lr}
        s_cmp_lg_u32 s{S_L}, {99 if self.opt.get('single', True) else 0}
        s_cbranch_scc1 {Lr}
        s_lshl_b32 s45, s{S_C}, 7
        s_add_u32 s45, s45, {REG}
        s_add_u32 s47, s{S_B}, 1
        """)
        self.poll(45, 47, 2)
        E.e(f"""
        v_cmp_ne_u32 vcc, s{S_MODE + 3}, v{V_T0}
        s_cmp_lg_u64 vcc, 0
        s_cselect_b32 s47, 1, 0
        v_mov_b32 v{V_T0 + 1}, s47
        v_mov_b32 v{V_T0 + 2}, {L_KVF + 2240}
        ds_write_b32 v{V_T0 + 2}, v{V_T0 + 1}
        s_waitcnt lgkmcnt(0)
        {Lr}:
        """)
        Lp = E.label('gp'); Lx = E.label('gpx'); Lt = E.label('gpt')
        E.e(f"""
        s_mov_b32 s46, 0
        {Lp}:
        s_add_u32 s46, s46, 1
        s_cmp_gt_u32 s46, {self.spin}
        s_cbranch_scc1 {Lt}
        buffer_load_dword v{V_T0}, v{A_FA}, s[4:7], s{S_FAR} offen sc1
        s_waitcnt vmcnt(0)
        v_cmp_ne_u32 vcc, s49, v{V_T0}
        s_nop 1
        s_and_b64 vcc, vcc, s[62:63]
        s_cbranch_scc1 {Lp}
        s_branch {Lx}
        {Lt}:
        s_mov_b32 s{S_MODE + 2}, 3
        {Lx}:
        s_mov_b64 exec, s[60:61]
        s_mov_b32 s45, s{S_KG}
        """)
        for c in range(16):
            E.e(f'buffer_load_dwordx4 v[{GQ[c]}:{GQ[c] + 3}], v{A_RED}, s[4:7], s45 offen sc1')
            if c < 15: E.e(f's_add_u32 s45, s45, {KVP_STRIDE}')
        E.e('s_mov_b64 exec, -1')
        E.place(Lg)
        E.vm = []
        self.stamp(4)
        Y1, Y2, EP = ST, ST + 8, V_T0 + 3
        E.e(f'v_mov_b32 v{EP}, {EPS_PHI:#x}')
        E.nop(8)
        n2 = len(dq2)
        E.inject(dq2, 5)
        for h in range(2):
            rr = range(8 * h, 8 * h + 8)
            for r in rr: E.e(f'v_mul_f32 v{Y2 + r % 8}, v{a_q + r}, v{V_C1}')
            for r in rr: E.e(f'v_fma_f32 v{Y1 + r % 8}, v{a_q + r}, v{V_R}, v{EP}')
            for r in rr: E.e(f'v_exp_f32 v{Y2 + r % 8}, v{Y2 + r % 8} clamp')
            for r in rr: E.e(f'v_max_f32 v{Y1 + r % 8}, v{Y1 + r % 8}, v{EP}')
            for r in rr: E.e(f'v_add_f32 v{Y1 + r % 8}, v{Y1 + r % 8}, v{Y2 + r % 8}')
            for r in range(0, 8, 2): E.e(f'v_cvt_pk_bf16_f32 v{PQ + 4 * h + r // 2}, v{Y1 + r}, v{Y1 + r + 1}')
        E.inject_off()
        self._vm_after_gat = list(E.vm)
        Lg2 = E.label('gat2')
        E.e(f"""
        s_cmp_ge_u32 s{S_W}, 3
        s_cbranch_scc1 {Lg2}
        s_mov_b64 exec, s[60:61]
        v_add_u32 v{T + 1}, {L_KVF}, v{A_RED}
        """)
        for half in range(2):
            E.e(f's_waitcnt vmcnt({n2 + (8 if half == 0 else 0)})')
            for lv, (x, y) in enumerate(((0, 1), (2, 3), (4, 5), (6, 7), (0, 2), (4, 6), (0, 4))):
                for j in range(4): E.e(f'v_add_f32 v{GQ[8 * half + x] + j}, v{GQ[8 * half + x] + j}, v{GQ[8 * half + y] + j}')
        for j in range(4): E.e(f'v_add_f32 v{GQ[0] + j}, v{GQ[0] + j}, v{GQ[8] + j}')
        E.e(f'ds_write_b128 v{T + 1}, v[{GQ[0]}:{GQ[0] + 3}]')
        E.e('s_mov_b64 exec, -1')
        E.place(Lg2)
        E.e('s_waitcnt lgkmcnt(0)' if (late or n2) else 's_waitcnt vmcnt(0) lgkmcnt(0)')
        if n2: E.vm = list(self._vm_after_gat)
        for u in self.pf_site('gat'): u()
        E.barrier()
        for h, ad in ((0, A_KZ0), (1, A_KZ1)):
            E.ds(f'ds_read_b128 v[{X1 + 8 * h}:{X1 + 8 * h + 3}], v{ad}', 'kz')
            E.ds(f'ds_read_b128 v[{X1 + 8 * h + 4}:{X1 + 8 * h + 7}], v{ad} offset:16', 'kz')
        Lm = E.label('mode')
        E.e(f"""
        s_cmp_lg_u32 s{S_L}, {99 if self.opt.get('single', True) else 0}
        s_cbranch_scc1 {Lm}
        v_mov_b32 v{V_T0 + 2}, {L_KVF + 2240}
        ds_read_b32 v{V_T0 + 1}, v{V_T0 + 2}
        s_waitcnt lgkmcnt(0)
        v_readfirstlane_b32 s{S_MODE}, v{V_T0 + 1}
        {Lm}:
        """)
        KZ = PK
        E.wait_lg('kz') if False else None
        E.e('s_waitcnt lgkmcnt(2)')
        for r in range(4): E.e(f'v_cvt_pk_bf16_f32 v{KZ + r}, v{X1 + 2 * r}, v{X1 + 2 * r + 1}')
        E.e('s_waitcnt lgkmcnt(0)'); E.lg = []
        for r in range(4): E.e(f'v_cvt_pk_bf16_f32 v{KZ + 4 + r}, v{X1 + 8 + 2 * r}, v{X1 + 8 + 2 * r + 1}')
        E.nop(1)
        for h, acc in ((0, a_k), (1, a_v)):
            E.e(f'v_mfma_f32_32x32x16_bf16 v[{acc}:{acc + 15}], v[{KZ + 4 * h}:{KZ + 4 * h + 3}], v[{PQ + 4 * h}:{PQ + 4 * h + 3}], 0')
        E.nop(11)
        OFR = PV
        for h, acc in ((0, a_k), (1, a_v)):
            E.e(f'v_add_f32 v{T + h}, v{acc + 8}, v{EP}')
        for h in range(2): E.e(f'v_rcp_f32 v{T + h}, v{T + h}')
        E.e('s_nop 0')
        for h, acc in ((0, a_k), (1, a_v)):
            for r in range(8): E.e(f'v_mul_f32 v{X1 + 8 * h + r}, v{acc + r}, v{T + h}')
            for r in range(4): E.e(f'v_cvt_pk_bf16_f32 v{OFR + 4 * h + r}, v{X1 + 8 * h + 2 * r}, v{X1 + 8 * h + 2 * r + 1}')
            self.store_act([f'buffer_store_dwordx4 v[{OFR + 4 * h}:{OFR + 4 * h + 3}], v{V_L16}, s[4:7], s{S_OD} offen offset:{1024 * h}'], 'o')
        for u in self.pf_site('ostore'): u()
        self.pint_copy_in(6)
        if sT:
            for it in self.unstage_items(6, 128, T + 8): it()
    def phase_proj(self, name, nsteps, act_base_imm, act_stride_sb, p0, src_sreg, dma_plan, out_x, out_st, last_check):
        E = self.E; F = Fill(E)
        E.c(f'==== {name} ====')
        accM, accO = ACC[0], ACC[1]
        E.e(f'''
        s_lshl_b32 s44, s{S_C}, 2
        s_add_u32 s44, s44, s{S_SBW}
        s_mul_i32 s44, s44, {act_stride_sb}
        s_mul_i32 s45, s{S_KH}, {nsteps * 1024}
        s_add_u32 s44, s44, s45
        s_add_u32 s44, s44, {LB(0) + act_base_imm}
        ''')
        D = self.opt.get('D2', 10) if nsteps != 16 else self.opt.get('Dwo', 10)
        early = self.opt.get('earlyd', False) and nsteps == 56
        if early:
            E.e('s_mov_b32 s50, s44')
            aq = []
            for j in range(56):
                q, t = (j // 5, j % 5) if j < 40 else ((j - 40) // 2, 5 + (j - 40) % 2)
                def u(j=j, i=7 * q + t):
                    ar = 4 * (j % 32)
                    E.e(f's_add_u32 s44, s50, {i * 1024}')
                    E.vmem(f'buffer_load_dwordx4 a[{ar}:{ar + 3}], v{V_L16}, s[4:7], s44 offen sc1', f'h{j}')
                aq.append(u)
            if self.noact: aq = []
        else: aq = self.frag_units(nsteps, 0, 'h')
        pairs = [(T, T + 1), (T + 2, T + 3)]
        def setpair(sl):
            a, b = pairs[sl % 2]; p = p0 + sl
            if self.rawp():
                return [f'v_add_u32 v{b}, s{S_SLOT + p % 4}, v{V_TR}', f'v_add_u32 v{a}, s53, v{b}', f'v_add_u32 v{b}, s54, v{b}']
            return [f'v_add_u32 v{a}, s53, v{V_SLOT + p % 4}', f'v_add_u32 v{b}, s54, v{V_SLOT + p % 4}']
        for x in setpair(0): E.e(x)
        nsl = nsteps // 8
        def rd(i):
            sl, ii = divmod(i, 8); a, b = pairs[sl % 2]
            if self.rawp():
                for j, ad in ((0, a), (1, b)):
                    r_ = self.wfrag(2 * i + j)
                    E.ds(f'ds_read_b64_tr_b16 v[{r_}:{r_ + 1}], v{ad} offset:{ii * 4096}', f'w{2 * i + j}')
                    E.ds(f'ds_read_b64_tr_b16 v[{r_ + 2}:{r_ + 3}], v{ad} offset:{ii * 4096 + 1024}', f'w{2 * i + j}')
                return
            E.ds(f'ds_read_b128 v[{self.wfrag(2 * i)}:{self.wfrag(2 * i) + 3}], v{a} offset:{ii * 4096}', f'w{2 * i}')
            E.ds(f'ds_read_b128 v[{self.wfrag(2 * i + 1)}:{self.wfrag(2 * i + 1) + 3}], v{b} offset:{ii * 4096}', f'w{2 * i + 1}')
        def rd1(i, j):
            sl, ii = divmod(i, 8); ad = pairs[sl % 2][j]; r_ = self.wfrag(2 * i + j)
            E.ds(f'ds_read_b128 v[{r_}:{r_ + 3}], v{ad} offset:{ii * 4096}', f'w{2 * i + j}')
        for u in aq[:2]: u()
        rd(0); rd(1)
        nfirst = self.opt.get('d2st', D) if early else D
        for u in aq[2:nfirst]: u()
        rest_pro = aq[nfirst:D]
        aq = aq[D:]
        if early:
            for t in (5, 6):
                H = T + 28 + 4 * (t - 5)
                E.e(f's_add_u32 s51, s{S_HD}, {t * 1024}')
                self.store_act([f'buffer_store_dwordx4 v[{H}:{H + 3}], v{V_L16}, s[4:7], s51 offen'], 'h', tag=f'sth{t}')
        for u in rest_pro: u()
        dq = []
        for (pp, sreg, imm, nfr) in dma_plan.get('start', []): dq += self.dma_units(pp, sreg, imm, nfr)
        dq += self.pf_site(name + 'start')
        if dma_plan.get('staged_T'): dq += self._stg('wo')
        usq = []
        if dma_plan.get('staged_W'): usq += self.unstage_items(15, 128, T + 4)
        for i in range(nsteps):
            sl, ii = divmod(i, 8)
            if ii == 0 and sl + 1 < nsl:
                for x in setpair(sl + 1): E.e(x)
            if ii == 6 and sl + 1 < nsl:
                need = f'slab{p0 + sl + 1}'
                assert not any(need == u.tag for u in dq), need
                if need in E.vm: E.wait_vm(need)
                if dma_plan.get('staged_W') and p0 + sl + 1 in (15, 16, 17, 18):
                    assert f'us{p0 + sl + 1}' in E.lg or not usq or True
                    E.wait_lg(f'us{p0 + sl + 1}')
                if early and sl == self.opt.get('d2pub', 1): E.wait_vm('sth6')
                E.e('s_barrier')
                if early and sl == self.opt.get('d2pub', 1): self.flag_store()
                if dma_plan.get('staged_W') and sl in (1, 2, 3):
                    assert not usq, (sl, len(usq))
                    usq += self.unstage_items(15 + sl, 128 + 32 * sl, T + 4)
                for (pp, sreg, imm, nfr) in dma_plan.get(sl, []): dq += self.dma_units(pp, sreg, imm, nfr)
                dq += self.pf_site(f'{name}{sl}')
            if ii == 6 and sl + 1 == nsl and nsteps == 16 and dma_plan.get('loopend'):
                E.e('s_barrier')
            if early and i == 24:
                E.vmem(f'buffer_load_dword v{V_T0}, v{V_FLAG}, s[4:7], s{S_FLOFF} offen sc1', 'd2')
            if early and i == 29:
                Lok = E.label('d2ok')
                E.wait_vm('d2')
                E.e(f'v_subrev_u32 v{V_T0 + 1}, s{S_STEP}, v{V_T0}')
                E.e(f'v_cmp_le_u32 vcc, 8, v{V_T0 + 1}')
                E.e(f's_cbranch_vccz {Lok}')
                self.poll(S_FLOFF, S_STEP, 6)
                E.place(Lok)
            balp = self.opt.get('bal', True) and not self.rawp()
            def vm_part():
                if aq: aq.pop(0)()
                rate = (self.opt.get('dmarate_wo', 0) if nsteps == 16 else self.opt.get('dmarate2', 1)) if aq else 2
                for _ in range(min(rate, len(dq))): dq.pop(0)()
            def us_part():
                for _ in range(min(len(usq), 2 if len(usq) == 9 else 1 if ii % 8 < 7 else 2)): usq.pop(0)()
            if self.rawp(): E.wait_lg(f'w{2 * i + 1}')
            if not balp:
                if i + 2 < nsteps: rd(i + 2)
                vm_part(); us_part()
            E.wait_vm(f'h{i}')
            if self.opt.get('fine_w2') and nsteps == 56 and i % 8 == 0: self.stamp(12 + i // 8 if i < 32 else 24 + (i - 32) // 8)
            E.wait_lg(f'w{2 * i + 1}')
            for j, acc in ((0, accM), (1, accO)):
                w = self.wfrag(2 * i + j); C = '0' if i == 0 else f'v[{acc}:{acc + 15}]'
                ai = 4 * (i % 32)
                E.e(f'v_mfma_f32_32x32x16_bf16 v[{acc}:{acc + 15}], v[{w}:{w + 3}], a[{ai}:{ai + 3}], {C}')
                if balp:
                    if i + 2 < nsteps: rd1(i + 2, j)
                    if self.opt.get('usgap', 0) == 1:
                        if j == 0: vm_part()
                        else: us_part()
                    else:
                        if j == 0: us_part()
                        else: vm_part()
        assert not usq
        eq = []
        for (pp, sreg, imm, nfr) in dma_plan.get('loopend', []): eq += self.dma_units(pp, sreg, imm, nfr)
        eq += self.pf_site(name + 'end')
        for u in dq: u()
        if self.opt.get('fine_w2') and nsteps == 56: self.stamp(27)
        for _ in range(min(len(eq), self.opt.get('pre_x', 4))): eq.pop(0)()
        U = T + 8
        for i in range(6):
            E.e(f'v_lshlrev_b32 v{U + 2 * i}, 16, v{RES + i}')
            E.e(f'v_and_b32 v{U + 2 * i + 1}, 0xffff0000, v{RES + i}')
        for q in range(4): E.ds(f'ds_write_b128 v{A_XW}, v[{accO + 4 * q}:{accO + 4 * q + 3}] offset:{1024 * q}', 'x')
        for i in range(6, 8):
            E.e(f'v_lshlrev_b32 v{U + 2 * i}, 16, v{RES + i}')
            E.e(f'v_and_b32 v{U + 2 * i + 1}, 0xffff0000, v{RES + i}')
        for r in range(16): E.e(f'v_add_f32 v{U + r}, v{U + r}, v{accM + r}')
        E.wait_lg_all()
        E.barrier()
        X = ACC[2]
        for q in range(4): E.ds(f'ds_read_b128 v[{X + 4 * q}:{X + 4 * q + 3}], v{A_XR} offset:{1024 * q}', f'x{q}')
        for (pp, sreg, imm, nfr) in dma_plan.get('end', []): eq += self.dma_units(pp, sreg, imm, nfr)
        E.inject(eq, self.opt.get('pevery', 4))
        for q in range(4):
            E.wait_lg(f'x{q}')
            for r in range(4 * q, 4 * q + 4): E.e(f'v_add_f32 v{U + r}, v{U + r}, v{X + r}')
            for i in range(2 * q, 2 * q + 2): E.e(f'v_cvt_pk_bf16_f32 v{RES + i}, v{U + 2 * i}, v{U + 2 * i + 1}')
        E.inject_off()
        Lfin = E.label('fin'); Ldone = E.label('pdone')
        if last_check:
            E.e(f's_cmp_eq_u32 s{S_L}, 1'); E.e(f's_cbranch_scc1 {Lfin}')
        self.store_act([f'buffer_store_dwordx4 v[{RES}:{RES + 3}], v{V_L16}, s[4:7], s{S_XD} offen',
                        f'buffer_store_dwordx4 v[{RES + 4}:{RES + 7}], v{V_L16}, s[4:7], s{S_XD} offen offset:1024'])
        stats32(E, [U + r for r in range(16)], (T + 2, T + 3, T + 4, T + 5), T + 6, T + 7)
        self.store_act([f'buffer_store_dwordx2 v[{T + 6}:{T + 7}], v{V_S8}, s[4:7], s{S_SD} offen'])
        if name == 'wo': self.pint_copy_in(7)
        for (pn, reg) in dma_plan.get('copy_in', []): self.copy_in(pn, reg)
        if dma_plan.get('staged_T'):
            for it in self.unstage_items(7, 160, T + 8) + self.unstage_items(8, 192, T + 9): it()
        for (pp, sreg, imm, nfr) in dma_plan.get('post', []):
            if self.raw() and sreg == S_WQ:
                for u in self.qkv_units(pp, imm // SLAB33): u()
            else: self.dma(pp, sreg, imm, nfr)
        if last_check:
            E.e(f's_branch {Ldone}')
            E.place(Lfin)
            E.e(f'''
            v_permlane32_swap_b32 v{RES}, v{RES + 2}
            v_permlane32_swap_b32 v{RES + 1}, v{RES + 3}
            v_permlane32_swap_b32 v{RES + 4}, v{RES + 6}
            v_permlane32_swap_b32 v{RES + 5}, v{RES + 7}
            ''')
            if self.opt.get('outlds', False):
                E.e(f'''
                s_lshl_b32 s44, s{S_RH}, 12
                s_lshl_b32 s45, s{S_KH}, 6
                s_add_u32 s44, s44, s45
                v_and_b32 v{T}, 31, v{V_LANE}
                v_lshlrev_b32 v{T}, 7, v{T}
                v_lshrrev_b32 v{T + 1}, 5, v{V_LANE}
                v_lshlrev_b32 v{T + 1}, 4, v{T + 1}
                v_add_u32 v{T}, v{T}, v{T + 1}
                v_add_u32 v{T}, s44, v{T}
                ds_write_b128 v{T}, v[{RES}:{RES + 3}]
                ds_write_b128 v{T}, v[{RES + 4}:{RES + 7}] offset:32
                s_lshl_b32 s45, s{S_W}, 11
                v_add_u32 v{T + 1}, s45, v{V_L16}
                v_lshrrev_b32 v{T + 2}, 3, v{V_LANE}
                v_lshlrev_b32 v{T + 2}, 10, v{T + 2}
                v_and_b32 v{T + 3}, 7, v{V_LANE}
                v_lshlrev_b32 v{T + 3}, 4, v{T + 3}
                v_add_u32 v{T + 2}, v{T + 2}, v{T + 3}
                s_lshl_b32 s44, s{S_C}, 1
                s_add_u32 s44, s44, s{S_R64}
                s_lshl_b32 s44, s44, 16
                s_lshl_b32 s45, s{S_W}, 14
                s_add_u32 s44, s44, s45
                s_lshl_b32 s45, s{S_CB}, 7
                s_add_u32 s44, s44, s45
                s_add_u32 s45, s44, 8192
                s_waitcnt lgkmcnt(0)
                s_barrier
                ds_read_b128 v[{T + 8}:{T + 11}], v{T + 1}
                ds_read_b128 v[{T + 12}:{T + 15}], v{T + 1} offset:1024
                s_waitcnt lgkmcnt(1)
                buffer_store_dwordx4 v[{T + 8}:{T + 11}], v{T + 2}, s[8:11], s44 offen {self.opt.get('outfl', 'sc1')}
                s_waitcnt lgkmcnt(0)
                buffer_store_dwordx4 v[{T + 12}:{T + 15}], v{T + 2}, s[8:11], s45 offen {self.opt.get('outfl', 'sc1')}
                ''')
            else:
                E.e(f'''
                s_mov_b32 s44, s{S_OUT}
                v_and_b32 v{T}, 31, v{V_LANE}
                v_lshlrev_b32 v{T}, 10, v{T}
                v_lshrrev_b32 v{T + 1}, 5, v{V_LANE}
                v_lshlrev_b32 v{T + 1}, 4, v{T + 1}
                v_add_u32 v{T}, v{T}, v{T + 1}
                buffer_store_dwordx4 v[{RES}:{RES + 3}], v{T}, s[8:11], s44 offen
                buffer_store_dwordx4 v[{RES + 4}:{RES + 7}], v{T}, s[8:11], s44 offen offset:32
                ''')
            if self.opt.get('single', True):
                Le = E.label('ep')
                E.e(f'''
                s_cmp_lg_u32 s2, 0
                s_cbranch_scc1 {Le}
                s_cmp_lg_u32 s{S_W}, 0
                s_cbranch_scc1 {Le}
                v_mov_b32 v9, s{S_E}
                v_mov_b32 v10, {EPOCH}
                s_mov_b64 exec, 1
                buffer_store_dword v9, v10, s[4:7], 0 offen sc1
                s_mov_b64 exec, -1
                {Le}:
                ''')
            if self.opt.get('dbgclk'):
                Lq = E.label('dbg')
                E.e(f'''
                s_memrealtime s[80:81]
                s_memtime s[66:67]
                s_waitcnt lgkmcnt(0)
                s_cmp_lg_u32 s{S_W}, 0
                s_cbranch_scc1 {Lq}
                s_cmp_ge_u32 s2, 4
                s_cbranch_scc1 {Lq}
                s_sub_u32 s80, s80, s96
                s_sub_u32 s66, s66, s98
                s_lshl_b32 s45, s2, 4
                v_mov_b32 v9, s45
                s_mul_i32 s46, s2, 85*8
                s_add_u32 s46, s46, 0x3100000
                v_mov_b32 v10, 0
                buffer_load_dwordx2 v[12:13], v10, s[4:7], s46 offen sc1
                v_mov_b32 v14, s96
                v_mov_b32 v15, s80
                s_waitcnt vmcnt(0)
                s_mov_b64 exec, 1
                global_store_dwordx4 v9, v[12:15], s[72:73]
                s_mov_b64 exec, -1
                {Lq}:
                ''')
            sv = self._prev; self.stamp(11); self.stamp_flush(); self._prev = sv
            E.e('s_branch L_k1_end')
            E.place(Ldone)
    def h_epilogue_items(self, acc, t):
        E = self.E; P, X = T + 8, T + 16; H = T + 24
        early = self.opt.get('earlyd', False)
        if early and t >= 5: H = T + 28 + 4 * (t - 5)
        it = []
        for r in range(8): it.append(f'v_mul_f32 v{X + r}, v{acc + r}, v{V_C1}')
        for r in range(8): it.append(f'v_mul_f32 v{P + r}, v{acc + r}, v{acc + 8 + r}')
        for r in range(8): it.append(f'v_exp_f32 v{X + r}, v{X + r}')
        for r in range(8): it.append(f'v_fma_f32 v{X + r}, v{X + r}, v{V_C2}, v{V_C2}')
        for r in range(8): it.append(f'v_rcp_f32 v{X + r}, v{X + r}')
        it.append(f's_add_u32 s51, s{S_HD}, {t * 1024}')
        for r in range(8): it.append(f'v_mul_f32 v{P + r}, v{P + r}, v{X + r}')
        for r in range(4): it.append(f'v_cvt_pk_bf16_f32 v{H + r}, v{P + 2 * r}, v{P + 2 * r + 1}')
        def st():
            self.store_act([f'buffer_store_dwordx4 v[{H}:{H + 3}], v{V_L16}, s[4:7], s51 offen'], 'l' if t == 6 else 'h', tag=(f'sth{t}' if early else 'st'))
        if not (early and t >= 5): it.append(st)
        return it
    def phase_ffn1(self):
        E = self.E; F = Fill(E)
        E.c('==== gate/up ====')
        if self.pint():
            for it in self.copy_out_items(self.pint(), 172): F.add(it, lambda: None)
        F.add(*self.stats_items(-1))
        tail = []
        if not self.staged('T'):
            if self.opt.get('t2site', 'loopend') == 't01': tail += self.dma_units(7, S_W13, 2 * SLAB33, 33)
            if self.opt.get('t3site', 't01') == 't01': tail += self.dma_units(8, S_W13, 3 * SLAB33, 33)
        wsites = self.opt.get('wsites', ('t01', 'tile3', 'tile4', 'tile5'))
        def wstg(site):
            us = []
            if self.staged('W'):
                for j in range(4):
                    if wsites[j] == site: us += self.stage_units(S_W2, (3 + j) * 32768, 128 + 32 * j)
            return us
        tail += wstg('t01')
        tail += self.pf_site('t01tail')
        self.kouter(V_SLOT + 5 % 4, V_SLOT + 6 % 4, ACC[0], ACC[1], True, F, tail, (AUG + 3, AUG + 4), fine=self.opt.get('fine_ts'))
        if self.tiles_ts: self.stamp(18)
        NT = 5
        WE = self.opt.get('we', 4); RING = 10 if WE == 4 else 6; PD = self.opt.get('pd', 7) if WE == 4 else 4
        def step(g): return 2 + g // 33, g % 33
        def rq(g):
            t, kb = step(g); p = 5 + t
            if kb == 32: return
            E.ds(f'ds_read_b128 v[{self.wfrag(g, RING)}:{self.wfrag(g, RING) + 3}], v{V_SLOT + p % 4} offset:{kb * 1024}', f'g{g}')
        if 'slab7' in E.vm: E.wait_vm('slab7')
        E.wait_lg_all()
        E.e('s_barrier')
        for g in range(PD): rq(g)
        ep = []
        for j in range(6):
            first = 4 if j < 2 else (j - 1) * 33 + 3
            for it in self.h_epilogue_items(ACC[j % 3], j): ep.append((first, j, it))
        total = len(ep); done = 0
        dq = self.dma_units(9, S_W13, 4 * SLAB33, 33) + self.pf_site('tile2') + self.dma_units(10, S_W13, 5 * SLAB33, 33) + wstg('tile2')
        G = NT * 33
        for g in range(G):
            t, kb = step(g)
            if kb == 1 and t > 2:
                E.e('s_barrier')
                if t == 3 and 'l' in self.opt.get('pre', ''): dq += self.preread_units(S_HD, (6 * 1024,))
                if t == 3: dq += self.dma_units(11, S_W13, 6 * SLAB33, 33)
                else: dq += self.dma_units(12 + (t - 4), S_W2, (t - 4) * 32 * 1024, 32)
                dq += self.pf_site(f'tile{t}') + wstg(f'tile{t}')
            if kb == 32 - PD and t < 6:
                need = f'slab{5 + t + 1}'
                assert not any(need == u.tag for u in dq), need
                if need in E.vm: E.wait_vm(need)
                E.e('s_barrier')
            if g + PD < G: rq(g + PD)
            if g % WE == 0:
                last = max(gg for gg in range(g, min(g + WE, G)) if gg % 33 != 32 or gg == g)
                E.wait_lg(f'g{last}')
            if kb == 28: E.e(f'v_mov_b32 v{AQ[t % 2]}, v{AUG + 3 + t}'); E.e(f'v_mov_b32 v{AQ[t % 2] + 1}, v{AUG + 3 + t}')
            acc = ACC[t % 3]
            B = f'a[{4 * kb}:{4 * kb + 3}]' if kb < 32 else f'v[{MF}:{MF + 3}]'
            w = self.wfrag(g, RING) if kb < 32 else AQ[t % 2]; C = '0' if kb == 0 else f'v[{acc}:{acc + 15}]'
            E.e(f'v_mfma_f32_32x32x16_bf16 v[{acc}:{acc + 15}], v[{w}:{w + 3}], {B}, {C}')
            fast = g < self.opt.get('fastg', 0)
            if dq and (fast or g % self.opt.get('dstep', 2) == 0): dq.pop(0)()
            want = (total * (g + 1) + G - 3) // (G - 2)
            while done < min(want, total) and ep[0][0] <= g:
                _, j, it = ep.pop(0)
                assert g < (j + 3 - 2) * 33 or j + 3 > 6, (g, j)
                if isinstance(it, str): E.e(it)
                else: it()
                done += 1
            if self.tiles_ts and kb == 32: self.stamp(16 + t + 1)
        assert not ep, len(ep)
        for u in dq: u()
        E.wait_lg_all()
        if self.opt.get('earlyd', False):
            E.wait_vm('sth4')
            E.barrier()
            self.flag_store()
            F.add(*self.h_epilogue_items(ACC[6 % 3], 6)); F.flush()
            L = E.label('d1')
            E.e(f's_cmp_lg_u32 s{S_W}, 0'); E.e(f's_cbranch_scc1 {L}')
            self.poll(S_FLOFF, S_STEP, 1)
            E.place(L)
            E.barrier()
            return
        E.nop(12)
        F.add(*self.h_epilogue_items(ACC[6 % 3], 6)); F.flush()
    def wo_plan(self):
        t2 = self.opt.get('t2site', 'loopend'); t3 = self.opt.get('t3site', 't01')
        if self.staged('T'): return dict(staged_T=True)
        plan = dict(start=[(6, S_W13, SLAB33, 33)] if self.opt.get('t1site', 'wo') == 'wo' else [])
        if t2 in ('post', 'loopend'): plan.setdefault(t2, []).append((7, S_W13, 2 * SLAB33, 33))
        if t3 in ('post', 'end'): plan.setdefault(t3, []).append((8, S_W13, 3 * SLAB33, 33))
        return plan
    def gen(self):
        E = self.E
        self.init()
        if self.ts: E.e('v_mov_b32 v255, 0'); E.e('v_mov_b32 v254, 0'); E.e('s_mov_b32 s92, 0')
        E.place('L_k1_layer')
        self._prev = 30
        self.stamp(0)
        self.phase_qkv()
        self.stamp(5)
        if self.stop == 'qkv': E.wait_vm_all(force=True); E.e('s_branch L_k1_end')
        self.hop_local()
        self.stamp(6)
        self.phase_proj('wo', 16, OF_, 32 * 1024, 3, S_WO,
                        self.wo_plan(), X1F_, ST1_, False)
        self.stamp(7)
        if self.stop == 'wo': E.wait_vm_all(force=True); E.e('s_branch L_k1_end')
        self.hop_local()
        self.stamp(8)
        self.phase_ffn1()
        self.stamp(9)
        if self.stop == 'ffn1': E.wait_vm_all(force=True); E.e('s_branch L_k1_end')
        if not self.opt.get('earlyd', False): self.hop_local()
        self.stamp(10)
        nx = [(19, S_WQ, 0, 33), (20, S_WQ, SLAB33, 33), (21, S_WQ, 2 * SLAB33, 33), (22, S_WO, 0, 32)]
        plan = {'start': [(15, S_W2, 3 * 32768, 32)], 0: [], 1: [(16, S_W2, 4 * 32768, 32)], 2: [(17, S_W2, 5 * 32768, 32)], 3: [(18, S_W2, 6 * 32768, 32)],
                }
        if self.staged('W'): plan = {'staged_W': True}
        kv = self.opt.get('kvsite', 'post')
        pinned = [pn for (_, pn, _) in self.pinv()]
        rest = [x for x in nx[:2] if x[0] not in pinned]
        if kv == 'loop':
            for x in rest: plan.setdefault(4 if x[0] == 19 else 5, []).append(x)
        else: plan[kv] = rest
        plan['copy_in'] = [(pn, reg) for (_, pn, reg) in self.pinv()]
        self.phase_proj('w2', 56, HF_, 112 * 1024, 12, S_W2, plan, X2F_, ST2_, True)
        self.stamp(11)
        if self.stop == 'w2': E.wait_vm_all(force=True); E.e('s_branch L_k1_end')
        self.hop_local()
        E.e(f's_add_u32 s{S_KG}, s{S_KG}, {LB(1) - LB(0)}'); E.e(f's_add_u32 s{S_KP}, s{S_KP}, {LB(1) - LB(0)}')
        E.e(f's_add_u32 s{S_FAR}, s{S_FAR}, 4096'); E.e(f's_add_u32 s{S_FAW}, s{S_FAW}, 4096')
        E.e(f's_add_u32 s{S_L}, s{S_L}, 1')
        E.e('s_mov_b32 s94, 0'); E.e('s_mov_b32 s95, 0')
        if self.ts:
            E.e('s_waitcnt lgkmcnt(0)'); E.e(f'v_writelane_b32 v255, s92, {self._prev}'); E.e('v_mov_b32 v254, v255'); E.e('v_mov_b32 v255, 0')
        E.e(f's_mov_b32 s40, s{S_SLOT + 3}')
        for i in (3, 2, 1): E.e(f's_mov_b32 s{S_SLOT + i}, s{S_SLOT + i - 1}')
        E.e(f's_mov_b32 s{S_SLOT}, s40')
        for i in range(4): E.e(f'v_add_u32 v{V_SLOT + i}, s{S_SLOT + i}, v{V_L16}')
        E.e('s_branch L_k1_layer')
        E.place('L_k1_end')
        E.place('L_k1_last')
        E.e('s_endpgm')
        return E

def gen_k1(name='main_kernel', **kw):
    return K1(name, **kw).gen()
```
